```python
import torch

def _softmax(x, axis=-1):
    return torch.softmax(x, dim=axis)
def _gelu(x):
    return torch.nn.functional.gelu(x, approximate="tanh")
def _silu(x):
    return torch.nn.functional.silu(x)
def _sigmoid(x):
    return torch.sigmoid(x)
def _layernorm(x, axis=-1, eps=1e-5):
    m = x.mean(dim=axis, keepdim=True)
    v = x.var(dim=axis, keepdim=True, unbiased=False)
    return (x - m) / torch.sqrt(v + eps)
def _scatter_add(tgt, idx, src, axis=0):
    return tgt.clone().index_add_(axis, idx, src)
def _segment_sum(src, seg, n):
    out = torch.zeros((n,) + src.shape[1:], dtype=src.dtype)
    return out.index_add_(0, seg, src)
def _pad(x, pw):
    flat = tuple(v for pair in reversed(pw) for v in pair)
    return torch.nn.functional.pad(x, flat)

kernel_name = 'gated_mix__sliding_block_cached__glu_gated_glu__decode'

def setup_inputs():

    _w = (lambda a: (lambda t: t.to(torch.bfloat16) if t.is_floating_point() else t)(torch.as_tensor(a)))
    def _A_setup():
        B, Sq, D = 2, 1, 1024
        Hq, Hkv, Sk, Dh = 32, 4, 32768, 128
        assert Hq % Hkv == 0, (Hq, Hkv)
        return {
            "x": _w((lambda *s: torch.randn(*s, dtype=torch.bfloat16) * 0.05)(B, Sq, D)),
            "k_cache": _w((lambda *s: torch.randn(*s, dtype=torch.bfloat16) * 6.4)(B, Hkv, Sk, Dh)),
            "v_cache": _w((lambda *s: torch.randn(*s, dtype=torch.bfloat16) * 1.6)(B, Hkv, Sk, Dh)),
            "wq": _w((lambda *s: torch.randn(*s, dtype=torch.bfloat16) * 6.4)(D, Hq * Dh) * (D ** -0.5)),
            "wo": _w((lambda *s: torch.randn(*s, dtype=torch.bfloat16) * 1.6)(Hq * Dh, D) * ((Hq * Dh) ** -0.5)),
        }
    _A_in = _A_setup()

    def _B_setup():
        B, S, D, F = 2, 1, 1024, 3584
        return {
            "x": _w((lambda *s: torch.randn(*s, dtype=torch.bfloat16) * 0.05)(B, S, D)),
            "w_gate": _w((lambda *s: torch.randn(*s, dtype=torch.bfloat16) * 0.8)(D, F)),
            "w_up": _w((lambda *s: torch.randn(*s, dtype=torch.bfloat16) * 0.05)(D, F)),
            "w_down": _w((lambda *s: torch.randn(*s, dtype=torch.bfloat16) * 0.05)(F, D)),
        }
    _B_in = _B_setup()

    return {
        "A_x": _A_in["x"],
        "A_k_cache": _A_in["k_cache"],
        "A_v_cache": _A_in["v_cache"],
        "A_wq": _A_in["wq"],
        "A_wo": _A_in["wo"],
        "B_x": _B_in["x"],
        "B_w_gate": _B_in["w_gate"],
        "B_w_up": _B_in["w_up"],
        "B_w_down": _B_in["w_down"],
        "gate_w": _w((lambda *s: torch.randn(*s, dtype=torch.bfloat16) * 0.05)(1024) * 16.0),
    }

def reference(A_x, A_k_cache, A_v_cache, A_wq, A_wo, B_x, B_w_gate, B_w_up, B_w_down, gate_w):
    def _A_ref(x, k_cache, v_cache, wq, wo):
        B, Sq, D = x.shape
        Hq, Dh = 32, 128
        Hkv, Sk = k_cache.shape[1], k_cache.shape[2]
        W = min(4096, max(256, Sk // 4))
        rep = Hq // Hkv
        q = (lambda x, *d: x.permute(*d))((x @ wq).reshape(B, Sq, Hq, Dh), 0, 2, 1, 3)
        k = (lambda x, n, axis: torch.repeat_interleave(x, n, dim=axis))(k_cache[:, :, Sk - W:, :], rep, axis=1)
        v = (lambda x, n, axis: torch.repeat_interleave(x, n, dim=axis))(v_cache[:, :, Sk - W:, :], rep, axis=1)
        scores = torch.einsum("bhqd,bhkd->bhqk", q, k) * (Dh ** -0.5)
        p = _softmax(scores, axis=-1)
        o = torch.einsum("bhqk,bhkd->bhqd", p, v)
        return (lambda x, *d: x.permute(*d))(o, 0, 2, 1, 3).reshape(B, Sq, Hq * Dh) @ wo

    def _B_ref(x, w_gate, w_up, w_down):
        g = torch.einsum("bsd,df->bsf", x, w_gate)
        u = torch.einsum("bsd,df->bsf", x, w_up)
        h = _sigmoid(g) * u
        return torch.einsum("bsf,fd->bsd", h, w_down)

    x = A_x
    g = _sigmoid((x * gate_w).sum(-1, keepdims=True))
    a = _A_ref(x, A_k_cache, A_v_cache, A_wq, A_wo)
    b = _B_ref(x, B_w_gate, B_w_up, B_w_down)
    return g * a + (1 - g) * b
```

```python
NAME = "gated_mix__sliding_block_cached__glu_gated_glu__decode"
KARG = dict(x=0, k=8, v=16, wq=24, wo=32, bx=40, wg=48, wu=56, wd=64, gw=72, out=80, dbg=88, ws=96)
SIZE = dict(x=4096, k=64 << 20, v=64 << 20, wq=8 << 20, wo=8 << 20, wg=7 << 20, wu=7 << 20, wd=7 << 20,
            gw=2048, out=4096, dbg=256, ws=256 << 20)

class Asm:
    def __init__(self):
        self.lines = []
    def __call__(self, s=""):
        for l in s.split("\n"):
            l = l.strip()
            if not l:
                continue
            self.lines.append(l if l.endswith(":") else "    " + l)
    def text(self):
        return "\n".join(self.lines) + "\n"

def header(launch_lines):
    ref = open("cdna_kernels/%s.s.ref" % NAME).read().split("\n")
    out = []
    for l in ref:
        if l.startswith("; @launch"):
            break
        out.append(l)
    out += launch_lines
    out.append('.amdgcn_target "amdgcn-amd-amdhsa--gfx950"')
    out.append(".text")
    return "\n".join(out) + "\n"

def kernel_open(label):
    return ".globl %s\n.p2align 8\n.type %s,@function\n%s:\n" % (label, label, label)

def descriptor(label, vgpr, sgpr=102, accum=None, extra=""):
    if accum is None:
        accum = min(256, (vgpr + 3) // 4 * 4)
    return (".amdhsa_kernel %s\n  .amdhsa_next_free_vgpr %d\n  .amdhsa_next_free_sgpr %d\n  .amdhsa_accum_offset %d\n"
            "  .amdhsa_group_segment_fixed_size 0\n  .amdhsa_kernarg_size 104\n  .amdhsa_user_sgpr_count 2\n"
            "  .amdhsa_user_sgpr_kernarg_segment_ptr 1\n  .amdhsa_system_sgpr_workgroup_id_x 1\n%s.end_amdhsa_kernel\n"
            % (label, vgpr, sgpr, accum, extra))

RODATA = '.section .rodata,"a"\n.p2align 6\n'
```

```python
import re

_REG = re.compile(r"\b([vs])\[(\d+):(\d+)\]|\b([vs])(\d+)\b|\b(vcc|exec|m0)\b")
TRANS = ("v_exp_", "v_log_", "v_rcp_", "v_rsq_", "v_sqrt_", "v_sin_", "v_cos_")

def regs(op):
    out = set()
    for m in _REG.finditer(op):
        if m.group(1):
            out |= {(m.group(1), i) for i in range(int(m.group(2)), int(m.group(3)) + 1)}
        elif m.group(4):
            out.add((m.group(4), int(m.group(5))))
        else:
            out.add((m.group(6), 0))
    return out

class Ins:
    def __init__(self, text):
        self.text = text
        t = text.split(";")[0].strip()
        self.label = t.endswith(":")
        self.empty = (not t) or self.label or t.startswith(".")
        self.mn = "" if self.empty else t.split()[0]
        rest = t[len(self.mn):].strip()
        ops = [o.strip() for o in rest.split(",")] if rest else []
        self.ops = ops
        mn = self.mn
        self.mfma = mn.startswith("v_mfma")
        self.valu = mn.startswith("v_") and not self.mfma
        self.trans = mn.startswith(TRANS)
        self.vmem = mn.startswith(("buffer_", "global_"))
        self.ds = mn.startswith("ds_")
        self.dpp = self.valu and bool(re.search(r"row_(ror|shr|shl|newbcast|mirror|half_mirror|bcast)|quad_perm|wave_", rest))
        self.perml = mn.startswith("v_permlane")
        self.rdlane = mn.startswith(("v_readlane", "v_readfirstlane"))
        self.w, self.r = set(), set()
        self.wide_store = set()
        allr = set().union(*[regs(o) for o in ops]) if ops else set()
        if self.mfma:
            self.w = regs(ops[0]); self.ab = regs(ops[1]) | regs(ops[2]); self.c = regs(ops[3]); self.r = self.ab | self.c
        elif self.valu:
            self.w = regs(ops[0])
            self.r = set().union(*[regs(o) for o in ops[1:]]) if len(ops) > 1 else set()
            if self.perml:
                self.w = regs(ops[0]) | regs(ops[1]); self.r = set(self.w)
            if mn.startswith(("v_fmac", "v_dot2c")) or self.dpp:
                self.r |= regs(ops[0])
        elif self.vmem:
            if "_load" in mn and " lds" not in rest:
                self.w = regs(ops[0]); self.r = allr - self.w | set().union(*[regs(o) for o in ops[1:]])
            else:
                self.r = allr
                if mn.endswith(("x3", "x4")) and "_store" in mn:
                    self.wide_store = regs(ops[0] if mn.startswith("buffer_") else ops[1])
        elif self.ds:
            if "read" in mn or "_rtn" in mn or "permute" in mn or "swizzle" in mn:
                self.w = regs(ops[0]); self.r = set().union(*[regs(o) for o in ops[1:]])
            else:
                self.r = allr
        self.states = 0 if self.empty else (int(ops[0], 0) + 1 if mn == "s_nop" else 1)

def need(p, c):
    n = 0
    vw = {x for x in p.w if x[0] == "v"}
    sw = {x for x in p.w if x[0] != "v"}
    if p.valu:
        if vw & c.r:
            if c.dpp or c.perml or c.mfma: n = max(n, 2)
            if c.rdlane: n = max(n, 1)
            if p.trans and (c.valu or c.mfma): n = max(n, 1)
        if sw & c.r:
            if c.vmem: n = max(n, 5)
            if c.valu: n = max(n, 4 if c.rdlane else 2)
    if p.mfma:
        if c.mfma:
            if p.w & c.ab: n = max(n, 8)
            if p.w & c.c and p.w != c.c: n = max(n, 6)
            if p.w & c.w and p.w != c.c: n = max(n, 6)
        elif c.valu:
            if p.w & (c.r | c.w): n = max(n, 8)
            if p.c & c.w: n = max(n, 3)
        elif c.vmem or c.ds:
            if p.w & (c.r | c.w): n = max(n, 8)
    if p.wide_store and p.wide_store & c.w:
        n = max(n, 2)
    return n

def pad(lines):
    out = []
    for text in lines:
        c = Ins(text)
        if not c.empty:
            dist = 0
            short = 0
            for p in reversed(out):
                if p.empty:
                    continue
                if p.mn in ("s_branch", "s_endpgm", "s_setpc_b64"):
                    break
                short = max(short, need(p, c) - dist)
                dist += p.states
                if dist >= 12:
                    break
            if short > 0:
                out.append(Ins("    s_nop %d" % (short - 1)))
        out.append(c)
    return [i.text for i in out]
```

```python
import sys
from asmlib import *
import hazard

DEFAULTS = dict(wa=6, wf=6, pol="nt", stamps=False, spin=100000, outpol="sc1", go_wait=None)

QX, HX, FX, OX = 0x10000, 0x40000, 0x80000, 0x100000
STAMP_OFF = 128 << 20
F_Q, F_O, C_H, F_OI, F_HI, C_F = 0, 4, 8, 12, 16, 20
GP, MLL, OI, HI = 64, 256, 512, 1024
RQ, RH, RF, QI, OL = 2048, 6144, 10240, 14336, 16640
LDS_BYTES = OL + 4 * 4224
SRD = dict(x=4, wq=8, k=12, v=16, wg=20, wu=24, wo=28, wd=32, gw=36, ws=40, out=44)
sX, sS, sW, sT, sT0, sCNT = 48, 49, 50, 51, 52, 56
sA, sB, sC, sD, sE, sF, sG, sH, sRB, sKS = 57, 58, 59, 60, 61, 62, 63, 64, 65, 66
sST = 70
NST = 14
LOG2E = 0x3fb8aa3b
SCALE = 0x3db504f3
KVBASE = (32768 - 4096) * 256


def srd(n):
    return "s[%d:%d]" % (SRD[n], SRD[n] + 3)


def vr(b, n=4):
    return "v[%d:%d]" % (b, b + n - 1)


class Gen:
    def __init__(self, **kw):
        self.o = dict(DEFAULTS)
        self.o.update(kw)
        self.a = Asm()

    def stamp(self, i):
        if self.o["stamps"]:
            self.a("s_memrealtime s[%d:%d]" % (sST + 2 * i, sST + 2 * i + 1))

    def ptr(self, n):
        self.a("s_load_dwordx2 s[%d:%d], s[0:1], %d" % (SRD[n], SRD[n] + 1, KARG[n]))

    def desc(self, n):
        self.a("s_mov_b32 s%d, 0x%x\ns_mov_b32 s%d, 0x20000" % (SRD[n] + 2, SIZE[n], SRD[n] + 3))

    def guard(self):
        self.a("s_sub_u32 s%d, s%d, 1\ns_cbranch_scc1 L_end" % (sCNT, sCNT))

    def load(self, dst, voff, buf, soff, imm=0, pol=""):
        self.a("buffer_load_dwordx4 %s, v%d, %s, %s offen%s%s" % (
            vr(dst), voff, srd(buf), soff, " offset:%d" % imm if imm else "", " " + pol if pol else ""))

    def tags(self):
        a = self.a
        a("s_add_u32 s%d, s%d, 0x01010101" % (sT, sT))
        a("s_and_b32 s%d, s%d, 0xff" % (sT0, sT))
        a("s_bfe_u32 s%d, s%d, 0x80008" % (sT0 + 1, sT))
        a("s_bfe_u32 s%d, s%d, 0x80010" % (sT0 + 2, sT))
        a("s_lshr_b32 s%d, s%d, 24" % (sT0 + 3, sT))

    def tag4(self, dst, src):
        for j in range(4):
            self.a("v_bfi_b32 v%d, v2, s%d, v%d" % (dst + j, sT0 + j, src[j]))

    def untag(self, base, n, acc):
        a = self.a
        regs = list(range(base, base + 4 * n))
        for r in regs:
            a("v_xor_b32 v%d, s%d, v%d" % (r, sT0 + (r - base) % 4, r))
        a("v_or_b32 v%d, v%d, v%d" % (acc, regs[0], regs[1]))
        for i in range(2, len(regs), 2):
            a("v_or3_b32 v%d, v%d, v%d, v%d" % (acc, acc, regs[i], regs[i + 1]))
        a("v_and_b32 v%d, v2, v%d" % (acc, acc))
        a("v_cmp_ne_u32 vcc, 0, v%d" % acc)

    def dpp(self, op, d, s0, s1, ctl, bank=0xf):
        self.a("%s_dpp v%d, v%d, %s%s row_mask:0xf bank_mask:0x%x" % (
            op, d, s0, "v%d " % s1 if s1 is not None else "", ctl, bank) if s1 is not None else
            "%s_dpp v%d, v%d %s row_mask:0xf bank_mask:0x%x" % (op, d, s0, ctl, bank))

    def rows_allreduce(self, op, x, t, which=(16, 32)):
        for n in which:
            self.a("v_mov_b32 v%d, v%d\nv_permlane%d_swap_b32 v%d, v%d\n%s v%d, v%d, v%d" % (t, x, n, x, t, op, x, x, t))

    def rows_scatter_sum(self, sets):
        a = self.a
        for b in sets:
            a("v_permlane32_swap_b32 v%d, v%d\nv_permlane32_swap_b32 v%d, v%d" % (b, b + 2, b + 1, b + 3))
        for b in sets:
            a("v_add_f32 v%d, v%d, v%d\nv_add_f32 v%d, v%d, v%d" % (b, b, b + 2, b + 1, b + 1, b + 3))
        for b in sets:
            a("v_permlane16_swap_b32 v%d, v%d" % (b, b + 1))
        for b in sets:
            a("v_add_f32 v%d, v%d, v%d" % (b, b, b + 1))

    def rnd(self, d, s):
        self.a("v_cvt_pk_bf16_f32 v%d, 0, v%d" % (d, s))

    def sigmoid(self, d, z):
        a = self.a
        a("v_mul_f32 v%d, 0x%x, v%d" % (d, LOG2E ^ 0x80000000, z))
        a("v_exp_f32 v%d, v%d\nv_add_f32 v%d, 1.0, v%d\nv_rcp_f32 v%d, v%d" % (d, d, d, d, d, d))
        self.rnd(d, d)

    def sel_x(self):
        a = self.a
        a("v_bfe_u32 v3, v1, 2, 1\nv_mul_u32_u24 v3, 0x202, v3\nv_add_u32 v3, 0x0c0c0100, v3")
        a("v_lshlrev_b32 v4, 4, v1\nv_alignbit_b32 v3, v3, v3, v4")
        a("v_and_b32 v4, 2, v1\nv_cmp_eq_u32 vcc, 0, v4\nv_mov_b32 v4, 0x0c0c0c0c")
        a("v_cndmask_b32 v14, v4, v3, vcc\nv_cndmask_b32 v15, v3, v4, vcc")

    def x_operands(self):
        for m in range(8):
            self.a("v_perm_b32 v%d, v%d, v%d, v14\nv_perm_b32 v%d, v%d, v%d, v15" % (
                24 + 2 * m, 16 + m, 16 + m, 25 + 2 * m, 16 + m, 16 + m))

    def mf16(self, d, av, bv, first):
        self.a("v_mfma_f32_16x16x16_bf16 %s, %s, %s, %s" % (vr(d), vr(av, 2), vr(bv, 2), "0" if first else vr(d)))

    def mf32(self, d, av, bv, first):
        self.a("v_mfma_f32_16x16x32_bf16 %s, %s, %s, %s" % (vr(d), vr(av), vr(bv), "0" if first else vr(d)))

    def sum4(self, b):
        for r in range(4):
            self.a("v_add_f32 v%d, v%d, v%d\nv_add_f32 v%d, v%d, v%d" % (b + r, b + r, b + 4 + r, b + 8 + r, b + 8 + r, b + 12 + r))
        for r in range(4):
            self.a("v_add_f32 v%d, v%d, v%d" % (b + r, b + r, b + 8 + r))

    def last_arriver(self, cnt, skip):
        a = self.a
        a("s_mov_b64 exec, 1\nds_add_rtn_u32 v3, v9, v8 offset:%d\ns_mov_b64 exec, -1" % cnt)
        a("s_waitcnt lgkmcnt(0)\nv_readfirstlane_b32 s%d, v3\ns_cmp_lg_u32 s%d, 3\ns_cbranch_scc1 %s" % (sA, sA, skip))

    def prologue(self):
        a = self.a
        self.stamp(0)
        a("s_cmp_ge_u32 s2, 256\ns_cbranch_scc1 L_exit")
        for n in ("x", "wq", "ws"):
            self.ptr(n)
        a("v_lshrrev_b32 v3, 6, v0\nv_and_b32 v1, 63, v0")
        a("s_and_b32 s%d, s2, 7\ns_lshr_b32 s%d, s2, 3" % (sX, sS))
        a("v_readfirstlane_b32 s3, v3")
        a("s_lshr_b32 s%d, s%d, 1" % (sKS, sX))
        self.desc("x")
        a("v_bfe_u32 v5, v1, 3, 1\nv_and_b32 v6, 0x30, v1\nv_and_b32 v7, 7, v1")
        a("s_and_b32 s%d, s3, 3" % sW)
        a("v_lshlrev_b32 v10, 11, v5\nv_lshl_add_u32 v10, v6, 1, v10")
        a("v_or_b32 v6, v6, v5\nv_lshlrev_b32 v7, 4, v7")
        a("s_lshl_b32 s%d, s%d, 2\ns_add_u32 s%d, s%d, s%d" % (sB, sKS, sB, sB, sW))
        a("s_lshl_b32 s%d, s%d, 7" % (sA, sB))
        a("s_cmp_ge_u32 s3, 4\ns_cbranch_scc1 L_F")

    def a_waves(self):
        a, o = self.a, self.o
        W, pol = o["wa"], o["pol"]
        WQ, KD, VD, VT, PV, QG, QB, SD = 48, 80, 112, 144, 176, 208, 224, 232
        self.ptr("k"); self.ptr("v")
        self.desc("wq")
        a("v_lshl_add_u32 v11, v6, 13, v7")
        a("s_and_b32 s%d, s%d, 1\ns_lshl_b32 s%d, s%d, 5\ns_add_u32 s%d, s%d, s%d" % (sC, sX, sC, sC, sC, sC, sS))
        a("s_lshl_b32 s%d, s%d, 7\ns_lshl_b32 s%d, s%d, 19\ns_add_u32 s%d, s%d, s%d" % (sC, sC, sB, sB, sB, sB, sC))
        a("s_waitcnt lgkmcnt(0)")
        self.load(16, 10, "x", "s%d" % sA)
        self.load(20, 10, "x", "s%d" % sA, 16)

        def issue(i):
            if i < 8:
                self.load(WQ + 4 * i, 11, "wq", "s%d" % sB, 0, pol)
                if i < 7:
                    a("s_add_u32 s%d, s%d, 0x4000" % (sB, sB))
            elif i < 16:
                oc, hh = (i - 8) >> 1, (i - 8) & 1
                self.load(KD + 4 * (i - 8), 12, "k", "s%d" % (sD if oc < 2 else sE), (oc & 1) * 512 + hh * 128, pol)
            else:
                m = i - 16
                self.load(VD + 4 * m, 13, "v", "s%d" % (sD if m < 4 else sE), (m & 3) * 1024, pol)

        for i in range(min(W, 8)):
            issue(i)
        self.stamp(1)
        a("s_load_dword s%d, s[%d:%d], 0" % (sT, SRD["ws"], SRD["ws"] + 1))
        self.desc("k"); self.desc("v"); self.desc("ws")
        a("s_lshl_b32 s%d, s%d, 23\ns_lshl_b32 s%d, s%d, 15\ns_add_u32 s%d, s%d, s%d" % (sD, sX, sE, sS, sD, sD, sE))
        a("s_lshl_b32 s%d, s%d, 13\ns_add_u32 s%d, s%d, s%d\ns_add_u32 s%d, s%d, 0x%x" % (sE, sW, sD, sD, sE, sD, sD, KVBASE))
        a("s_add_u32 s%d, s%d, 0x1000" % (sE, sD))
        a("v_and_b32 v3, 3, v1\nv_bfe_u32 v4, v1, 2, 1\nv_lshl_add_u32 v3, v3, 2, v4")
        a("v_lshrrev_b32 v4, 3, v1\nv_lshlrev_b32 v4, 4, v4\nv_lshl_add_u32 v12, v3, 8, v4")
        a("v_lshlrev_b32 v13, 4, v1")
        for i in range(min(W, 8), W):
            issue(i)
        a("v_mov_b32 v2, 0xff\nv_mov_b32 v8, 1\nv_mov_b32 v9, 0\ns_mov_b32 s%d, %d" % (sCNT, o["spin"]))
        self.sel_x()
        a("s_lshl_b32 s%d, s%d, 2\ns_lshr_b32 s%d, s%d, 3\ns_add_u32 s%d, s%d, s%d" % (sRB, sX, sA, sS, sRB, sRB, sA))
        a("s_lshl_b32 s%d, s%d, 10\nv_add_u32 v5, s%d, v13" % (sA, sW, sA))
        a("s_waitcnt vmcnt(%d)" % W)
        self.x_operands()
        for i in range(24 - W):
            a("s_waitcnt vmcnt(%d)" % (W - 1))
            issue(i + W)
            if i < 8:
                self.mf16(40, 24 + 2 * i, WQ + 4 * i, i == 0)
                self.mf16(44, 24 + 2 * i, WQ + 4 * i + 2, i == 0)
            if i == 7:
                for r in range(4):
                    a("v_permlane16_swap_b32 v%d, v%d" % (40 + r, 44 + r))
                for r in range(4):
                    self.dpp("v_add_f32", 40 + r, 44 + r, 40 + r, "row_ror:8")
                a("ds_write_b128 v5, v[40:43] offset:%d" % RQ)
                a("s_waitcnt lgkmcnt(0)\ns_barrier")
                self.stamp(2)
                self.tags()
                a("s_lshl_b32 s%d, s%d, 14\ns_lshl_b32 s%d, s%d, 12\ns_add_u32 s%d, s%d, s%d\ns_add_u32 s%d, s%d, 0x%x" % (
                    sF, sX, sA, sW, sF, sF, sA, sF, sF, QX))
                a("s_mov_b32 s%d, 0x05040100\ns_mov_b32 s%d, 0x07060302" % (sG, sH))

        def q_loads():
            for ks in range(4):
                self.load(QG + 4 * ks, 13, "ws", "s%d" % sF, ks * 1024, "sc1")

        q_loads()
        if o["go_wait"] is not None:
            a("s_waitcnt vmcnt(%d)" % o["go_wait"])
        a("s_barrier")
        self.stamp(3)
        a("v_lshrrev_b32 v3, 5, v1\ns_lshl_b32 s%d, s%d, 1\nv_add_u32 v3, s%d, v3" % (sA, sW, sA))
        a("v_and_b32 v4, 31, v1\nv_mul_u32_u24 v16, 272, v3\nv_lshl_add_u32 v16, v4, 3, v16")
        a("v_mul_u32_u24 v20, 528, v3\nv_lshl_add_u32 v20, v4, 4, v20\nv_lshlrev_b32 v21, 5, v3")
        a("v_mul_u32_u24 v23, 40960, v3\nv_lshl_add_u32 v23, v4, 4, v23")
        a("v_and_b32 v3, 7, v1\nv_lshrrev_b32 v4, 3, v1\nv_mul_u32_u24 v17, 272, v3\nv_lshl_add_u32 v17, v4, 4, v17")
        a("v_mul_u32_u24 v18, 528, v3\nv_and_b32 v5, 0x30, v1\ns_mul_i32 s%d, s%d, 4224\nv_add3_u32 v18, v18, v5, s%d" % (sA, sW, sA))
        a("s_lshl_b32 s%d, s%d, 3\nv_lshlrev_b32 v19, 5, v3\nv_add_u32 v19, s%d, v19" % (sA, sW, sA))
        a("v_mov_b32 v22, s%d" % sW)
        a("v_mul_u32_u24 v24, 640, v4\nv_mul_u32_u24 v25, 5120, v3\nv_add_u32 v25, v25, v24\nv_lshl_add_u32 v24, v3, 4, v24")
        a("v_min_u32 v3, 6, v3\nv_lshrrev_b32 v5, 4, v1\nv_and_b32 v4, 1, v4\nv_lshl_add_u32 v4, v5, 2, v4")
        a("v_mul_u32_u24 v26, 14336, v4\nv_lshl_add_u32 v26, v3, 4, v26")
        a("s_lshl_b32 s%d, s%d, 7\nv_lshlrev_b32 v27, 1, v1\nv_add_u32 v27, s%d, v27" % (sA, sW, sA))
        for j in range(4):
            a("s_waitcnt vmcnt(%d)" % (10 - 2 * j))
            for e in range(8):
                a("v_perm_b32 v%d, v%d, v%d, s%d" % (VT + 4 * e + j, VD + 8 * j + 4 + (e >> 1), VD + 8 * j + (e >> 1), sH if e & 1 else sG))
        a("L_qchk:\ns_waitcnt vmcnt(0)")
        self.untag(QG, 4, 3)
        a("s_cbranch_vccz L_qok")
        self.guard()
        q_loads()
        a("s_branch L_qchk\nL_qok:")
        self.stamp(4)
        self.sum4(QG)
        a("v_cvt_pk_bf16_f32 v4, v%d, v%d\nv_cvt_pk_bf16_f32 v5, v%d, v%d" % (QG, QG + 1, QG + 2, QG + 3))
        a("ds_write_b64 v16, v[4:5] offset:%d\nds_write_b8 v22, v8 offset:%d" % (QI, F_Q))
        a("s_mov_b32 s%d, 0x01010101" % sA)
        a("L_qi:")
        self.guard()
        a("ds_read_b32 v3, v9 offset:%d" % F_Q)
        a("ds_read_b128 %s, v17 offset:%d\nds_read_b128 %s, v17 offset:%d" % (vr(QB), QI, vr(QB + 4), QI + 128))
        a("s_waitcnt lgkmcnt(0)\nv_cmp_ne_u32 vcc, s%d, v3\ns_cbranch_vccnz L_qi" % sA)
        for hh in range(2):
            for oc in range(4):
                self.mf32(SD + 4 * oc, KD + 8 * oc + 4 * hh, QB + 4 * hh, hh == 0)
        for p in range(2):
            for r in range(4):
                a("v_permlane32_swap_b32 v%d, v%d" % (SD + 8 * p + r, SD + 8 * p + 4 + r))
        for r in range(4):
            self.dpp("v_add_f32", 28 + r, SD + 4 + r, SD + r, "row_ror:8", 0x3)
        for r in range(4):
            self.dpp("v_add_f32", 28 + r, SD + 8 + r, SD + 12 + r, "row_ror:8", 0xc)
        for r in range(4):
            self.rnd(28 + r, 28 + r)
        for r in range(4):
            a("v_mul_f32 v%d, 0x%x, v%d" % (28 + r, SCALE, 28 + r))
        for r in range(4):
            self.rnd(28 + r, 28 + r)
        a("v_max3_f32 v32, v28, v29, v30\nv_max_f32 v32, v32, v31")
        self.dpp("v_max_f32", 32, 32, 32, "row_ror:8")
        self.rows_allreduce("v_max_f32", 32, 3)
        a("s_mov_b32 s%d, 0x%x" % (sB, LOG2E))
        for r in range(4):
            a("v_sub_f32 v%d, v%d, v32" % (28 + r, 28 + r))
        for r in range(4):
            a("v_mul_f32 v%d, s%d, v%d" % (28 + r, sB, 28 + r))
        for r in range(4):
            a("v_exp_f32 v%d, v%d" % (28 + r, 28 + r))
        a("v_cvt_pk_bf16_f32 v36, v28, v29\nv_cvt_pk_bf16_f32 v37, v30, v31")
        a("v_add_f32 v33, v28, v29\nv_add_f32 v30, v30, v31")
        self.dpp("v_mov_b32", 38, 36, None, "row_ror:8")
        self.dpp("v_mov_b32", 39, 37, None, "row_ror:8")
        a("v_add_f32 v33, v33, v30")
        for e in range(8):
            self.mf32(PV + 4 * e, VT + 4 * e, 36, True)
        self.dpp("v_add_f32", 33, 33, 33, "row_ror:8")
        self.rows_allreduce("v_add_f32", 33, 3)
        a("s_mov_b32 exec_lo, 0x00ff00ff\ns_mov_b32 exec_hi, 0x00ff00ff")
        for e in range(8):
            a("ds_write_b128 v18, %s offset:%d" % (vr(PV + 4 * e), OL + 64 * e))
        a("ds_write_b64 v19, v[32:33] offset:%d" % MLL)
        a("ds_write_b8 v22, v8 offset:%d" % F_O)
        a("s_mov_b64 exec, -1")
        a("s_and_b32 s%d, s%d, 3\ns_mul_i32 s%d, s%d, %d" % (sC, sX, sC, sC, 8 * 40960))
        a("s_lshr_b32 s%d, s%d, 2\ns_lshl_b32 s%d, s%d, 1\ns_add_u32 s%d, s%d, s%d" % (sD, sX, sE, sS, sD, sD, sE))
        a("s_mul_i32 s%d, s%d, 640\ns_add_u32 s%d, s%d, s%d\ns_add_u32 s%d, s%d, 0x%x" % (sD, sD, sC, sC, sD, sC, sC, OX))
        a("L_ox:")
        self.guard()
        a("ds_read_b32 v3, v9 offset:%d" % F_O)
        a("ds_read_b128 v[28:31], v21 offset:%d\nds_read_b128 v[32:35], v21 offset:%d" % (MLL, MLL + 16))
        for k in range(4):
            a("ds_read_b128 %s, v20 offset:%d" % (vr(QG + 4 * k), OL + 4224 * k))
        a("s_waitcnt lgkmcnt(0)\nv_cmp_ne_u32 vcc, s%d, v3\ns_cbranch_vccnz L_ox" % sA)
        a("v_max3_f32 v36, v28, v30, v32\nv_max_f32 v36, v36, v34")
        for k in range(4):
            a("v_sub_f32 v%d, v%d, v36" % (28 + 2 * k, 28 + 2 * k))
        for k in range(4):
            a("v_mul_f32 v%d, s%d, v%d" % (28 + 2 * k, sB, 28 + 2 * k))
        for k in range(4):
            a("v_exp_f32 v%d, v%d" % (28 + 2 * k, 28 + 2 * k))
        for r in range(4):
            a("v_mul_f32 v%d, v28, v%d" % (QG + r, QG + r))
        a("v_mul_f32 v37, v28, v29")
        for k in range(1, 4):
            for r in range(4):
                a("v_fmac_f32 v%d, v%d, v%d" % (QG + r, 28 + 2 * k, QG + 4 * k + r))
            a("v_fmac_f32 v37, v%d, v%d" % (28 + 2 * k, 29 + 2 * k))
        self.tag4(QG, [QG, QG + 1, QG + 2, QG + 3])
        self.tag4(40, [36, 37, 36, 37])
        a("buffer_store_dwordx4 %s, v23, %s, s%d offen sc1" % (vr(QG), srd("ws"), sC))
        a("s_mov_b32 exec_lo, 0xff\ns_mov_b32 exec_hi, 0xff")
        a("buffer_store_dwordx4 v[40:43], v23, %s, s%d offen offset:512 sc1" % (srd("ws"), sC))
        a("s_mov_b64 exec, -1")
        self.stamp(5)
        a("s_mul_i32 s%d, s%d, 40960\ns_add_u32 s%d, s%d, 0x%x" % (sC, sRB, sC, sC, OX))
        a("s_lshl_b32 s%d, s%d, 7\ns_add_u32 s%d, s%d, s%d" % (sD, sW, sD, sD, sC))
        a("s_mul_i32 s%d, s%d, 448\ns_mul_i32 s%d, s%d, 112\ns_add_u32 s%d, s%d, s%d" % (sF, sRB, sE, sW, sF, sF, sE))
        a("s_add_u32 s%d, s%d, 0x%x\ns_add_u32 s%d, s%d, 28672" % (sF, sF, HX, sG, sF))
        a("L_ml:")
        self.guard()
        self.load(28, 25, "ws", "s%d" % sC, 512, "sc1")
        a("s_waitcnt vmcnt(0)")
        self.untag(28, 1, 3)
        a("s_cbranch_vccnz L_ml")
        self.stamp(6)

        def o_loads():
            a("s_mov_b32 s%d, s%d" % (sE, sD))
            for m in range(8):
                self.load(WQ + 4 * m, 24, "ws", "s%d" % sE, 0, "sc1")
                if m < 7:
                    a("s_add_u32 s%d, s%d, 5120" % (sE, sE))

        def h_loads():
            self.load(QB, 26, "ws", "s%d" % sF, 0, "sc1")
            self.load(QB + 4, 26, "ws", "s%d" % sG, 0, "sc1")

        o_loads()
        h_loads()
        oct_ctl = ("row_half_mirror", "quad_perm:[1,0,3,2]", "quad_perm:[2,3,0,1]")
        for c in oct_ctl:
            self.dpp("v_max_f32", 30, 30, 30, c)
        self.rows_allreduce("v_max_f32", 30, 3)
        a("v_sub_f32 v28, v28, v30\nv_mul_f32 v28, s%d, v28\nv_exp_f32 v28, v28\nv_mul_f32 v29, v28, v29" % sB)
        for c in oct_ctl:
            self.dpp("v_add_f32", 29, 29, 29, c)
        self.rows_allreduce("v_add_f32", 29, 3)
        a("v_rcp_f32 v29, v29\nv_mul_f32 v28, v28, v29")
        for m in range(8):
            self.dpp("v_mov_b32", 32 + m, 28, None, "row_newbcast:%d" % m, 0x3)
        for m in range(8):
            self.dpp("v_mov_b32", 32 + m, 28, None, "row_newbcast:%d" % (8 + m), 0xc)
        a("s_waitcnt vmcnt(2)\nL_ochk:")
        self.untag(WQ, 8, 3)
        a("s_cbranch_vccz L_ook")
        self.guard()
        o_loads()
        a("s_waitcnt vmcnt(0)\ns_branch L_ochk\nL_ook:")
        for r in range(4):
            a("v_mul_f32 v%d, v32, v%d" % (40 + r, WQ + r))
        for m in range(1, 8):
            for r in range(4):
                a("v_fmac_f32 v%d, v%d, v%d" % (40 + r, 32 + m, WQ + 4 * m + r))
        self.rows_scatter_sum([40])
        self.rnd(40, 40)
        a("ds_write_b16_d16_hi v27, v40 offset:%d\nds_write_b8 v22, v8 offset:%d" % (OI, F_OI))
        self.stamp(7)
        a("L_hchk:\ns_waitcnt vmcnt(0)")
        self.untag(QB, 2, 3)
        a("s_cbranch_vccz L_hok")
        self.guard()
        h_loads()
        a("s_branch L_hchk\nL_hok:")
        self.rows_scatter_sum([QB, QB + 4])
        self.rnd(4, QB)
        self.rnd(5, QB + 4)
        self.sigmoid(4, 4)
        a("v_mul_f32 v4, v4, v5")
        self.rnd(4, 4)
        a("ds_write_b16_d16_hi v27, v4 offset:%d\nds_write_b8 v22, v8 offset:%d" % (HI, F_HI))
        self.stamp(8)
        a("s_waitcnt lgkmcnt(0)")
        a("s_branch L_end" if o["stamps"] else "s_endpgm")

    def f_waves(self):
        a, o = self.a, self.o
        W, pol = o["wf"], o["pol"]
        SEL, GU, WO, WD, Y, AO, DA, DB, VG = 56, 64, 128, 160, 188, 192, 224, 228, 232
        a("L_F:")
        for n in ("gw", "wg", "wu", "wo", "wd", "out"):
            self.ptr(n)
        self.desc("gw")
        a("v_and_b32 v3, 31, v1\nv_lshlrev_b32 v3, 4, v3\nv_lshrrev_b32 v4, 5, v1\nv_lshl_add_u32 v5, v4, 11, v3")
        a("s_lshl_b32 s%d, s%d, 9" % (sC, sW))
        a("v_mov_b32 v8, 1\nv_mov_b32 v9, 0\nv_mov_b32 v2, 0xff")
        a("s_waitcnt lgkmcnt(0)")
        a("s_load_dword s%d, s[%d:%d], 0" % (sT, SRD["ws"], SRD["ws"] + 1))
        self.load(GU, 5, "x", "s%d" % sC)
        self.load(GU + 4, 3, "gw", "s%d" % sC)
        self.load(16, 10, "x", "s%d" % sA)
        self.load(20, 10, "x", "s%d" % sA, 16)
        self.stamp(1)
        for n in ("ws", "wg", "wu", "wo", "wd", "out"):
            self.desc(n)
        a("v_lshlrev_b32 v3, 2, v1\nv_and_b32 v3, 31, v3\nds_write_b32 v3, v9")
        a("s_mov_b32 s%d, %d" % (sCNT, o["spin"]))
        a("s_lshl_b32 s%d, s%d, 2\nv_lshlrev_b32 v234, 4, v4\nv_add_u32 v235, s%d, v234" % (sA, sW, sA))
        a("v_mul_u32_u24 v11, 7168, v6\nv_add_u32 v11, v11, v7")
        a("s_cmp_lt_u32 s%d, 28\ns_cselect_b32 s%d, 0, 0x7f000000\nv_add_u32 v11, s%d, v11" % (sS, sH, sH))
        a("s_and_b32 s%d, s%d, 1\ns_mul_i32 s%d, s%d, 28\ns_add_u32 s%d, s%d, s%d" % (sA, sX, sG, sA, sG, sG, sS))
        a("s_mul_i32 s%d, s%d, %d\ns_lshl_b32 s%d, s%d, 7\ns_add_u32 s%d, s%d, s%d" % (sB, sB, 64 * 7168, sC, sG, sB, sB, sC))
        a("s_lshl_b32 s%d, s%d, 8\ns_mul_i32 s%d, s%d, 57344\ns_add_u32 s%d, s%d, s%d\ns_add_u32 s%d, s%d, 0x%x" % (
            sG, sG, sC, sKS, sG, sG, sC, sG, sG, HX))
        a("s_lshl_b32 s%d, s%d, 5\ns_add_u32 s%d, s%d, s%d" % (sA, sA, sA, sA, sS))
        a("s_lshr_b32 s%d, s%d, 2\ns_lshl_b32 s%d, s%d, 12\ns_and_b32 s%d, s%d, 3\ns_lshl_b32 s%d, s%d, 8" % (sF, sA, sF, sF, sA, sA, sA, sA))
        a("s_add_u32 s%d, s%d, s%d\ns_lshl_b32 s%d, s%d, 10\ns_add_u32 s%d, s%d, s%d\ns_add_u32 s%d, s%d, 0x%x" % (
            sF, sF, sA, sA, sKS, sF, sF, sA, sF, sF, QX))
        a("s_lshl_b32 s%d, s%d, 2\ns_lshr_b32 s%d, s%d, 3\ns_add_u32 s%d, s%d, s%d" % (sRB, sX, sA, sS, sRB, sRB, sA))
        a("s_and_b32 s%d, s%d, 7\ns_lshl_b32 s%d, s%d, 8" % (sC, sS, sC, sC))
        a("s_lshl_b32 s%d, s%d, 18\ns_lshl_b32 s%d, s%d, 12\ns_add_u32 s%d, s%d, s%d\ns_add_u32 s%d, s%d, s%d" % (
            sD, sRB, sA, sW, sD, sD, sA, sD, sD, sC))
        a("s_mul_i32 s%d, s%d, %d\ns_mul_i32 s%d, s%d, %d\ns_add_u32 s%d, s%d, s%d\ns_add_u32 s%d, s%d, s%d" % (
            sE, sRB, 112 * 2048, sA, sW, 28 * 2048, sE, sE, sA, sE, sE, sC))
        a("v_lshrrev_b32 v3, 4, v1\nv_and_b32 v4, 15, v1\nv_lshlrev_b32 v5, 4, v4")
        a("v_lshl_add_u32 v12, v3, 14, v5\nv_lshl_add_u32 v13, v3, 11, v5")
        a("s_lshl_b32 s%d, s%d, 10\nv_lshlrev_b32 v236, 4, v1\nv_add_u32 v236, s%d, v236" % (sA, sW, sA))
        a("v_mul_u32_u24 v240, 14336, v3\nv_add3_u32 v240, v240, v5, s%d" % sH)
        a("v_lshl_add_u32 v239, v3, 16, v5")
        a("v_and_b32 v6, 1, v1\nv_and_b32 v7, 1, v3\nv_lshl_add_u32 v7, v7, 1, v6\nv_lshlrev_b32 v237, 8, v7")
        a("v_lshrrev_b32 v7, 5, v1\nv_lshl_add_u32 v237, v7, 7, v237\nv_lshrrev_b32 v4, 1, v4\nv_lshl_add_u32 v237, v4, 4, v237")
        a("v_lshl_add_u32 v7, v7, 1, v6\nv_lshlrev_b32 v238, 8, v7\nv_bfe_u32 v4, v1, 1, 4\nv_lshl_add_u32 v238, v4, 4, v238")
        a("v_lshrrev_b32 v4, 3, v1\nv_and_b32 v5, 7, v1\nv_lshlrev_b32 v5, 4, v5\nv_lshl_add_u32 v241, v4, 12, v5")
        a("s_lshl_b32 s%d, s%d, 7\nv_lshlrev_b32 v243, 4, v4\nv_add_u32 v243, s%d, v243" % (sA, sW, sA))
        a("v_lshrrev_b32 v4, 1, v1\nv_lshlrev_b32 v4, 7, v4\nv_lshl_add_u32 v242, v6, 4, v4")
        a("v_lshlrev_b32 v245, 1, v3\nv_lshl_add_u32 v245, v6, 3, v245\nv_mov_b32 v244, s%d" % sW)
        self.sel_x()
        a("v_lshlrev_b32 v4, 4, v1\nv_mov_b32 v3, 0x0c0c0100\nv_alignbit_b32 v5, v3, v3, v4")
        a("v_mov_b32 v3, 0x0c0c0302\nv_alignbit_b32 v6, v3, v3, v4\nv_bfe_u32 v7, v1, 1, 2\nv_mov_b32 v4, 0x0c0c0c0c")
        for j in range(4):
            a("v_cmp_eq_u32 vcc, %d, v7\nv_cndmask_b32 v%d, v4, v5, vcc\nv_cndmask_b32 v%d, v4, v6, vcc" % (j, SEL + j, SEL + 4 + j))
        a("s_waitcnt vmcnt(2)")
        t = GU + 8
        for j in range(4):
            a("v_lshlrev_b32 v%d, 16, v%d\nv_lshlrev_b32 v%d, 16, v%d" % (t + j, GU + j, t + 4 + j, GU + 4 + j))
            a("v_and_b32 v%d, 0xffff0000, v%d\nv_and_b32 v%d, 0xffff0000, v%d" % (GU + j, GU + j, GU + 4 + j, GU + 4 + j))
        for j in range(4):
            a("v_mul_f32 v%d, v%d, v%d\nv_mul_f32 v%d, v%d, v%d" % (t + j, t + j, t + 4 + j, GU + j, GU + j, GU + 4 + j))
        for j in range(4):
            self.rnd(t + j, t + j); self.rnd(GU + j, GU + j)
        for j in range(4):
            a("v_add_f32 v%d, v%d, v%d" % (t + j, t + j, GU + j))
        a("v_add_f32 v%d, v%d, v%d\nv_add_f32 v%d, v%d, v%d\nv_add_f32 v4, v%d, v%d" % (t, t, t + 1, t + 2, t + 2, t + 3, t, t + 2))
        for n in (8, 4, 2, 1):
            self.dpp("v_add_f32", 4, 4, 4, "row_ror:%d" % n)
        self.rows_allreduce("v_add_f32", 4, 3, (16,))
        a("ds_write_b32 v235, v4 offset:%d" % GP)
        a("s_waitcnt vmcnt(0)")
        self.x_operands()
        a("s_waitcnt lgkmcnt(0)")
        self.tags()
        a("s_barrier")
        a("s_cmp_lg_u32 s%d, 0\ns_cbranch_scc1 L_noq" % sW)
        for k in range(4):
            a("ds_read_b128 %s, v237 offset:%d" % (vr(GU + 4 * k), RQ + 1024 * k))
        a("s_waitcnt lgkmcnt(0)")
        self.sum4(GU)
        self.tag4(248, [GU, GU + 1, GU + 2, GU + 3])
        a("s_mov_b32 exec_hi, 0")
        a("buffer_store_dwordx4 v[248:251], v239, %s, s%d offen sc1" % (srd("ws"), sF))
        a("s_mov_b32 exec_hi, -1")
        a("L_noq:")
        self.stamp(2)
        a("ds_read_b128 v[4:7], v234 offset:%d\ns_waitcnt lgkmcnt(0)" % GP)
        a("v_add_f32 v4, v4, v5\nv_add_f32 v6, v6, v7\nv_add_f32 v4, v4, v6")
        self.rnd(4, 4)
        self.sigmoid(VG, 4)
        a("v_sub_f32 v%d, 1.0, v%d" % (VG + 1, VG))
        self.rnd(VG + 1, VG + 1)
        a("s_and_b32 s%d, s%d, 7\ns_lshl_b32 s%d, s%d, 15\ns_lshl_b32 s%d, s%d, 7\ns_add_u32 s%d, s%d, s%d\ns_add_u32 s%d, s%d, 0x%x" % (
            sA, sS, sA, sA, sC, sRB, sA, sA, sC, sRB, sA, FX))
        a("s_lshl_b32 s%d, s%d, 3\ns_lshr_b32 s%d, s%d, 2\ns_add_u32 s%d, s%d, s%d\ns_lshl_b32 s%d, s%d, 12" % (sH, sX, sA, sS, sH, sH, sA, sH, sH))
        a("s_and_b32 s%d, s%d, 3\ns_lshl_b32 s%d, s%d, 5\ns_add_u32 s%d, s%d, s%d\ns_add_u32 s%d, s%d, 0x%x" % (sA, sS, sA, sA, sH, sH, sA, sH, sH, FX))
        a("s_lshr_b32 s%d, s%d, 4\ns_lshl_b32 s%d, s%d, 11\ns_lshl_b32 s%d, s%d, 8\ns_add_u32 s%d, s%d, s%d" % (sKS, sS, sKS, sKS, sA, sX, sKS, sKS, sA))
        a("s_and_b32 s%d, s%d, 15\ns_lshl_b32 s%d, s%d, 4\ns_add_u32 s%d, s%d, s%d" % (sA, sS, sA, sA, sKS, sKS, sA))
        a("s_barrier")
        self.stamp(3)

        def issue(i):
            if i < 16:
                self.load(GU + 4 * i, 11, "wu" if i & 1 else "wg", "s%d" % sB, 0, pol)
                if i & 1 and i < 15:
                    a("s_add_u32 s%d, s%d, 14336" % (sB, sB))
            elif i < 24:
                k = i - 16
                m = (k >> 1) + 4 * (k & 1)
                self.load(WO + 4 * m, 12, "wo", "s%d" % sD, 2048 * (k & 1), pol)
                if k & 1 and k < 7:
                    a("s_add_u32 s%d, s%d, 0x10000" % (sD, sD))
            else:
                m = i - 24
                self.load(WD + 4 * m, 13, "wd", "s%d" % sE, 0, pol)
                if m < 6:
                    a("s_add_u32 s%d, s%d, 0x2000" % (sE, sE))

        for i in range(W):
            issue(i)
        for i in range(max(31 - W, 16)):
            if i + W < 31:
                a("s_waitcnt vmcnt(%d)" % (W - 1))
                issue(i + W)
            else:
                a("s_waitcnt vmcnt(%d)" % (30 - i))
            if i < 16:
                d = 40 + 8 * (i & 1)
                self.mf16(d, 24 + 2 * (i >> 1), GU + 4 * i, i < 2)
                self.mf16(d + 4, 24 + 2 * (i >> 1), GU + 4 * i + 2, i < 2)
            if i == 15:
                for r in range(4):
                    a("v_permlane16_swap_b32 v%d, v%d" % (40 + r, 44 + r))
                for r in range(4):
                    a("v_permlane16_swap_b32 v%d, v%d" % (48 + r, 52 + r))
                for r in range(4):
                    self.dpp("v_add_f32", 40 + r, 44 + r, 40 + r, "row_ror:8", 0x3)
                for r in range(4):
                    self.dpp("v_add_f32", 40 + r, 48 + r, 52 + r, "row_ror:8", 0xc)
                a("ds_write_b128 v236, v[40:43] offset:%d" % RH)
                self.last_arriver(C_H, "L_noh")
                for k in range(4):
                    a("ds_read_b128 %s, v237 offset:%d" % (vr(GU + 4 * k), RH + 1024 * k))
                a("s_waitcnt lgkmcnt(0)")
                self.sum4(GU)
                self.tag4(GU, [GU, GU + 1, GU + 2, GU + 3])
                a("buffer_store_dwordx4 %s, v240, %s, s%d offen sc1" % (vr(GU), srd("ws"), sG))
                a("L_noh:")
                self.stamp(4)
        self.stamp(5)

        def image(lbl, flag, img):
            a("%s:" % lbl)
            self.guard()
            a("ds_read_u8 v3, v244 offset:%d\nds_read_b128 %s, v243 offset:%d" % (flag, vr(Y), img))
            a("s_waitcnt lgkmcnt(0)\nv_cmp_ne_u32 vcc, 1, v3\ns_cbranch_vccnz %s" % lbl)

        def operands(m):
            for j in range(4):
                a("v_perm_b32 v%d, v%d, v%d, v%d" % (AO + 4 * m + j, Y + (m >> 1), Y + (m >> 1), SEL + 4 * (m & 1) + j))

        image("L_oi", F_OI, OI)
        self.stamp(6)
        operands(0)
        a("s_waitcnt vmcnt(7)")
        for m in range(8):
            if m < 7:
                operands(m + 1)
            self.mf32(DA, AO + 4 * m, WO + 4 * m, m == 0)
        image("L_hi", F_HI, HI)
        self.stamp(7)
        operands(0)
        for m in range(7):
            if m < 6:
                operands(m + 1)
            else:
                for r in range(4):
                    a("v_mul_f32 v%d, v%d, v%d" % (DA + r, VG, DA + r))
            a("s_waitcnt vmcnt(%d)" % (6 - m))
            self.mf32(DB, AO + 4 * m, WD + 4 * m, m == 0)
        for r in range(4):
            a("v_fmac_f32 v%d, v%d, v%d" % (DA + r, VG + 1, DB + r))
        a("ds_write_b128 v236, %s offset:%d" % (vr(DA), RF))
        self.stamp(8)
        self.last_arriver(C_F, "L_end")
        for k in range(4):
            a("ds_read_b128 %s, v238 offset:%d" % (vr(GU + 16 + 4 * k), RF + 1024 * k))
        a("s_waitcnt lgkmcnt(0)")
        self.sum4(GU + 16)
        self.tag4(GU + 16, [GU + 16 + r for r in range(4)])
        a("buffer_store_dwordx4 %s, v241, %s, s%d offen sc1" % (vr(GU + 16), srd("ws"), sRB))
        self.stamp(9)
        a("L_fin:")
        self.guard()
        self.load(40, 242, "ws", "s%d" % sH, 0, "sc1")
        a("s_waitcnt vmcnt(0)")
        self.untag(40, 1, 3)
        a("s_cbranch_vccnz L_fin")
        self.stamp(10)
        self.rows_scatter_sum([40])
        for n in (8, 4, 2):
            self.dpp("v_add_f32", 40, 40, 40, "row_ror:%d" % n)
        self.rnd(40, 40)
        a("s_mov_b32 exec_lo, 0x00030003\ns_mov_b32 exec_hi, 0x00030003")
        a("buffer_store_short_d16_hi v40, v245, %s, s%d offen %s" % (srd("out"), sKS, o["outpol"]))
        a("s_cmp_lg_u32 s2, 0\ns_cbranch_scc1 L_end")
        a("s_mov_b64 exec, 1\nv_mov_b32 v3, s%d\nbuffer_store_dword v3, v9, %s, 0 offen sc1" % (sT, srd("ws")))

    def epilogue(self):
        a = self.a
        a("L_end:")
        if self.o["stamps"]:
            a("s_mov_b64 exec, 1\ns_waitcnt vmcnt(0)")
            self.stamp(NST - 1)
            a("s_waitcnt lgkmcnt(0)")
            a("s_lshl_b32 s%d, s3, 8\ns_add_u32 s%d, s%d, s2\ns_mul_i32 s%d, s%d, %d\ns_add_u32 s%d, s%d, 0x%x" % (
                sA, sA, sA, sA, sA, NST * 8, sA, sA, STAMP_OFF))
            a("v_mov_b32 v1, s%d" % sA)
            for i in range(NST):
                a("v_mov_b32 v4, s%d\nv_mov_b32 v5, s%d" % (sST + 2 * i, sST + 2 * i + 1))
                a("buffer_store_dwordx2 v[4:5], v1, %s, 0 offen offset:%d\ns_nop 1" % (srd("ws"), 8 * i))
        a("L_exit:\ns_endpgm")

    def build(self):
        if self.o["stamps"]:
            for i in range(1, NST):
                self.a("s_mov_b64 s[%d:%d], 0" % (sST + 2 * i, sST + 2 * i + 1))
        self.prologue()
        self.a_waves()
        self.f_waves()
        self.epilogue()
        lab = NAME + "_kernel"
        body = "\n".join(hazard.pad(self.a.lines)) + "\n"
        return (header(["; @launch grid=(256,1,1) block=(512,1,1) lds=%d" % LDS_BYTES]) + kernel_open(lab) + body
                + RODATA + descriptor(lab, 256))


def main():
    out = sys.argv[1]
    kw = {}
    for s in sys.argv[2:]:
        k, v = s.split("=")
        try:
            v = int(v, 0)
        except ValueError:
            pass
        kw[k] = v
    open(out, "w").write(Gen(**kw).build())


if __name__ == "__main__":
    main()
```

```python
import sys
from asmlib import *
import hazard

DEFAULTS = dict(wa=6, wf=6, pol="nt", stamps=False, spin=100000, outpol="sc1", go_wait=None, hold=0, amp=None, ampwave=0, ampwg=None)

QX, HX, FX, OX = 0x10000, 0x40000, 0x80000, 0x100000
STAMP_OFF = 128 << 20
F_Q, F_O, C_H, F_OI, F_HI, C_F = 0, 4, 8, 12, 16, 20
GP, MLL, OI, HI = 64, 256, 512, 1024
RQ, RH, RF, QI, OL = 2048, 6144, 10240, 14336, 16640
LDS_BYTES = OL + 4 * 4224
SRD = dict(x=4, wq=8, k=12, v=16, wg=20, wu=24, wo=28, wd=32, gw=36, ws=40, out=44)
sX, sS, sW, sT, sT0, sCNT = 48, 49, 50, 51, 52, 56
sA, sB, sC, sD, sE, sF, sG, sH, sRB, sKS = 57, 58, 59, 60, 61, 62, 63, 64, 65, 66
sST = 70
NST = 14
LOG2E = 0x3fb8aa3b
SCALE = 0x3db504f3
KVBASE = (32768 - 4096) * 256


def srd(n):
    return "s[%d:%d]" % (SRD[n], SRD[n] + 3)


def vr(b, n=4):
    return "v[%d:%d]" % (b, b + n - 1)


class Gen:
    def __init__(self, **kw):
        self.o = dict(DEFAULTS)
        self.o.update(kw)
        self.a = Asm()

    def stamp(self, i):
        if self.o["stamps"] or (self.o["hold"] and i in (0, self.o["amp"])):
            self.a("s_memrealtime s[%d:%d]" % (sST + 2 * i, sST + 2 * i + 1))

    def ptr(self, n):
        self.a("s_load_dwordx2 s[%d:%d], s[0:1], %d" % (SRD[n], SRD[n] + 1, KARG[n]))

    def desc(self, n):
        self.a("s_mov_b32 s%d, 0x%x\ns_mov_b32 s%d, 0x20000" % (SRD[n] + 2, SIZE[n], SRD[n] + 3))

    def guard(self):
        self.a("s_sub_u32 s%d, s%d, 1\ns_cbranch_scc1 L_end" % (sCNT, sCNT))

    def load(self, dst, voff, buf, soff, imm=0, pol=""):
        self.a("buffer_load_dwordx4 %s, v%d, %s, %s offen%s%s" % (
            vr(dst), voff, srd(buf), soff, " offset:%d" % imm if imm else "", " " + pol if pol else ""))

    def tags(self):
        a = self.a
        a("s_add_u32 s%d, s%d, 0x01010101" % (sT, sT))
        a("s_and_b32 s%d, s%d, 0xff" % (sT0, sT))
        a("s_bfe_u32 s%d, s%d, 0x80008" % (sT0 + 1, sT))
        a("s_bfe_u32 s%d, s%d, 0x80010" % (sT0 + 2, sT))
        a("s_lshr_b32 s%d, s%d, 24" % (sT0 + 3, sT))

    def tag4(self, dst, src):
        for j in range(4):
            self.a("v_bfi_b32 v%d, v2, s%d, v%d" % (dst + j, sT0 + j, src[j]))

    def untag(self, base, n, acc):
        a = self.a
        regs = list(range(base, base + 4 * n))
        for r in regs:
            a("v_xor_b32 v%d, s%d, v%d" % (r, sT0 + (r - base) % 4, r))
        a("v_or_b32 v%d, v%d, v%d" % (acc, regs[0], regs[1]))
        for i in range(2, len(regs), 2):
            a("v_or3_b32 v%d, v%d, v%d, v%d" % (acc, acc, regs[i], regs[i + 1]))
        a("v_and_b32 v%d, v2, v%d" % (acc, acc))
        a("v_cmp_ne_u32 vcc, 0, v%d" % acc)

    def dpp(self, op, d, s0, s1, ctl, bank=0xf):
        self.a("%s_dpp v%d, v%d, %s%s row_mask:0xf bank_mask:0x%x" % (
            op, d, s0, "v%d " % s1 if s1 is not None else "", ctl, bank) if s1 is not None else
            "%s_dpp v%d, v%d %s row_mask:0xf bank_mask:0x%x" % (op, d, s0, ctl, bank))

    def rows_allreduce(self, op, x, t, which=(16, 32)):
        for n in which:
            self.a("v_mov_b32 v%d, v%d\nv_permlane%d_swap_b32 v%d, v%d\n%s v%d, v%d, v%d" % (t, x, n, x, t, op, x, x, t))

    def rows_scatter_sum(self, sets):
        a = self.a
        for b in sets:
            a("v_permlane32_swap_b32 v%d, v%d\nv_permlane32_swap_b32 v%d, v%d" % (b, b + 2, b + 1, b + 3))
        for b in sets:
            a("v_add_f32 v%d, v%d, v%d\nv_add_f32 v%d, v%d, v%d" % (b, b, b + 2, b + 1, b + 1, b + 3))
        for b in sets:
            a("v_permlane16_swap_b32 v%d, v%d" % (b, b + 1))
        for b in sets:
            a("v_add_f32 v%d, v%d, v%d" % (b, b, b + 1))

    def rnd(self, d, s):
        self.a("v_cvt_pk_bf16_f32 v%d, 0, v%d" % (d, s))

    def sigmoid(self, d, z):
        a = self.a
        a("v_mul_f32 v%d, 0x%x, v%d" % (d, LOG2E ^ 0x80000000, z))
        a("v_exp_f32 v%d, v%d\nv_add_f32 v%d, 1.0, v%d\nv_rcp_f32 v%d, v%d" % (d, d, d, d, d, d))
        self.rnd(d, d)

    def sel_x(self):
        a = self.a
        a("v_bfe_u32 v3, v1, 2, 1\nv_mul_u32_u24 v3, 0x202, v3\nv_add_u32 v3, 0x0c0c0100, v3")
        a("v_lshlrev_b32 v4, 4, v1\nv_alignbit_b32 v3, v3, v3, v4")
        a("v_and_b32 v4, 2, v1\nv_cmp_eq_u32 vcc, 0, v4\nv_mov_b32 v4, 0x0c0c0c0c")
        a("v_cndmask_b32 v14, v4, v3, vcc\nv_cndmask_b32 v15, v3, v4, vcc")

    def x_operands(self):
        for m in range(8):
            self.a("v_perm_b32 v%d, v%d, v%d, v14\nv_perm_b32 v%d, v%d, v%d, v15" % (
                24 + 2 * m, 16 + m, 16 + m, 25 + 2 * m, 16 + m, 16 + m))

    def mf16(self, d, av, bv, first):
        self.a("v_mfma_f32_16x16x16_bf16 %s, %s, %s, %s" % (vr(d), vr(av, 2), vr(bv, 2), "0" if first else vr(d)))

    def mf32(self, d, av, bv, first):
        self.a("v_mfma_f32_16x16x32_bf16 %s, %s, %s, %s" % (vr(d), vr(av), vr(bv), "0" if first else vr(d)))

    def sum4(self, b):
        for r in range(4):
            self.a("v_add_f32 v%d, v%d, v%d\nv_add_f32 v%d, v%d, v%d" % (b + r, b + r, b + 4 + r, b + 8 + r, b + 8 + r, b + 12 + r))
        for r in range(4):
            self.a("v_add_f32 v%d, v%d, v%d" % (b + r, b + r, b + 8 + r))

    def last_arriver(self, cnt, skip):
        a = self.a
        a("s_mov_b64 exec, 1\nds_add_rtn_u32 v3, v9, v8 offset:%d\ns_mov_b64 exec, -1" % cnt)
        a("s_waitcnt lgkmcnt(0)\nv_readfirstlane_b32 s%d, v3\ns_cmp_lg_u32 s%d, 3\ns_cbranch_scc1 %s" % (sA, sA, skip))

    def prologue(self):
        a = self.a
        self.stamp(0)
        a("s_cmp_ge_u32 s2, 256\ns_cbranch_scc1 L_exit")
        for n in ("x", "wq", "ws"):
            self.ptr(n)
        a("v_lshrrev_b32 v3, 6, v0\nv_and_b32 v1, 63, v0")
        a("s_and_b32 s%d, s2, 7\ns_lshr_b32 s%d, s2, 3" % (sX, sS))
        a("v_readfirstlane_b32 s3, v3")
        a("s_lshr_b32 s%d, s%d, 1" % (sKS, sX))
        self.desc("x")
        a("v_bfe_u32 v5, v1, 3, 1\nv_and_b32 v6, 0x30, v1\nv_and_b32 v7, 7, v1")
        a("s_and_b32 s%d, s3, 3" % sW)
        a("v_lshlrev_b32 v10, 11, v5\nv_lshl_add_u32 v10, v6, 1, v10")
        a("v_or_b32 v6, v6, v5\nv_lshlrev_b32 v7, 4, v7")
        a("s_lshl_b32 s%d, s%d, 2\ns_add_u32 s%d, s%d, s%d" % (sB, sKS, sB, sB, sW))
        a("s_lshl_b32 s%d, s%d, 7" % (sA, sB))
        a("s_cmp_ge_u32 s3, 4\ns_cbranch_scc1 L_F")

    def a_waves(self):
        a, o = self.a, self.o
        W, pol = o["wa"], o["pol"]
        WQ, KD, VD, VT, PV, QG, QB, SD = 48, 80, 112, 144, 176, 208, 224, 232
        self.ptr("k"); self.ptr("v")
        self.desc("wq")
        a("v_lshl_add_u32 v11, v6, 13, v7")
        a("s_and_b32 s%d, s%d, 1\ns_lshl_b32 s%d, s%d, 5\ns_add_u32 s%d, s%d, s%d" % (sC, sX, sC, sC, sC, sC, sS))
        a("s_lshl_b32 s%d, s%d, 7\ns_lshl_b32 s%d, s%d, 19\ns_add_u32 s%d, s%d, s%d" % (sC, sC, sB, sB, sB, sB, sC))
        a("s_waitcnt lgkmcnt(0)")
        self.load(16, 10, "x", "s%d" % sA)
        self.load(20, 10, "x", "s%d" % sA, 16)

        def issue(i):
            if i < 8:
                self.load(WQ + 4 * i, 11, "wq", "s%d" % sB, 0, pol)
                if i < 7:
                    a("s_add_u32 s%d, s%d, 0x4000" % (sB, sB))
            elif i < 16:
                oc, hh = (i - 8) >> 1, (i - 8) & 1
                self.load(KD + 4 * (i - 8), 12, "k", "s%d" % (sD if oc < 2 else sE), (oc & 1) * 512 + hh * 128, pol)
            else:
                m = i - 16
                self.load(VD + 4 * m, 13, "v", "s%d" % (sD if m < 4 else sE), (m & 3) * 1024, pol)

        for i in range(min(W, 8)):
            issue(i)
        self.stamp(1)
        a("s_load_dword s%d, s[%d:%d], 0" % (sT, SRD["ws"], SRD["ws"] + 1))
        self.desc("k"); self.desc("v"); self.desc("ws")
        a("s_lshl_b32 s%d, s%d, 23\ns_lshl_b32 s%d, s%d, 15\ns_add_u32 s%d, s%d, s%d" % (sD, sX, sE, sS, sD, sD, sE))
        a("s_lshl_b32 s%d, s%d, 13\ns_add_u32 s%d, s%d, s%d\ns_add_u32 s%d, s%d, 0x%x" % (sE, sW, sD, sD, sE, sD, sD, KVBASE))
        a("s_add_u32 s%d, s%d, 0x1000" % (sE, sD))
        a("v_and_b32 v3, 3, v1\nv_bfe_u32 v4, v1, 2, 1\nv_lshl_add_u32 v3, v3, 2, v4")
        a("v_lshrrev_b32 v4, 3, v1\nv_lshlrev_b32 v4, 4, v4\nv_lshl_add_u32 v12, v3, 8, v4")
        a("v_lshlrev_b32 v13, 4, v1")
        for i in range(min(W, 8), W):
            issue(i)
        a("v_mov_b32 v2, 0xff\nv_mov_b32 v8, 1\nv_mov_b32 v9, 0\ns_mov_b32 s%d, %d" % (sCNT, o["spin"]))
        self.sel_x()
        a("s_lshl_b32 s%d, s%d, 2\ns_lshr_b32 s%d, s%d, 3\ns_add_u32 s%d, s%d, s%d" % (sRB, sX, sA, sS, sRB, sRB, sA))
        a("s_lshl_b32 s%d, s%d, 10\nv_add_u32 v5, s%d, v13" % (sA, sW, sA))
        a("s_waitcnt vmcnt(%d)" % W)
        self.x_operands()
        for i in range(24 - W):
            a("s_waitcnt vmcnt(%d)" % (W - 1))
            issue(i + W)
            if i < 8:
                self.mf16(40, 24 + 2 * i, WQ + 4 * i, i == 0)
                self.mf16(44, 24 + 2 * i, WQ + 4 * i + 2, i == 0)
            if i == 7:
                for r in range(4):
                    a("v_permlane16_swap_b32 v%d, v%d" % (40 + r, 44 + r))
                for r in range(4):
                    self.dpp("v_add_f32", 40 + r, 44 + r, 40 + r, "row_ror:8")
                a("ds_write_b128 v5, v[40:43] offset:%d" % RQ)
                a("s_waitcnt lgkmcnt(0)\ns_barrier")
                self.stamp(2)
                self.tags()
                a("s_lshl_b32 s%d, s%d, 14\ns_lshl_b32 s%d, s%d, 12\ns_add_u32 s%d, s%d, s%d\ns_add_u32 s%d, s%d, 0x%x" % (
                    sF, sX, sA, sW, sF, sF, sA, sF, sF, QX))
                a("s_mov_b32 s%d, 0x05040100\ns_mov_b32 s%d, 0x07060302" % (sG, sH))

        def q_loads():
            for ks in range(4):
                self.load(QG + 4 * ks, 13, "ws", "s%d" % sF, ks * 1024, "sc1")

        q_loads()
        if o["go_wait"] is not None:
            a("s_waitcnt vmcnt(%d)" % o["go_wait"])
        a("s_barrier")
        self.stamp(3)
        a("v_lshrrev_b32 v3, 5, v1\ns_lshl_b32 s%d, s%d, 1\nv_add_u32 v3, s%d, v3" % (sA, sW, sA))
        a("v_and_b32 v4, 31, v1\nv_mul_u32_u24 v16, 272, v3\nv_lshl_add_u32 v16, v4, 3, v16")
        a("v_mul_u32_u24 v20, 528, v3\nv_lshl_add_u32 v20, v4, 4, v20\nv_lshlrev_b32 v21, 5, v3")
        a("v_mul_u32_u24 v23, 40960, v3\nv_lshl_add_u32 v23, v4, 4, v23")
        a("v_and_b32 v3, 7, v1\nv_lshrrev_b32 v4, 3, v1\nv_mul_u32_u24 v17, 272, v3\nv_lshl_add_u32 v17, v4, 4, v17")
        a("v_mul_u32_u24 v18, 528, v3\nv_and_b32 v5, 0x30, v1\ns_mul_i32 s%d, s%d, 4224\nv_add3_u32 v18, v18, v5, s%d" % (sA, sW, sA))
        a("s_lshl_b32 s%d, s%d, 3\nv_lshlrev_b32 v19, 5, v3\nv_add_u32 v19, s%d, v19" % (sA, sW, sA))
        a("v_mov_b32 v22, s%d" % sW)
        a("v_mul_u32_u24 v24, 640, v4\nv_mul_u32_u24 v25, 5120, v3\nv_add_u32 v25, v25, v24\nv_lshl_add_u32 v24, v3, 4, v24")
        a("v_min_u32 v3, 6, v3\nv_lshrrev_b32 v5, 4, v1\nv_and_b32 v4, 1, v4\nv_lshl_add_u32 v4, v5, 2, v4")
        a("v_mul_u32_u24 v26, 14336, v4\nv_lshl_add_u32 v26, v3, 4, v26")
        a("s_lshl_b32 s%d, s%d, 7\nv_lshlrev_b32 v27, 1, v1\nv_add_u32 v27, s%d, v27" % (sA, sW, sA))
        for j in range(4):
            a("s_waitcnt vmcnt(%d)" % (10 - 2 * j))
            for e in range(8):
                a("v_perm_b32 v%d, v%d, v%d, s%d" % (VT + 4 * e + j, VD + 8 * j + 4 + (e >> 1), VD + 8 * j + (e >> 1), sH if e & 1 else sG))
        a("L_qchk:\ns_waitcnt vmcnt(0)")
        self.untag(QG, 4, 3)
        a("s_cbranch_vccz L_qok")
        self.guard()
        q_loads()
        a("s_branch L_qchk\nL_qok:")
        self.stamp(4)
        self.sum4(QG)
        a("v_cvt_pk_bf16_f32 v4, v%d, v%d\nv_cvt_pk_bf16_f32 v5, v%d, v%d" % (QG, QG + 1, QG + 2, QG + 3))
        a("ds_write_b64 v16, v[4:5] offset:%d\nds_write_b8 v22, v8 offset:%d" % (QI, F_Q))
        a("s_mov_b32 s%d, 0x01010101" % sA)
        a("L_qi:")
        self.guard()
        a("ds_read_b32 v3, v9 offset:%d" % F_Q)
        a("ds_read_b128 %s, v17 offset:%d\nds_read_b128 %s, v17 offset:%d" % (vr(QB), QI, vr(QB + 4), QI + 128))
        a("s_waitcnt lgkmcnt(0)\nv_cmp_ne_u32 vcc, s%d, v3\ns_cbranch_vccnz L_qi" % sA)
        for hh in range(2):
            for oc in range(4):
                self.mf32(SD + 4 * oc, KD + 8 * oc + 4 * hh, QB + 4 * hh, hh == 0)
        for p in range(2):
            for r in range(4):
                a("v_permlane32_swap_b32 v%d, v%d" % (SD + 8 * p + r, SD + 8 * p + 4 + r))
        for r in range(4):
            self.dpp("v_add_f32", 28 + r, SD + 4 + r, SD + r, "row_ror:8", 0x3)
        for r in range(4):
            self.dpp("v_add_f32", 28 + r, SD + 8 + r, SD + 12 + r, "row_ror:8", 0xc)
        for r in range(4):
            self.rnd(28 + r, 28 + r)
        for r in range(4):
            a("v_mul_f32 v%d, 0x%x, v%d" % (28 + r, SCALE, 28 + r))
        for r in range(4):
            self.rnd(28 + r, 28 + r)
        a("v_max3_f32 v32, v28, v29, v30\nv_max_f32 v32, v32, v31")
        self.dpp("v_max_f32", 32, 32, 32, "row_ror:8")
        self.rows_allreduce("v_max_f32", 32, 3)
        a("s_mov_b32 s%d, 0x%x" % (sB, LOG2E))
        for r in range(4):
            a("v_sub_f32 v%d, v%d, v32" % (28 + r, 28 + r))
        for r in range(4):
            a("v_mul_f32 v%d, s%d, v%d" % (28 + r, sB, 28 + r))
        for r in range(4):
            a("v_exp_f32 v%d, v%d" % (28 + r, 28 + r))
        a("v_cvt_pk_bf16_f32 v36, v28, v29\nv_cvt_pk_bf16_f32 v37, v30, v31")
        a("v_add_f32 v33, v28, v29\nv_add_f32 v30, v30, v31")
        self.dpp("v_mov_b32", 38, 36, None, "row_ror:8")
        self.dpp("v_mov_b32", 39, 37, None, "row_ror:8")
        a("v_add_f32 v33, v33, v30")
        for e in range(8):
            self.mf32(PV + 4 * e, VT + 4 * e, 36, True)
        self.dpp("v_add_f32", 33, 33, 33, "row_ror:8")
        self.rows_allreduce("v_add_f32", 33, 3)
        a("s_mov_b32 exec_lo, 0x00ff00ff\ns_mov_b32 exec_hi, 0x00ff00ff")
        for e in range(8):
            a("ds_write_b128 v18, %s offset:%d" % (vr(PV + 4 * e), OL + 64 * e))
        a("ds_write_b64 v19, v[32:33] offset:%d" % MLL)
        a("ds_write_b8 v22, v8 offset:%d" % F_O)
        a("s_mov_b64 exec, -1")
        a("s_and_b32 s%d, s%d, 3\ns_mul_i32 s%d, s%d, %d" % (sC, sX, sC, sC, 8 * 40960))
        a("s_lshr_b32 s%d, s%d, 2\ns_lshl_b32 s%d, s%d, 1\ns_add_u32 s%d, s%d, s%d" % (sD, sX, sE, sS, sD, sD, sE))
        a("s_mul_i32 s%d, s%d, 640\ns_add_u32 s%d, s%d, s%d\ns_add_u32 s%d, s%d, 0x%x" % (sD, sD, sC, sC, sD, sC, sC, OX))
        a("L_ox:")
        self.guard()
        a("ds_read_b32 v3, v9 offset:%d" % F_O)
        a("ds_read_b128 v[28:31], v21 offset:%d\nds_read_b128 v[32:35], v21 offset:%d" % (MLL, MLL + 16))
        for k in range(4):
            a("ds_read_b128 %s, v20 offset:%d" % (vr(QG + 4 * k), OL + 4224 * k))
        a("s_waitcnt lgkmcnt(0)\nv_cmp_ne_u32 vcc, s%d, v3\ns_cbranch_vccnz L_ox" % sA)
        a("v_max3_f32 v36, v28, v30, v32\nv_max_f32 v36, v36, v34")
        for k in range(4):
            a("v_sub_f32 v%d, v%d, v36" % (28 + 2 * k, 28 + 2 * k))
        for k in range(4):
            a("v_mul_f32 v%d, s%d, v%d" % (28 + 2 * k, sB, 28 + 2 * k))
        for k in range(4):
            a("v_exp_f32 v%d, v%d" % (28 + 2 * k, 28 + 2 * k))
        for r in range(4):
            a("v_mul_f32 v%d, v28, v%d" % (QG + r, QG + r))
        a("v_mul_f32 v37, v28, v29")
        for k in range(1, 4):
            for r in range(4):
                a("v_fmac_f32 v%d, v%d, v%d" % (QG + r, 28 + 2 * k, QG + 4 * k + r))
            a("v_fmac_f32 v37, v%d, v%d" % (28 + 2 * k, 29 + 2 * k))
        self.tag4(QG, [QG, QG + 1, QG + 2, QG + 3])
        self.tag4(40, [36, 37, 36, 37])
        a("buffer_store_dwordx4 %s, v23, %s, s%d offen sc1" % (vr(QG), srd("ws"), sC))
        a("s_mov_b32 exec_lo, 0xff\ns_mov_b32 exec_hi, 0xff")
        a("buffer_store_dwordx4 v[40:43], v23, %s, s%d offen offset:512 sc1" % (srd("ws"), sC))
        a("s_mov_b64 exec, -1")
        self.stamp(5)
        a("s_mul_i32 s%d, s%d, 40960\ns_add_u32 s%d, s%d, 0x%x" % (sC, sRB, sC, sC, OX))
        a("s_lshl_b32 s%d, s%d, 7\ns_add_u32 s%d, s%d, s%d" % (sD, sW, sD, sD, sC))
        a("s_mul_i32 s%d, s%d, 448\ns_mul_i32 s%d, s%d, 112\ns_add_u32 s%d, s%d, s%d" % (sF, sRB, sE, sW, sF, sF, sE))
        a("s_add_u32 s%d, s%d, 0x%x\ns_add_u32 s%d, s%d, 28672" % (sF, sF, HX, sG, sF))
        a("L_ml:")
        self.guard()
        self.load(28, 25, "ws", "s%d" % sC, 512, "sc1")
        a("s_waitcnt vmcnt(0)")
        self.untag(28, 1, 3)
        a("s_cbranch_vccnz L_ml")
        self.stamp(6)

        def o_loads():
            a("s_mov_b32 s%d, s%d" % (sE, sD))
            for m in range(8):
                self.load(WQ + 4 * m, 24, "ws", "s%d" % sE, 0, "sc1")
                if m < 7:
                    a("s_add_u32 s%d, s%d, 5120" % (sE, sE))

        def h_loads():
            self.load(QB, 26, "ws", "s%d" % sF, 0, "sc1")
            self.load(QB + 4, 26, "ws", "s%d" % sG, 0, "sc1")

        o_loads()
        h_loads()
        oct_ctl = ("row_half_mirror", "quad_perm:[1,0,3,2]", "quad_perm:[2,3,0,1]")
        for c in oct_ctl:
            self.dpp("v_max_f32", 30, 30, 30, c)
        self.rows_allreduce("v_max_f32", 30, 3)
        a("v_sub_f32 v28, v28, v30\nv_mul_f32 v28, s%d, v28\nv_exp_f32 v28, v28\nv_mul_f32 v29, v28, v29" % sB)
        for c in oct_ctl:
            self.dpp("v_add_f32", 29, 29, 29, c)
        self.rows_allreduce("v_add_f32", 29, 3)
        a("v_rcp_f32 v29, v29\nv_mul_f32 v28, v28, v29")
        for m in range(8):
            self.dpp("v_mov_b32", 32 + m, 28, None, "row_newbcast:%d" % m, 0x3)
        for m in range(8):
            self.dpp("v_mov_b32", 32 + m, 28, None, "row_newbcast:%d" % (8 + m), 0xc)
        a("s_waitcnt vmcnt(2)\nL_ochk:")
        self.untag(WQ, 8, 3)
        a("s_cbranch_vccz L_ook")
        self.guard()
        o_loads()
        a("s_waitcnt vmcnt(0)\ns_branch L_ochk\nL_ook:")
        for r in range(4):
            a("v_mul_f32 v%d, v32, v%d" % (40 + r, WQ + r))
        for m in range(1, 8):
            for r in range(4):
                a("v_fmac_f32 v%d, v%d, v%d" % (40 + r, 32 + m, WQ + 4 * m + r))
        self.rows_scatter_sum([40])
        self.rnd(40, 40)
        a("ds_write_b16_d16_hi v27, v40 offset:%d\nds_write_b8 v22, v8 offset:%d" % (OI, F_OI))
        self.stamp(7)
        a("L_hchk:\ns_waitcnt vmcnt(0)")
        self.untag(QB, 2, 3)
        a("s_cbranch_vccz L_hok")
        self.guard()
        h_loads()
        a("s_branch L_hchk\nL_hok:")
        self.rows_scatter_sum([QB, QB + 4])
        self.rnd(4, QB)
        self.rnd(5, QB + 4)
        self.sigmoid(4, 4)
        a("v_mul_f32 v4, v4, v5")
        self.rnd(4, 4)
        a("ds_write_b16_d16_hi v27, v4 offset:%d\nds_write_b8 v22, v8 offset:%d" % (HI, F_HI))
        self.stamp(8)
        a("s_waitcnt lgkmcnt(0)")
        a("s_branch L_end" if o["stamps"] or o["hold"] else "s_endpgm")

    def f_waves(self):
        a, o = self.a, self.o
        W, pol = o["wf"], o["pol"]
        SEL, GU, WO, WD, Y, AO, DA, DB, VG = 56, 64, 128, 160, 188, 192, 224, 228, 232
        a("L_F:")
        for n in ("gw", "wg", "wu", "wo", "wd", "out"):
            self.ptr(n)
        self.desc("gw")
        a("v_and_b32 v3, 31, v1\nv_lshlrev_b32 v3, 4, v3\nv_lshrrev_b32 v4, 5, v1\nv_lshl_add_u32 v5, v4, 11, v3")
        a("s_lshl_b32 s%d, s%d, 9" % (sC, sW))
        a("v_mov_b32 v8, 1\nv_mov_b32 v9, 0\nv_mov_b32 v2, 0xff")
        a("s_waitcnt lgkmcnt(0)")
        a("s_load_dword s%d, s[%d:%d], 0" % (sT, SRD["ws"], SRD["ws"] + 1))
        self.load(GU, 5, "x", "s%d" % sC)
        self.load(GU + 4, 3, "gw", "s%d" % sC)
        self.load(16, 10, "x", "s%d" % sA)
        self.load(20, 10, "x", "s%d" % sA, 16)
        self.stamp(1)
        for n in ("ws", "wg", "wu", "wo", "wd", "out"):
            self.desc(n)
        a("v_lshlrev_b32 v3, 2, v1\nv_and_b32 v3, 31, v3\nds_write_b32 v3, v9")
        a("s_mov_b32 s%d, %d" % (sCNT, o["spin"]))
        a("s_lshl_b32 s%d, s%d, 2\nv_lshlrev_b32 v234, 4, v4\nv_add_u32 v235, s%d, v234" % (sA, sW, sA))
        a("v_mul_u32_u24 v11, 7168, v6\nv_add_u32 v11, v11, v7")
        a("s_cmp_lt_u32 s%d, 28\ns_cselect_b32 s%d, 0, 0x7f000000\nv_add_u32 v11, s%d, v11" % (sS, sH, sH))
        a("s_and_b32 s%d, s%d, 1\ns_mul_i32 s%d, s%d, 28\ns_add_u32 s%d, s%d, s%d" % (sA, sX, sG, sA, sG, sG, sS))
        a("s_mul_i32 s%d, s%d, %d\ns_lshl_b32 s%d, s%d, 7\ns_add_u32 s%d, s%d, s%d" % (sB, sB, 64 * 7168, sC, sG, sB, sB, sC))
        a("s_lshl_b32 s%d, s%d, 8\ns_mul_i32 s%d, s%d, 57344\ns_add_u32 s%d, s%d, s%d\ns_add_u32 s%d, s%d, 0x%x" % (
            sG, sG, sC, sKS, sG, sG, sC, sG, sG, HX))
        a("s_lshl_b32 s%d, s%d, 5\ns_add_u32 s%d, s%d, s%d" % (sA, sA, sA, sA, sS))
        a("s_lshr_b32 s%d, s%d, 2\ns_lshl_b32 s%d, s%d, 12\ns_and_b32 s%d, s%d, 3\ns_lshl_b32 s%d, s%d, 8" % (sF, sA, sF, sF, sA, sA, sA, sA))
        a("s_add_u32 s%d, s%d, s%d\ns_lshl_b32 s%d, s%d, 10\ns_add_u32 s%d, s%d, s%d\ns_add_u32 s%d, s%d, 0x%x" % (
            sF, sF, sA, sA, sKS, sF, sF, sA, sF, sF, QX))
        a("s_lshl_b32 s%d, s%d, 2\ns_lshr_b32 s%d, s%d, 3\ns_add_u32 s%d, s%d, s%d" % (sRB, sX, sA, sS, sRB, sRB, sA))
        a("s_and_b32 s%d, s%d, 7\ns_lshl_b32 s%d, s%d, 8" % (sC, sS, sC, sC))
        a("s_lshl_b32 s%d, s%d, 18\ns_lshl_b32 s%d, s%d, 12\ns_add_u32 s%d, s%d, s%d\ns_add_u32 s%d, s%d, s%d" % (
            sD, sRB, sA, sW, sD, sD, sA, sD, sD, sC))
        a("s_mul_i32 s%d, s%d, %d\ns_mul_i32 s%d, s%d, %d\ns_add_u32 s%d, s%d, s%d\ns_add_u32 s%d, s%d, s%d" % (
            sE, sRB, 112 * 2048, sA, sW, 28 * 2048, sE, sE, sA, sE, sE, sC))
        a("v_lshrrev_b32 v3, 4, v1\nv_and_b32 v4, 15, v1\nv_lshlrev_b32 v5, 4, v4")
        a("v_lshl_add_u32 v12, v3, 14, v5\nv_lshl_add_u32 v13, v3, 11, v5")
        a("s_lshl_b32 s%d, s%d, 10\nv_lshlrev_b32 v236, 4, v1\nv_add_u32 v236, s%d, v236" % (sA, sW, sA))
        a("v_mul_u32_u24 v240, 14336, v3\nv_add3_u32 v240, v240, v5, s%d" % sH)
        a("v_lshl_add_u32 v239, v3, 16, v5")
        a("v_and_b32 v6, 1, v1\nv_and_b32 v7, 1, v3\nv_lshl_add_u32 v7, v7, 1, v6\nv_lshlrev_b32 v237, 8, v7")
        a("v_lshrrev_b32 v7, 5, v1\nv_lshl_add_u32 v237, v7, 7, v237\nv_lshrrev_b32 v4, 1, v4\nv_lshl_add_u32 v237, v4, 4, v237")
        a("v_lshl_add_u32 v7, v7, 1, v6\nv_lshlrev_b32 v238, 8, v7\nv_bfe_u32 v4, v1, 1, 4\nv_lshl_add_u32 v238, v4, 4, v238")
        a("v_lshrrev_b32 v4, 3, v1\nv_and_b32 v5, 7, v1\nv_lshlrev_b32 v5, 4, v5\nv_lshl_add_u32 v241, v4, 12, v5")
        a("s_lshl_b32 s%d, s%d, 7\nv_lshlrev_b32 v243, 4, v4\nv_add_u32 v243, s%d, v243" % (sA, sW, sA))
        a("v_lshrrev_b32 v4, 1, v1\nv_lshlrev_b32 v4, 7, v4\nv_lshl_add_u32 v242, v6, 4, v4")
        a("v_lshlrev_b32 v245, 1, v3\nv_lshl_add_u32 v245, v6, 3, v245\nv_mov_b32 v244, s%d" % sW)
        self.sel_x()
        a("v_lshlrev_b32 v4, 4, v1\nv_mov_b32 v3, 0x0c0c0100\nv_alignbit_b32 v5, v3, v3, v4")
        a("v_mov_b32 v3, 0x0c0c0302\nv_alignbit_b32 v6, v3, v3, v4\nv_bfe_u32 v7, v1, 1, 2\nv_mov_b32 v4, 0x0c0c0c0c")
        for j in range(4):
            a("v_cmp_eq_u32 vcc, %d, v7\nv_cndmask_b32 v%d, v4, v5, vcc\nv_cndmask_b32 v%d, v4, v6, vcc" % (j, SEL + j, SEL + 4 + j))
        a("s_waitcnt vmcnt(2)")
        t = GU + 8
        for j in range(4):
            a("v_lshlrev_b32 v%d, 16, v%d\nv_lshlrev_b32 v%d, 16, v%d" % (t + j, GU + j, t + 4 + j, GU + 4 + j))
            a("v_and_b32 v%d, 0xffff0000, v%d\nv_and_b32 v%d, 0xffff0000, v%d" % (GU + j, GU + j, GU + 4 + j, GU + 4 + j))
        for j in range(4):
            a("v_mul_f32 v%d, v%d, v%d\nv_mul_f32 v%d, v%d, v%d" % (t + j, t + j, t + 4 + j, GU + j, GU + j, GU + 4 + j))
        for j in range(4):
            self.rnd(t + j, t + j); self.rnd(GU + j, GU + j)
        for j in range(4):
            a("v_add_f32 v%d, v%d, v%d" % (t + j, t + j, GU + j))
        a("v_add_f32 v%d, v%d, v%d\nv_add_f32 v%d, v%d, v%d\nv_add_f32 v4, v%d, v%d" % (t, t, t + 1, t + 2, t + 2, t + 3, t, t + 2))
        for n in (8, 4, 2, 1):
            self.dpp("v_add_f32", 4, 4, 4, "row_ror:%d" % n)
        self.rows_allreduce("v_add_f32", 4, 3, (16,))
        a("ds_write_b32 v235, v4 offset:%d" % GP)
        a("s_waitcnt vmcnt(0)")
        self.x_operands()
        a("s_waitcnt lgkmcnt(0)")
        self.tags()
        a("s_barrier")
        a("s_cmp_lg_u32 s%d, 0\ns_cbranch_scc1 L_noq" % sW)
        for k in range(4):
            a("ds_read_b128 %s, v237 offset:%d" % (vr(GU + 4 * k), RQ + 1024 * k))
        a("s_waitcnt lgkmcnt(0)")
        self.sum4(GU)
        self.tag4(248, [GU, GU + 1, GU + 2, GU + 3])
        a("s_mov_b32 exec_hi, 0")
        a("buffer_store_dwordx4 v[248:251], v239, %s, s%d offen sc1" % (srd("ws"), sF))
        a("s_mov_b32 exec_hi, -1")
        a("L_noq:")
        self.stamp(2)
        a("ds_read_b128 v[4:7], v234 offset:%d\ns_waitcnt lgkmcnt(0)" % GP)
        a("v_add_f32 v4, v4, v5\nv_add_f32 v6, v6, v7\nv_add_f32 v4, v4, v6")
        self.rnd(4, 4)
        self.sigmoid(VG, 4)
        a("v_sub_f32 v%d, 1.0, v%d" % (VG + 1, VG))
        self.rnd(VG + 1, VG + 1)
        a("s_and_b32 s%d, s%d, 7\ns_lshl_b32 s%d, s%d, 15\ns_lshl_b32 s%d, s%d, 7\ns_add_u32 s%d, s%d, s%d\ns_add_u32 s%d, s%d, 0x%x" % (
            sA, sS, sA, sA, sC, sRB, sA, sA, sC, sRB, sA, FX))
        a("s_lshl_b32 s%d, s%d, 3\ns_lshr_b32 s%d, s%d, 2\ns_add_u32 s%d, s%d, s%d\ns_lshl_b32 s%d, s%d, 12" % (sH, sX, sA, sS, sH, sH, sA, sH, sH))
        a("s_and_b32 s%d, s%d, 3\ns_lshl_b32 s%d, s%d, 5\ns_add_u32 s%d, s%d, s%d\ns_add_u32 s%d, s%d, 0x%x" % (sA, sS, sA, sA, sH, sH, sA, sH, sH, FX))
        a("s_lshr_b32 s%d, s%d, 4\ns_lshl_b32 s%d, s%d, 11\ns_lshl_b32 s%d, s%d, 8\ns_add_u32 s%d, s%d, s%d" % (sKS, sS, sKS, sKS, sA, sX, sKS, sKS, sA))
        a("s_and_b32 s%d, s%d, 15\ns_lshl_b32 s%d, s%d, 4\ns_add_u32 s%d, s%d, s%d" % (sA, sS, sA, sA, sKS, sKS, sA))
        a("s_barrier")
        self.stamp(3)

        def issue(i):
            if i < 16:
                self.load(GU + 4 * i, 11, "wu" if i & 1 else "wg", "s%d" % sB, 0, pol)
                if i & 1 and i < 15:
                    a("s_add_u32 s%d, s%d, 14336" % (sB, sB))
            elif i < 24:
                k = i - 16
                m = (k >> 1) + 4 * (k & 1)
                self.load(WO + 4 * m, 12, "wo", "s%d" % sD, 2048 * (k & 1), pol)
                if k & 1 and k < 7:
                    a("s_add_u32 s%d, s%d, 0x10000" % (sD, sD))
            else:
                m = i - 24
                self.load(WD + 4 * m, 13, "wd", "s%d" % sE, 0, pol)
                if m < 6:
                    a("s_add_u32 s%d, s%d, 0x2000" % (sE, sE))

        for i in range(W):
            issue(i)
        for i in range(max(31 - W, 16)):
            if i + W < 31:
                a("s_waitcnt vmcnt(%d)" % (W - 1))
                issue(i + W)
            else:
                a("s_waitcnt vmcnt(%d)" % (30 - i))
            if i < 16:
                d = 40 + 8 * (i & 1)
                self.mf16(d, 24 + 2 * (i >> 1), GU + 4 * i, i < 2)
                self.mf16(d + 4, 24 + 2 * (i >> 1), GU + 4 * i + 2, i < 2)
            if i == 15:
                for r in range(4):
                    a("v_permlane16_swap_b32 v%d, v%d" % (40 + r, 44 + r))
                for r in range(4):
                    a("v_permlane16_swap_b32 v%d, v%d" % (48 + r, 52 + r))
                for r in range(4):
                    self.dpp("v_add_f32", 40 + r, 44 + r, 40 + r, "row_ror:8", 0x3)
                for r in range(4):
                    self.dpp("v_add_f32", 40 + r, 48 + r, 52 + r, "row_ror:8", 0xc)
                a("ds_write_b128 v236, v[40:43] offset:%d" % RH)
                self.last_arriver(C_H, "L_noh")
                for k in range(4):
                    a("ds_read_b128 %s, v237 offset:%d" % (vr(GU + 4 * k), RH + 1024 * k))
                a("s_waitcnt lgkmcnt(0)")
                self.sum4(GU)
                self.tag4(GU, [GU, GU + 1, GU + 2, GU + 3])
                a("buffer_store_dwordx4 %s, v240, %s, s%d offen sc1" % (vr(GU), srd("ws"), sG))
                a("L_noh:")
                self.stamp(4)
        self.stamp(5)

        def image(lbl, flag, img):
            a("%s:" % lbl)
            self.guard()
            a("ds_read_u8 v3, v244 offset:%d\nds_read_b128 %s, v243 offset:%d" % (flag, vr(Y), img))
            a("s_waitcnt lgkmcnt(0)\nv_cmp_ne_u32 vcc, 1, v3\ns_cbranch_vccnz %s" % lbl)

        def operands(m):
            for j in range(4):
                a("v_perm_b32 v%d, v%d, v%d, v%d" % (AO + 4 * m + j, Y + (m >> 1), Y + (m >> 1), SEL + 4 * (m & 1) + j))

        image("L_oi", F_OI, OI)
        self.stamp(6)
        operands(0)
        a("s_waitcnt vmcnt(7)")
        for m in range(8):
            if m < 7:
                operands(m + 1)
            self.mf32(DA, AO + 4 * m, WO + 4 * m, m == 0)
        image("L_hi", F_HI, HI)
        self.stamp(7)
        operands(0)
        for m in range(7):
            if m < 6:
                operands(m + 1)
            else:
                for r in range(4):
                    a("v_mul_f32 v%d, v%d, v%d" % (DA + r, VG, DA + r))
            a("s_waitcnt vmcnt(%d)" % (6 - m))
            self.mf32(DB, AO + 4 * m, WD + 4 * m, m == 0)
        for r in range(4):
            a("v_fmac_f32 v%d, v%d, v%d" % (DA + r, VG + 1, DB + r))
        a("ds_write_b128 v236, %s offset:%d" % (vr(DA), RF))
        self.stamp(8)
        self.last_arriver(C_F, "L_end")
        for k in range(4):
            a("ds_read_b128 %s, v238 offset:%d" % (vr(GU + 16 + 4 * k), RF + 1024 * k))
        a("s_waitcnt lgkmcnt(0)")
        self.sum4(GU + 16)
        self.tag4(GU + 16, [GU + 16 + r for r in range(4)])
        a("buffer_store_dwordx4 %s, v241, %s, s%d offen sc1" % (vr(GU + 16), srd("ws"), sRB))
        self.stamp(9)
        a("L_fin:")
        self.guard()
        self.load(40, 242, "ws", "s%d" % sH, 0, "sc1")
        a("s_waitcnt vmcnt(0)")
        self.untag(40, 1, 3)
        a("s_cbranch_vccnz L_fin")
        self.stamp(10)
        self.rows_scatter_sum([40])
        for n in (8, 4, 2):
            self.dpp("v_add_f32", 40, 40, 40, "row_ror:%d" % n)
        self.rnd(40, 40)
        a("s_mov_b32 exec_lo, 0x00030003\ns_mov_b32 exec_hi, 0x00030003")
        a("buffer_store_short_d16_hi v40, v245, %s, s%d offen %s" % (srd("out"), sKS, o["outpol"]))
        a("s_cmp_lg_u32 s2, 0\ns_cbranch_scc1 L_end")
        a("s_mov_b64 exec, 1\nv_mov_b32 v3, s%d\nbuffer_store_dword v3, v9, %s, 0 offen sc1" % (sT, srd("ws")))

    def epilogue(self):
        a = self.a
        a("L_end:")
        if self.o["stamps"]:
            a("s_mov_b64 exec, 1\ns_waitcnt vmcnt(0)")
            self.stamp(NST - 1)
            a("s_waitcnt lgkmcnt(0)")
            a("s_lshl_b32 s%d, s3, 8\ns_add_u32 s%d, s%d, s2\ns_mul_i32 s%d, s%d, %d\ns_add_u32 s%d, s%d, 0x%x" % (
                sA, sA, sA, sA, sA, NST * 8, sA, sA, STAMP_OFF))
            a("v_mov_b32 v1, s%d" % sA)
            for i in range(NST):
                a("v_mov_b32 v4, s%d\nv_mov_b32 v5, s%d" % (sST + 2 * i, sST + 2 * i + 1))
                a("buffer_store_dwordx2 v[4:5], v1, %s, 0 offen offset:%d\ns_nop 1" % (srd("ws"), 8 * i))
        if self.o["hold"]:
            a("s_cmp_lg_u32 s3, %d\ns_cbranch_scc1 L_exit" % self.o["ampwave"])
            if self.o["ampwg"] is not None:
                a("s_cmp_lg_u32 s2, %d\ns_cbranch_scc1 L_exit" % self.o["ampwg"])
            a("s_waitcnt lgkmcnt(0)\ns_mov_b32 s%d, %d" % (sA, self.o["hold"]))
            if self.o["amp"]:
                a("s_sub_u32 s%d, s%d, s%d\ns_lshl_b32 s%d, s%d, 2\ns_and_b32 s%d, s%d, 0x3fff\ns_add_u32 s%d, s%d, s%d" % (
                    sB, sST + 2 * self.o["amp"], sST, sB, sB, sB, sB, sA, sA, sB))
            a("L_hold:\ns_memrealtime s[%d:%d]\ns_waitcnt lgkmcnt(0)\ns_sub_u32 s%d, s%d, s%d\ns_cmp_lt_u32 s%d, s%d\ns_cbranch_scc1 L_hold" % (
                sD, sD + 1, sD, sD, sST, sD, sA))
        a("L_exit:\ns_endpgm")

    def build(self):
        if self.o["stamps"]:
            for i in range(1, NST):
                self.a("s_mov_b64 s[%d:%d], 0" % (sST + 2 * i, sST + 2 * i + 1))
        self.prologue()
        self.a_waves()
        self.f_waves()
        self.epilogue()
        lab = NAME + "_kernel"
        body = "\n".join(hazard.pad(self.a.lines)) + "\n"
        return (header(["; @launch grid=(256,1,1) block=(512,1,1) lds=%d" % LDS_BYTES]) + kernel_open(lab) + body
                + RODATA + descriptor(lab, 256))


def main():
    out = sys.argv[1]
    kw = {}
    for s in sys.argv[2:]:
        k, v = s.split("=")
        try:
            v = int(v, 0)
        except ValueError:
            pass
        kw[k] = v
    open(out, "w").write(Gen(**kw).build())


if __name__ == "__main__":
    main()
```

```python
import sys
from asmlib import *
import hazard

DEFAULTS = dict(wa=6, wf=6, pol="nt", stamps=False, spin=100000, outpol="sc1", wa0=6, qpos=7, to=13, th=22, pf=1, gpol="sc1", rpol="sc1", spol="sc1", diag=0, hold=0, amp=None, ampwave=0, ampwg=None)

QX, HX, FX, OX = 0x10000, 0x40000, 0x80000, 0x100000
STAMP_OFF = 128 << 20
F_Q, F_O, C_H, F_IM, C_F, F_T = 0, 4, 8, 12, 16, 24
GP, MLL, IM = 64, 256, 512
RQ, RH, RF, QI, OL = 2048, 6144, 10240, 14336, 16640
XS = OL + 4 * 4224
LDS_BYTES = XS + 8192
SRD = dict(x=4, wq=8, k=12, v=16, wg=20, wu=24, wo=28, wd=32, gw=36, ws=40, out=44)
sX, sS, sW, sT, sT0, sCNT = 48, 49, 50, 51, 52, 56
sA, sB, sC, sD, sE, sF, sG, sH, sRB, sKS = 57, 58, 59, 60, 61, 62, 63, 64, 65, 66
sOK, sP, sR = 67, 68, 94
sST = 70
NST = 12
OOB = 0x7f000000
LOG2E = 0x3fb8aa3b
SCALE = 0x3db504f3
KVBASE = (32768 - 4096) * 256


def srd(n):
    return "s[%d:%d]" % (SRD[n], SRD[n] + 3)


def vr(b, n=4):
    return "v[%d:%d]" % (b, b + n - 1)


class VM:
    def __init__(self, a):
        self.a, self.q = a, []

    def note(self, name):
        self.q.append(name)

    def wait(self, name):
        self.a("s_waitcnt vmcnt(%d)" % (len(self.q) - 1 - self.q.index(name)))


class Gen:
    def __init__(self, **kw):
        self.o = dict(DEFAULTS)
        self.o.update(kw)
        self.a = Asm()

    def stamp(self, i):
        if self.o["stamps"] or (self.o["hold"] and i in (0, self.o["amp"])):
            self.a("s_memrealtime s[%d:%d]" % (sST + 2 * i, sST + 2 * i + 1))

    def count(self, unit):
        if self.o["diag"]:
            self.a("s_add_u32 s%d, s%d, %d" % (sST + 2, sST + 2, 100 * unit))

    def ack(self, i):
        if self.o["diag"]:
            self.a("s_waitcnt vmcnt(0)")
            self.stamp(i)

    def ptr(self, n):
        self.a("s_load_dwordx2 s[%d:%d], s[0:1], %d" % (SRD[n], SRD[n] + 1, KARG[n]))

    def desc(self, n):
        self.a("s_mov_b32 s%d, 0x%x\ns_mov_b32 s%d, 0x20000" % (SRD[n] + 2, SIZE[n], SRD[n] + 3))

    def guard(self):
        self.a("s_sub_u32 s%d, s%d, 1\ns_cbranch_scc1 L_end" % (sCNT, sCNT))

    def load(self, dst, voff, buf, soff, imm=0, pol=""):
        self.a("buffer_load_dwordx4 %s, v%d, %s, %s offen%s%s" % (
            vr(dst), voff, srd(buf), soff, " offset:%d" % imm if imm else "", " " + pol if pol else ""))

    def flag_wait(self, lbl, vaddr, flag):
        self.a("%s:" % lbl)
        self.guard()
        self.a("ds_read_u8 v3, v%d offset:%d\ns_waitcnt lgkmcnt(0)\nv_cmp_ne_u32 vcc, 1, v3\ns_cbranch_vccnz %s" % (vaddr, flag, lbl))

    def tags(self):
        a = self.a
        a("s_add_u32 s%d, s%d, 0x01010101" % (sT, sT))
        a("s_and_b32 s%d, s%d, 0xff" % (sT0, sT))
        a("s_bfe_u32 s%d, s%d, 0x80008" % (sT0 + 1, sT))
        a("s_bfe_u32 s%d, s%d, 0x80010" % (sT0 + 2, sT))
        a("s_lshr_b32 s%d, s%d, 24" % (sT0 + 3, sT))

    def tag4(self, dst, src):
        for j in range(4):
            self.a("v_bfi_b32 v%d, v2, s%d, v%d" % (dst + j, sT0 + j, src[j]))

    def untag(self, base, n, acc, cmp=True, also=None):
        a = self.a
        regs = list(range(base, base + 4 * n))
        for r in regs:
            a("v_xor_b32 v%d, s%d, v%d" % (r, sT0 + (r - base) % 4, r))
        a("v_or_b32 v%d, v%d, v%d" % (acc, regs[0], regs[1]))
        for i in range(2, len(regs), 2):
            a("v_or3_b32 v%d, v%d, v%d, v%d" % (acc, acc, regs[i], regs[i + 1]))
        if also is not None:
            a("v_or_b32 v%d, v%d, v%d" % (acc, acc, also))
        if cmp:
            a("v_and_b32 v%d, v2, v%d" % (acc, acc))
            a("v_cmp_ne_u32 vcc, 0, v%d" % acc)

    def dpp(self, op, d, s0, s1, ctl, bank=0xf):
        self.a("%s_dpp v%d, v%d, %s%s row_mask:0xf bank_mask:0x%x" % (
            op, d, s0, "v%d " % s1 if s1 is not None else "", ctl, bank) if s1 is not None else
            "%s_dpp v%d, v%d %s row_mask:0xf bank_mask:0x%x" % (op, d, s0, ctl, bank))

    def rows_allreduce(self, op, x, t, which=(16, 32)):
        for n in which:
            self.a("v_mov_b32 v%d, v%d\nv_permlane%d_swap_b32 v%d, v%d\n%s v%d, v%d, v%d" % (t, x, n, x, t, op, x, x, t))

    def rows_scatter_sum(self, sets):
        a = self.a
        for b in sets:
            a("v_permlane32_swap_b32 v%d, v%d\nv_permlane32_swap_b32 v%d, v%d" % (b, b + 2, b + 1, b + 3))
        for b in sets:
            a("v_add_f32 v%d, v%d, v%d\nv_add_f32 v%d, v%d, v%d" % (b, b, b + 2, b + 1, b + 1, b + 3))
        for b in sets:
            a("v_permlane16_swap_b32 v%d, v%d" % (b, b + 1))
        for b in sets:
            a("v_add_f32 v%d, v%d, v%d" % (b, b, b + 1))

    def rnd(self, d, s):
        self.a("v_cvt_pk_bf16_f32 v%d, 0, v%d" % (d, s))

    def sigmoid(self, d, z):
        a = self.a
        a("v_mul_f32 v%d, 0x%x, v%d" % (d, LOG2E ^ 0x80000000, z))
        a("v_exp_f32 v%d, v%d\nv_add_f32 v%d, 1.0, v%d\nv_rcp_f32 v%d, v%d" % (d, d, d, d, d, d))
        self.rnd(d, d)

    def sel_x(self):
        a = self.a
        a("v_bfe_u32 v3, v1, 2, 1\nv_mul_u32_u24 v3, 0x202, v3\nv_add_u32 v3, 0x0c0c0100, v3")
        a("v_lshlrev_b32 v4, 4, v1\nv_alignbit_b32 v3, v3, v3, v4")
        a("v_and_b32 v4, 2, v1\nv_cmp_eq_u32 vcc, 0, v4\nv_mov_b32 v4, 0x0c0c0c0c")
        a("v_cndmask_b32 v14, v4, v3, vcc\nv_cndmask_b32 v15, v3, v4, vcc")

    def x_operands(self):
        for m in range(8):
            self.a("v_perm_b32 v%d, v%d, v%d, v14\nv_perm_b32 v%d, v%d, v%d, v15" % (
                24 + 2 * m, 16 + m, 16 + m, 25 + 2 * m, 16 + m, 16 + m))

    def mf16(self, d, av, bv, first):
        self.a("v_mfma_f32_16x16x16_bf16 %s, %s, %s, %s" % (vr(d), vr(av, 2), vr(bv, 2), "0" if first else vr(d)))

    def mf32(self, d, av, bv, first):
        self.a("v_mfma_f32_16x16x32_bf16 %s, %s, %s, %s" % (vr(d), vr(av), vr(bv), "0" if first else vr(d)))

    def sum4(self, b):
        for r in range(4):
            self.a("v_add_f32 v%d, v%d, v%d\nv_add_f32 v%d, v%d, v%d" % (b + r, b + r, b + 4 + r, b + 8 + r, b + 8 + r, b + 12 + r))
        for r in range(4):
            self.a("v_add_f32 v%d, v%d, v%d" % (b + r, b + r, b + 8 + r))

    def last_arriver(self, cnt, skip):
        a = self.a
        a("s_mov_b64 exec, 1\nds_add_rtn_u32 v3, v9, v8 offset:%d\ns_mov_b64 exec, -1" % cnt)
        a("s_waitcnt lgkmcnt(0)\nv_readfirstlane_b32 s%d, v3\ns_cmp_lg_u32 s%d, 3\ns_cbranch_scc1 %s" % (sA, sA, skip))

    def prologue(self):
        a = self.a
        self.stamp(0)
        a("s_cmp_ge_u32 s2, 256\ns_cbranch_scc1 L_exit")
        for n in ("x", "wq", "ws"):
            self.ptr(n)
        a("v_lshrrev_b32 v3, 6, v0\nv_and_b32 v1, 63, v0")
        a("s_and_b32 s%d, s2, 7\ns_lshr_b32 s%d, s2, 3" % (sX, sS))
        a("v_readfirstlane_b32 s3, v3")
        a("s_lshr_b32 s%d, s%d, 1" % (sKS, sX))
        self.desc("x")
        a("v_bfe_u32 v5, v1, 3, 1\nv_and_b32 v6, 0x30, v1\nv_and_b32 v7, 7, v1")
        a("s_and_b32 s%d, s3, 3" % sW)
        a("v_lshlrev_b32 v10, 11, v5\nv_lshl_add_u32 v10, v6, 1, v10")
        a("v_or_b32 v6, v6, v5\nv_lshlrev_b32 v7, 4, v7")
        a("s_lshl_b32 s%d, s%d, 2\ns_add_u32 s%d, s%d, s%d" % (sB, sKS, sB, sB, sW))
        a("s_lshl_b32 s%d, s%d, 7" % (sA, sB))
        a("s_cmp_ge_u32 s3, 4\ns_cbranch_scc1 L_F")

    def a_waves(self):
        a, o = self.a, self.o
        W, pol = o["wa"], o["pol"]
        WQ, KD, VD, VT, PV, QG, QB, SD = 48, 80, 112, 144, 176, 208, 224, 232
        self.ptr("k"); self.ptr("v")
        self.desc("wq")
        a("v_lshl_add_u32 v11, v6, 13, v7")
        a("s_and_b32 s%d, s%d, 1\ns_lshl_b32 s%d, s%d, 5\ns_add_u32 s%d, s%d, s%d\ns_xor_b32 s%d, s%d, 2" % (sC, sX, sC, sC, sC, sC, sS, sC, sC))
        a("s_lshl_b32 s%d, s%d, 7\ns_lshl_b32 s%d, s%d, 19\ns_add_u32 s%d, s%d, s%d" % (sC, sC, sB, sB, sB, sB, sC))
        a("s_waitcnt lgkmcnt(0)")
        vm = VM(a)
        self.load(16, 10, "x", "s%d" % sA)
        self.load(20, 10, "x", "s%d" % sA, 16)
        vm.note("x0"); vm.note("x1")

        def q_loads(v, p=o["gpol"]):
            for ks in range(4):
                self.load(QG + 4 * ks, v, "ws", "s%d" % sF, ks * 1024, p)

        def issue(i):
            if i < 8:
                self.load(WQ + 4 * i, 11, "wq", "s%d" % sB, 0, pol)
                if i < 7:
                    a("s_add_u32 s%d, s%d, 0x4000" % (sB, sB))
            elif i < 16:
                oc, hh = (i - 8) >> 1, (i - 8) & 1
                self.load(KD + 4 * (i - 8), 12, "k", "s%d" % (sD if oc < 2 else sE), (oc & 1) * 512 + hh * 128, pol)
            else:
                m = i - 16
                self.load(VD + 4 * m, 13, "v", "s%d" % (sD if m < 4 else sE), (m & 3) * 1024, pol)
            vm.note(i)
            if i == 16 + o["qpos"]:
                q_loads(13)
                for ks in range(4):
                    vm.note("q%d" % ks)

        W0 = o["wa0"]
        assert W0 <= 8
        for i in range(W0):
            issue(i)
        if o["diag"]:
            a("s_mov_b64 s[%d:%d], s[%d:%d]" % (sST + 2, sST + 3, sST, sST + 1))
        else:
            self.stamp(1)
        a("s_load_dword s%d, s[%d:%d], 0" % (sT, SRD["ws"], SRD["ws"] + 1))
        self.desc("k"); self.desc("v"); self.desc("ws")
        a("s_lshl_b32 s%d, s%d, 23\ns_lshl_b32 s%d, s%d, 15\ns_add_u32 s%d, s%d, s%d" % (sD, sX, sE, sS, sD, sD, sE))
        a("s_lshl_b32 s%d, s%d, 13\ns_add_u32 s%d, s%d, s%d\ns_add_u32 s%d, s%d, 0x%x" % (sE, sW, sD, sD, sE, sD, sD, KVBASE))
        a("s_add_u32 s%d, s%d, 0x1000" % (sE, sD))
        a("v_and_b32 v3, 3, v1\nv_bfe_u32 v4, v1, 2, 1\nv_lshl_add_u32 v3, v3, 2, v4")
        a("v_lshrrev_b32 v4, 3, v1\nv_lshlrev_b32 v4, 4, v4\nv_lshl_add_u32 v12, v3, 8, v4")
        a("v_lshlrev_b32 v13, 4, v1")
        a("v_mov_b32 v2, 0xff\nv_mov_b32 v8, 1\nv_mov_b32 v9, 0\ns_mov_b32 s%d, %d" % (sCNT, o["spin"]))
        self.sel_x()
        a("s_lshl_b32 s%d, s%d, 3\ns_lshr_b32 s%d, s%d, 2\ns_add_u32 s%d, s%d, s%d" % (sRB, sX, sA, sS, sRB, sRB, sA))
        a("s_lshl_b32 s%d, s%d, 10\nv_add_u32 v5, s%d, v13" % (sA, sW, sA))
        a("s_lshl_b32 s%d, s%d, 14\ns_lshl_b32 s%d, s%d, 12\ns_add_u32 s%d, s%d, s%d\ns_add_u32 s%d, s%d, 0x%x" % (
            sF, sX, sA, sW, sF, sF, sA, sF, sF, QX))
        a("s_mov_b32 s%d, 0x05040100\ns_mov_b32 s%d, 0x07060302" % (sG, sH))
        vm.wait("x1")
        a("ds_write_b128 v5, v[16:19] offset:%d\nds_write_b128 v5, v[20:23] offset:%d" % (XS, XS + 4096))
        self.x_operands()
        n = W0
        for i in range(24 - W):
            if i < 8 or n < i + 1 + W:
                vm.wait(i)
            while n < i + 1 + W:
                issue(n)
                n += 1
            if i < 8:
                self.mf16(40, 24 + 2 * i, WQ + 4 * i, i == 0)
                self.mf16(44, 24 + 2 * i, WQ + 4 * i + 2, i == 0)
            if i == 7:
                for r in range(4):
                    a("v_permlane16_swap_b32 v%d, v%d" % (40 + r, 44 + r))
                for r in range(4):
                    self.dpp("v_add_f32", 40 + r, 44 + r, 40 + r, "row_ror:8")
                a("ds_write_b128 v5, v[40:43] offset:%d" % RQ)
                a("s_waitcnt lgkmcnt(0)\ns_barrier")
                self.stamp(2)
                self.tags()
        a("s_barrier")
        self.stamp(3)
        a("v_lshrrev_b32 v3, 5, v1\ns_lshl_b32 s%d, s%d, 1\nv_add_u32 v3, s%d, v3" % (sA, sW, sA))
        a("v_and_b32 v4, 31, v1\nv_mul_u32_u24 v16, 272, v3\nv_lshl_add_u32 v16, v4, 3, v16")
        a("v_mul_u32_u24 v20, 528, v3\nv_lshl_add_u32 v20, v4, 4, v20\nv_lshlrev_b32 v21, 5, v3")
        a("v_lshrrev_b32 v4, 3, v4\nv_lshl_add_u32 v23, v3, 2, v4\nv_lshl_add_u32 v23, v23, 13, v7")
        a("v_and_b32 v3, 7, v1\nv_lshrrev_b32 v4, 3, v1\nv_mul_u32_u24 v17, 272, v3\nv_lshl_add_u32 v17, v4, 4, v17")
        a("v_mul_u32_u24 v18, 528, v3\nv_and_b32 v5, 0x30, v1\ns_mul_i32 s%d, s%d, 4224\nv_add3_u32 v18, v18, v5, s%d" % (sA, sW, sA))
        a("s_lshl_b32 s%d, s%d, 3\nv_lshlrev_b32 v19, 5, v3\nv_add_u32 v19, s%d, v19" % (sA, sW, sA))
        a("v_mov_b32 v22, s%d" % sW)
        vm.wait("q3")
        a("L_qchk:")
        self.untag(QG, 4, 3)
        a("s_cbranch_vccz L_qok")
        self.guard()
        q_loads(13, o["rpol"])
        self.count(1)
        a("s_waitcnt vmcnt(0)\ns_branch L_qchk\nL_qok:")
        self.stamp(4)
        self.sum4(QG)
        a("v_cvt_pk_bf16_f32 v4, v%d, v%d\nv_cvt_pk_bf16_f32 v5, v%d, v%d" % (QG, QG + 1, QG + 2, QG + 3))
        a("ds_write_b64 v16, v[4:5] offset:%d\nds_write_b8 v22, v8 offset:%d" % (QI, F_Q))
        a("s_mov_b32 s%d, 0x01010101" % sA)
        a("L_qi:")
        self.guard()
        a("ds_read_b32 v3, v9 offset:%d" % F_Q)
        a("ds_read_b128 %s, v17 offset:%d\nds_read_b128 %s, v17 offset:%d" % (vr(QB), QI, vr(QB + 4), QI + 128))
        a("s_waitcnt lgkmcnt(0)\nv_cmp_ne_u32 vcc, s%d, v3\ns_cbranch_vccnz L_qi" % sA)
        for hh in range(2):
            for oc in range(4):
                self.mf32(SD + 4 * oc, KD + 8 * oc + 4 * hh, QB + 4 * hh, hh == 0)
        for p in range(2):
            for r in range(4):
                a("v_permlane32_swap_b32 v%d, v%d" % (SD + 8 * p + r, SD + 8 * p + 4 + r))
        for r in range(4):
            self.dpp("v_add_f32", 28 + r, SD + 4 + r, SD + r, "row_ror:8", 0x3)
        for r in range(4):
            self.dpp("v_add_f32", 28 + r, SD + 8 + r, SD + 12 + r, "row_ror:8", 0xc)
        for r in range(4):
            self.rnd(28 + r, 28 + r)
        for r in range(4):
            a("v_mul_f32 v%d, 0x%x, v%d" % (28 + r, SCALE, 28 + r))
        for r in range(4):
            self.rnd(28 + r, 28 + r)
        a("v_max3_f32 v32, v28, v29, v30\nv_max_f32 v32, v32, v31")
        self.dpp("v_max_f32", 32, 32, 32, "row_ror:8")
        self.rows_allreduce("v_max_f32", 32, 3)
        a("s_mov_b32 s%d, 0x%x" % (sB, LOG2E))
        for r in range(4):
            a("v_sub_f32 v%d, v%d, v32" % (28 + r, 28 + r))
        for r in range(4):
            a("v_mul_f32 v%d, s%d, v%d" % (28 + r, sB, 28 + r))
        for r in range(4):
            a("v_exp_f32 v%d, v%d" % (28 + r, 28 + r))
        a("v_cvt_pk_bf16_f32 v36, v28, v29\nv_cvt_pk_bf16_f32 v37, v30, v31")
        a("v_add_f32 v33, v28, v29\nv_add_f32 v30, v30, v31")
        self.dpp("v_mov_b32", 38, 36, None, "row_ror:8")
        self.dpp("v_mov_b32", 39, 37, None, "row_ror:8")
        a("v_add_f32 v33, v33, v30")
        self.dpp("v_add_f32", 33, 33, 33, "row_ror:8")
        self.rows_allreduce("v_add_f32", 33, 3)
        for j in range(4):
            vm.wait(16 + 2 * j + 1)
            for e in range(8):
                a("v_perm_b32 v%d, v%d, v%d, s%d" % (VT + 4 * e + j, VD + 8 * j + 4 + (e >> 1), VD + 8 * j + (e >> 1), sH if e & 1 else sG))
        for e in range(8):
            self.mf32(PV + 4 * e, VT + 4 * e, 36, True)
        a("s_mov_b32 exec_lo, 0x00ff00ff\ns_mov_b32 exec_hi, 0x00ff00ff")
        for e in range(8):
            a("ds_write_b128 v18, %s offset:%d" % (vr(PV + 4 * e), OL + 64 * e))
        a("ds_write_b64 v19, v[32:33] offset:%d" % MLL)
        a("ds_write_b8 v22, v8 offset:%d" % F_O)
        a("s_mov_b64 exec, -1")
        a("s_and_b32 s%d, s%d, 3\ns_lshl_b32 s%d, s%d, 18" % (sC, sX, sC, sC))
        a("s_lshr_b32 s%d, s%d, 2\ns_lshl_b32 s%d, s%d, 1\ns_add_u32 s%d, s%d, s%d" % (sD, sX, sE, sS, sD, sD, sE))
        a("s_lshl_b32 s%d, s%d, 7\ns_add_u32 s%d, s%d, s%d\ns_add_u32 s%d, s%d, 0x%x" % (sD, sD, sC, sC, sD, sC, sC, OX))
        a("s_mov_b32 s%d, 0x07060501\ns_mov_b32 s%d, 0x07060502\ns_mov_b32 s%d, 0x07060503" % (sD, sE, sF))
        a("L_ox:")
        self.guard()
        a("ds_read_b32 v3, v9 offset:%d" % F_O)
        a("ds_read_b128 v[28:31], v21 offset:%d\nds_read_b128 v[32:35], v21 offset:%d" % (MLL, MLL + 16))
        for k in range(4):
            a("ds_read_b128 %s, v20 offset:%d" % (vr(QG + 4 * k), OL + 4224 * k))
        a("s_waitcnt lgkmcnt(0)\nv_cmp_ne_u32 vcc, s%d, v3\ns_cbranch_vccnz L_ox" % sA)
        a("v_max3_f32 v36, v28, v30, v32\nv_max_f32 v36, v36, v34")
        for k in range(4):
            a("v_sub_f32 v%d, v%d, v36" % (28 + 2 * k, 28 + 2 * k))
        for k in range(4):
            a("v_mul_f32 v%d, s%d, v%d" % (28 + 2 * k, sB, 28 + 2 * k))
        for k in range(4):
            a("v_exp_f32 v%d, v%d" % (28 + 2 * k, 28 + 2 * k))
        a("v_mul_f32 v37, v28, v29")
        for k in range(1, 4):
            a("v_fmac_f32 v37, v%d, v%d" % (28 + 2 * k, 29 + 2 * k))
        a("v_log_f32 v38, v37\nv_rcp_f32 v37, v37")
        for r in range(4):
            a("v_mul_f32 v%d, v28, v%d" % (QG + r, QG + r))
        a("v_fmac_f32 v38, s%d, v36" % sB)
        for k in range(1, 4):
            for r in range(4):
                a("v_fmac_f32 v%d, v%d, v%d" % (QG + r, 28 + 2 * k, QG + 4 * k + r))
        for r in range(4):
            a("v_mul_f32 v%d, v37, v%d" % (QG + r, QG + r))
        a("v_bfi_b32 v%d, v2, s%d, v%d" % (QG, sT0, QG))
        for r in range(1, 4):
            a("v_perm_b32 v%d, v%d, v38, s%d" % (QG + r, QG + r, sD + r - 1))
        a("buffer_store_dwordx4 %s, v23, %s, s%d offen sc1" % (vr(QG), srd("ws"), sC))
        self.stamp(5)
        self.ack(10)
        a("s_cmp_ge_u32 s%d, 2\ns_cbranch_scc1 L_H" % sW)
        a("s_lshl_b32 s%d, s%d, 1\ns_add_u32 s%d, s%d, s%d\ns_lshl_b32 s%d, s%d, 13" % (sC, sRB, sC, sC, sW, sC, sC))
        a("s_add_u32 s%d, s%d, 0x%x\ns_add_u32 s%d, s%d, 0x1000\ns_mov_b32 s%d, 0x0c04000c" % (sC, sC, OX, sD, sC, sE))
        a("s_lshl_b32 s%d, s%d, 7\nv_lshlrev_b32 v27, 1, v1\nv_add_u32 v27, s%d, v27" % (sA, sW, sA))
        self.flag_wait("L_to", 22, F_T)
        self.stamp(6)
        a("L_og:")
        self.guard()
        self.count(32)
        for m in range(8):
            self.load(WQ + 4 * m, 13, "ws", "s%d" % (sC if m < 4 else sD), (m & 3) * 1024, o["rpol"])
        for m in range(8):
            if m % 4 == 0:
                a("s_waitcnt vmcnt(%d)" % (4 - m))
            d = WQ + 4 * m
            a("v_xor_b32 v%d, s%d, v%d\nv_perm_b32 v%d, v%d, v%d, s%d" % (d, sT0, d, 28 + m, d + 2, d + 1, sE))
            a("v_lshl_or_b32 v%d, v%d, 24, v%d" % (28 + m, d + 3, 28 + m))
        a("v_or3_b32 v3, v%d, v%d, v%d\nv_or3_b32 v4, v%d, v%d, v%d" % tuple(WQ + 4 * m for m in range(6)))
        a("v_or3_b32 v3, v3, v%d, v%d\nv_or_b32 v3, v3, v4\nv_and_b32 v3, v2, v3\nv_cmp_ne_u32 vcc, 0, v3" % (WQ + 24, WQ + 28))
        a("v_max3_f32 v36, v28, v29, v30\nv_max3_f32 v37, v31, v32, v33\nv_max3_f32 v36, v36, v34, v35\nv_max_f32 v36, v36, v37")
        a("s_cbranch_vccnz L_og")
        self.rows_allreduce("v_max_f32", 36, 3)
        for m in range(8):
            a("v_sub_f32 v%d, v%d, v36" % (28 + m, 28 + m))
        for m in range(8):
            a("v_exp_f32 v%d, v%d" % (28 + m, 28 + m))
        for r in range(4):
            a("v_mul_f32 v%d, v28, v%d" % (40 + r, WQ + r))
        a("v_add_f32 v36, v28, v29")
        for m in range(1, 8):
            for r in range(4):
                a("v_fmac_f32 v%d, v%d, v%d" % (40 + r, 28 + m, WQ + 4 * m + r))
            if m > 1:
                a("v_add_f32 v36, v36, v%d" % (28 + m))
        self.rows_allreduce("v_add_f32", 36, 3)
        a("v_rcp_f32 v36, v36")
        self.rows_scatter_sum([40])
        a("v_mul_f32 v4, v36, v40")
        a("s_branch L_im")
        a("L_H:")
        a("s_lshl_b32 s%d, s%d, 1\ns_add_u32 s%d, s%d, s%d\ns_mul_i32 s%d, s%d, 224" % (sF, sRB, sF, sF, sW, sF, sF))
        a("s_add_u32 s%d, s%d, 0x%x\ns_add_u32 s%d, s%d, 28672" % (sF, sF, HX - 448, sG, sF))
        a("v_and_b32 v3, 15, v1\nv_min_u32 v3, 13, v3\nv_lshrrev_b32 v5, 4, v1")
        a("v_mul_u32_u24 v26, 57344, v5\nv_lshl_add_u32 v26, v3, 4, v26")
        a("v_and_b32 v4, 1, v3\nv_and_b32 v6, 1, v5\nv_lshl_add_u32 v4, v4, 1, v6\nv_and_b32 v3, 14, v3")
        a("v_lshl_add_u32 v27, v4, 5, v3\nv_lshrrev_b32 v5, 1, v5\nv_lshl_add_u32 v27, v5, 4, v27")
        a("s_lshl_b32 s%d, s%d, 7\nv_add_u32 v27, s%d, v27" % (sA, sW, sA))
        self.flag_wait("L_th", 22, F_T)
        self.stamp(6)
        a("L_hg:")
        self.guard()
        self.count(1024)
        self.load(QB, 26, "ws", "s%d" % sF, 0, o["rpol"])
        self.load(QB + 4, 26, "ws", "s%d" % sG, 0, o["rpol"])
        a("s_waitcnt vmcnt(0)")
        self.untag(QB, 2, 3)
        a("s_cbranch_vccnz L_hg")
        self.rows_scatter_sum([QB, QB + 4])
        self.rnd(4, QB)
        self.rnd(5, QB + 4)
        self.sigmoid(4, 4)
        a("v_mul_f32 v4, v4, v5")
        a("L_im:")
        self.rnd(4, 4)
        a("ds_write_b16_d16_hi v27, v4 offset:%d\nds_write_b8 v22, v8 offset:%d" % (IM, F_IM))
        self.stamp(7)
        a("s_waitcnt lgkmcnt(0)")
        a("s_branch L_end" if o["stamps"] or o["hold"] else "s_endpgm")

    def f_waves(self):
        a, o = self.a, self.o
        W, pol = o["wf"], o["pol"]
        SEL, GU, WO, WD, Y, AO, DA, DB, VG = 56, 64, 128, 160, 188, 192, 224, 228, 232
        a("L_F:")
        for n in ("gw", "wg", "wu", "wo", "wd", "out"):
            self.ptr(n)
        self.desc("gw")
        if o["pf"]:
            a("s_getpc_b64 s[%d:%d]\nL_pc:" % (sP, sP + 1))
            a("s_sub_u32 s%d, s%d, L_pc-%s_kernel\ns_subb_u32 s%d, s%d, 0" % (sP, sP, NAME, sP + 1, sP + 1))
            a("s_lshl_b32 s%d, s%d, 9\nv_lshl_add_u32 v250, v7, 2, s%d\nv_min_u32 v250, L_exit-%s_kernel, v250" % (sC, sS, sC, NAME))
            a("v_mov_b32 v251, s%d\nv_add_co_u32 v250, vcc, s%d, v250\ns_nop 1\nv_addc_co_u32 v251, vcc, 0, v251, vcc" % (sP + 1, sP))
            a("s_cmp_lg_u32 s%d, 0\ns_cbranch_scc1 L_nopf\nglobal_load_dword v252, v[250:251], off\nL_nopf:" % sW)
        a("v_and_b32 v3, 31, v1\nv_lshlrev_b32 v253, 4, v3\nv_lshrrev_b32 v4, 5, v1\nv_lshl_add_u32 v254, v4, 11, v253")
        a("v_mov_b32 v8, 1\nv_mov_b32 v9, 0\nv_mov_b32 v2, 0xff")
        a("s_waitcnt lgkmcnt(0)")
        a("s_load_dword s%d, s[%d:%d], 0" % (sT, SRD["ws"], SRD["ws"] + 1))
        self.stamp(1)
        for n in ("ws", "wg", "wu", "wo", "wd", "out"):
            self.desc(n)
        a("v_lshlrev_b32 v3, 2, v1\nv_and_b32 v3, 31, v3\nds_write_b32 v3, v9")
        a("s_mov_b32 s%d, %d" % (sCNT, o["spin"]))
        a("s_lshl_b32 s%d, s%d, 2\nv_lshlrev_b32 v234, 4, v4\nv_add_u32 v235, s%d, v234" % (sA, sW, sA))
        a("s_and_b32 s%d, s%d, 1\ns_lshl_b32 s%d, s%d, 5\ns_add_u32 s%d, s%d, s%d" % (sA, sX, sA, sA, sA, sA, sS))
        a("s_lshr_b32 s%d, s%d, 2\ns_and_b32 s%d, s%d, 3" % (sC, sA, sD, sA))
        a("s_max_u32 s%d, s%d, 1\ns_mul_i32 s%d, s%d, 3\ns_add_u32 s%d, s%d, s%d" % (sE, sD, sG, sC, sG, sG, sE))
        a("s_add_u32 s%d, s%d, 3\ns_mul_i32 s%d, s%d, 37\ns_lshr_b32 s%d, s%d, 8" % (sE, sG, sE, sE, sE, sE))
        a("s_add_u32 s%d, s%d, s%d\ns_sub_u32 s%d, s%d, 1" % (sG, sG, sE, sG, sG))
        a("s_lshr_b32 s%d, s%d, 1\ns_lshl_b32 s%d, s%d, 3\ns_add_u32 s%d, s%d, 3\ns_min_u32 s%d, s%d, 55" % (sE, sC, sE, sE, sE, sE, sE, sE))
        a("s_cmp_eq_u32 s%d, 1\ns_cselect_b32 s%d, s%d, s%d\ns_cselect_b32 s%d, 8, 0" % (sD, sG, sE, sG, sE))
        a("s_lshr_b32 s%d, s%d, 1\nv_mov_b32 v244, s%d\ns_add_u32 s%d, s%d, s%d\nv_mov_b32 v247, s%d" % (sC, sW, sC, sE, sE, sC, sE))
        a("s_and_b32 s%d, s%d, 7\ns_cmp_eq_u32 s%d, 5\ns_cselect_b32 s%d, 0x%x, 0" % (sC, sA, sC, sH, OOB))
        a("s_cmp_eq_u32 s%d, 1\ns_cselect_b32 s%d, 0x%x, 0" % (sC, sOK, OOB))
        a("v_mul_u32_u24 v11, 7168, v6\nv_add_u32 v11, v11, v7")
        a("v_add_u32 v246, s%d, v11\nv_add_u32 v11, s%d, v11" % (sOK, sH))
        a("v_mov_b32 v248, s%d\nv_mov_b32 v249, s%d\nv_cmp_gt_u32 vcc, 32, v1\nv_cndmask_b32 v248, v249, v248, vcc" % (sH, sOK))
        a("s_mul_i32 s%d, s%d, %d\ns_lshl_b32 s%d, s%d, 7\ns_add_u32 s%d, s%d, s%d" % (sB, sB, 64 * 7168, sC, sG, sB, sB, sC))
        a("s_lshl_b32 s%d, s%d, 9\ns_mul_i32 s%d, s%d, 57344\ns_add_u32 s%d, s%d, s%d\ns_add_u32 s%d, s%d, 0x%x" % (
            sG, sG, sC, sKS, sG, sG, sC, sG, sG, HX))
        a("s_xor_b32 s%d, s%d, 2" % (sA, sA))
        a("s_lshr_b32 s%d, s%d, 2\ns_lshl_b32 s%d, s%d, 12\ns_and_b32 s%d, s%d, 3\ns_lshl_b32 s%d, s%d, 8" % (sF, sA, sF, sF, sA, sA, sA, sA))
        a("s_add_u32 s%d, s%d, s%d\ns_lshl_b32 s%d, s%d, 10\ns_add_u32 s%d, s%d, s%d\ns_add_u32 s%d, s%d, 0x%x" % (
            sF, sF, sA, sA, sKS, sF, sF, sA, sF, sF, QX))
        a("s_lshl_b32 s%d, s%d, 3\ns_lshr_b32 s%d, s%d, 2\ns_add_u32 s%d, s%d, s%d" % (sRB, sX, sA, sS, sRB, sRB, sA))
        a("s_and_b32 s%d, s%d, 3\ns_xor_b32 s%d, s%d, 2\ns_and_b32 s%d, s%d, 1" % (sH, sS, sH, sH, sOK, sW))
        a("s_lshl_b32 s%d, s%d, 3\ns_add_u32 s%d, s%d, s%d\ns_lshl_b32 s%d, s%d, 7" % (sC, sOK, sC, sC, sH, sC, sC))
        a("s_lshl_b32 s%d, s%d, 1\ns_lshr_b32 s%d, s%d, 1\ns_add_u32 s%d, s%d, s%d" % (sE, sRB, sA, sW, sE, sE, sA))
        a("s_lshr_b32 s%d, s%d, 2\ns_lshl_b32 s%d, s%d, 18\ns_and_b32 s%d, s%d, 3\ns_lshl_b32 s%d, s%d, 12" % (sD, sE, sD, sD, sA, sE, sA, sA))
        a("s_add_u32 s%d, s%d, s%d\ns_add_u32 s%d, s%d, s%d" % (sD, sD, sA, sD, sD, sC))
        a("s_mul_i32 s%d, s%d, %d\ns_add_u32 s%d, s%d, s%d" % (sE, sE, 28 * 2048, sE, sE, sC))
        a("v_lshrrev_b32 v3, 4, v1\nv_lshl_add_u32 v6, v5, 9, v7")
        a("v_lshl_add_u32 v12, v3, 14, v6\nv_lshl_add_u32 v13, v3, 11, v6")
        a("s_lshl_b32 s%d, s%d, 10\nv_lshlrev_b32 v236, 4, v1\nv_add_u32 v236, s%d, v236\nv_xor_b32 v255, 0x800, v236" % (sA, sW, sA))
        a("v_mul_u32_u24 v240, 28672, v4\nv_add3_u32 v240, v240, v253, v248")
        a("v_and_b32 v5, 15, v1\nv_lshlrev_b32 v6, 4, v5\nv_lshl_add_u32 v239, v3, 16, v6")
        a("v_and_b32 v6, 1, v1\nv_lshl_add_u32 v237, v3, 1, v6\nv_lshlrev_b32 v237, 8, v237")
        a("v_lshrrev_b32 v5, 1, v5\nv_lshl_add_u32 v237, v5, 4, v237")
        a("v_lshlrev_b32 v238, 3, v6\nv_lshl_add_u32 v238, v4, 7, v238\nv_bfe_u32 v5, v1, 1, 1\nv_lshl_add_u32 v238, v5, 8, v238")
        a("v_bfe_u32 v5, v1, 2, 3\nv_lshl_add_u32 v238, v5, 4, v238")
        a("v_lshrrev_b32 v4, 3, v1\nv_lshl_add_u32 v241, v4, 13, v7")
        a("v_lshlrev_b32 v243, 7, v244\nv_lshl_add_u32 v243, v4, 4, v243")
        a("v_lshlrev_b32 v242, 7, v1\nv_lshlrev_b32 v245, 1, v3")
        a("s_lshl_b32 s%d, s%d, 2\nv_mov_b32 v10, s%d" % (sA, sOK, sA))
        a("s_lshl_b32 s%d, s%d, 1\ns_add_u32 s%d, s%d, s%d\ns_lshl_b32 s%d, s%d, 16" % (sA, sH, sA, sA, sOK, sA, sA))
        a("s_lshl_b32 s%d, s%d, 7\ns_add_u32 s%d, s%d, s%d\ns_add_u32 s%d, s%d, 0x%x" % (sC, sRB, sA, sA, sC, sP, sA, FX))
        a("s_and_b32 s%d, s%d, 3\ns_lshl_b32 s%d, s%d, 1\ns_add_u32 s%d, s%d, s%d\ns_lshl_b32 s%d, s%d, 4" % (sH, sS, sH, sH, sH, sH, sOK, sH, sH))
        a("s_lshl_b32 s%d, s%d, 13\ns_add_u32 s%d, s%d, s%d\ns_add_u32 s%d, s%d, 0x%x" % (sA, sRB, sA, sA, sH, sP + 1, sA, FX))
        a("s_lshr_b32 s%d, s%d, 4\ns_and_b32 s%d, s%d, 8\ns_add_u32 s%d, s%d, s%d" % (sA, sRB, sC, sRB, sA, sA, sC))
        a("s_and_b32 s%d, s%d, 1\ns_lshl_b32 s%d, s%d, 2\ns_add_u32 s%d, s%d, s%d\ns_lshl_b32 s%d, s%d, 7" % (sC, sRB, sC, sC, sA, sA, sC, sA, sA))
        a("s_add_u32 s%d, s%d, s%d\ns_and_b32 s%d, s%d, 2\ns_lshl_b32 s%d, s%d, 2\ns_add_u32 s%d, s%d, s%d" % (sH, sH, sA, sC, sRB, sC, sC, sH, sH, sC))
        a("s_and_b32 s%d, s%d, 4\ns_lshl_b32 s%d, s%d, 9\ns_add_u32 s%d, s%d, s%d" % (sC, sRB, sC, sC, sKS, sH, sC))
        self.sel_x()
        a("v_lshlrev_b32 v4, 4, v1\nv_mov_b32 v3, 0x0c0c0100\nv_alignbit_b32 v5, v3, v3, v4")
        a("v_mov_b32 v3, 0x0c0c0302\nv_alignbit_b32 v6, v3, v3, v4\nv_bfe_u32 v7, v1, 1, 2\nv_mov_b32 v4, 0x0c0c0c0c")
        for j in range(4):
            a("v_cmp_eq_u32 vcc, %d, v7\nv_cndmask_b32 v%d, v4, v5, vcc\nv_cndmask_b32 v%d, v4, v6, vcc" % (j, SEL + j, SEL + 4 + j))
        a("s_lshl_b32 s%d, s%d, 9\ns_waitcnt lgkmcnt(0)" % (sC, sW))
        self.tags()
        a("s_barrier")
        a("s_cmp_lg_u32 s%d, 0\ns_cbranch_scc1 L_noq" % sW)
        for k in range(4):
            a("ds_read_b128 %s, v237 offset:%d" % (vr(GU + 4 * k), RQ + 1024 * k))
        a("s_waitcnt lgkmcnt(0)")
        self.sum4(GU)
        self.tag4(248, [GU, GU + 1, GU + 2, GU + 3])
        a("s_mov_b32 exec_hi, 0")
        a("buffer_store_dwordx4 v[248:251], v239, %s, s%d offen sc1" % (srd("ws"), sF))
        a("s_mov_b32 exec_hi, -1")
        a("L_noq:")
        self.stamp(2)
        self.load(GU, 254, "x", "s%d" % sC)
        self.load(GU + 4, 253, "gw", "s%d" % sC)
        a("ds_read_b128 v[16:19], v236 offset:%d\nds_read_b128 v[20:23], v236 offset:%d\ns_waitcnt lgkmcnt(0)" % (XS, XS + 4096))
        self.x_operands()
        a("s_waitcnt vmcnt(0)")
        self.ack(1)
        t = GU + 8
        for j in range(4):
            a("v_lshlrev_b32 v%d, 16, v%d\nv_lshlrev_b32 v%d, 16, v%d" % (t + j, GU + j, t + 4 + j, GU + 4 + j))
            a("v_and_b32 v%d, 0xffff0000, v%d\nv_and_b32 v%d, 0xffff0000, v%d" % (GU + j, GU + j, GU + 4 + j, GU + 4 + j))
        for j in range(4):
            a("v_mul_f32 v%d, v%d, v%d\nv_mul_f32 v%d, v%d, v%d" % (t + j, t + j, t + 4 + j, GU + j, GU + j, GU + 4 + j))
        for j in range(4):
            self.rnd(t + j, t + j); self.rnd(GU + j, GU + j)
        for j in range(4):
            a("v_add_f32 v%d, v%d, v%d" % (t + j, t + j, GU + j))
        a("v_add_f32 v%d, v%d, v%d\nv_add_f32 v%d, v%d, v%d\nv_add_f32 v4, v%d, v%d" % (t, t, t + 1, t + 2, t + 2, t + 3, t, t + 2))
        for n in (8, 4, 2, 1):
            self.dpp("v_add_f32", 4, 4, 4, "row_ror:%d" % n)
        self.rows_allreduce("v_add_f32", 4, 3, (16,))
        a("ds_write_b32 v235, v4 offset:%d" % GP)
        a("s_waitcnt lgkmcnt(0)")
        a("s_barrier")
        self.stamp(3)

        def issue(i):
            if i < 16:
                self.load(GU + 4 * i, 246 if i >= 8 else 11, "wu" if i >= 8 else "wg", "s%d" % sB, 0, pol)
                if i == 7:
                    a("s_sub_u32 s%d, s%d, %d" % (sB, sB, 7 * 14336))
                elif i < 15:
                    a("s_add_u32 s%d, s%d, 14336" % (sB, sB))
            elif i < 24:
                k = i - 16
                m = (k >> 1) + 4 * (k & 1)
                self.load(WO + 4 * m, 12, "wo", "s%d" % sD, 2048 * (k & 1), pol)
                if k & 1 and k < 7:
                    a("s_add_u32 s%d, s%d, 0x10000" % (sD, sD))
            else:
                m = i - 24
                self.load(WD + 4 * m, 13, "wd", "s%d" % sE, 0, pol)
                if m < 6:
                    a("s_add_u32 s%d, s%d, 0x2000" % (sE, sE))

        for i in range(W):
            issue(i)
        a("ds_read_b128 v[4:7], v234 offset:%d\ns_waitcnt lgkmcnt(0)" % GP)
        a("v_add_f32 v4, v4, v5\nv_add_f32 v6, v6, v7\nv_add_f32 v4, v4, v6")
        self.rnd(4, 4)
        self.sigmoid(VG, 4)
        a("v_sub_f32 v%d, 1.0, v%d" % (VG + 1, VG))
        self.rnd(VG + 1, VG + 1)
        for i in range(max(31 - W, 16)):
            if i + W < 31:
                a("s_waitcnt vmcnt(%d)" % (W - 1))
                issue(i + W)
            else:
                a("s_waitcnt vmcnt(%d)" % (30 - i))
            if i < 16:
                d = 40 + 8 * (i >> 3)
                self.mf16(d, 24 + 2 * (i & 7), GU + 4 * i, i & 7 == 0)
                self.mf16(d + 4, 24 + 2 * (i & 7), GU + 4 * i + 2, i & 7 == 0)
            last = max(31 - W, 16) - 1
            for flag, step in ((F_T, o["to"]), (F_T + 2, o["th"])):
                if i == min(step + 8, last):
                    a("ds_write_b8 v244, v8 offset:%d" % flag)
                elif i == step:
                    a("ds_write_b8 v247, v8 offset:%d" % flag)
            if i == 15:
                for r in range(4):
                    a("v_permlane16_swap_b32 v%d, v%d" % (40 + r, 44 + r))
                for r in range(4):
                    a("v_permlane16_swap_b32 v%d, v%d" % (48 + r, 52 + r))
                for r in range(4):
                    self.dpp("v_add_f32", 40 + r, 44 + r, 40 + r, "row_ror:8", 0x3)
                for r in range(4):
                    self.dpp("v_add_f32", 40 + r, 48 + r, 52 + r, "row_ror:8", 0xc)
                a("ds_write_b128 v236, v[40:43] offset:%d" % RH)
                self.last_arriver(C_H, "L_noh")
                for k in range(4):
                    a("ds_read2st64_b64 %s, v238 offset0:%d offset1:%d" % (vr(GU + 4 * k), RH // 512 + 2 * k, RH // 512 + 2 * k + 1))
                a("s_waitcnt lgkmcnt(0)")
                self.sum4(GU)
                self.tag4(GU, [GU, GU + 1, GU + 2, GU + 3])
                a("buffer_store_dwordx4 %s, v240, %s, s%d offen sc1" % (vr(GU), srd("ws"), sG))
                a("L_noh:")
                self.stamp(4)
        self.stamp(5)

        def image(lbl, flag, img):
            a("%s:" % lbl)
            self.guard()
            a("ds_read_u8 v3, v244 offset:%d\nds_read_b128 %s, v243 offset:%d" % (flag, vr(Y), img))
            a("s_waitcnt lgkmcnt(0)\nv_cmp_ne_u32 vcc, 1, v3\ns_cbranch_vccnz %s" % lbl)

        def operands(m):
            for j in range(4):
                a("v_perm_b32 v%d, v%d, v%d, v%d" % (AO + 4 * m + j, Y + (m >> 1), Y + (m >> 1), SEL + 4 * (m & 1) + j))

        image("L_oi", F_IM, IM)
        self.stamp(6)
        operands(0)
        a("s_waitcnt vmcnt(7)")
        for m in range(8):
            if m < 7:
                operands(m + 1)
            self.mf32(DA, AO + 4 * m, WO + 4 * m, m == 0)
        image("L_hi", F_IM + 2, IM + 256)
        self.stamp(7)
        operands(0)
        for m in range(7):
            if m < 6:
                operands(m + 1)
            else:
                for r in range(4):
                    a("v_mul_f32 v%d, v%d, v%d" % (DA + r, VG, DA + r))
            a("s_waitcnt vmcnt(%d)" % (6 - m))
            self.mf32(DB, AO + 4 * m, WD + 4 * m, m == 0)
        for r in range(4):
            a("v_fmac_f32 v%d, v%d, v%d" % (DA + r, VG + 1, DB + r))
        a("ds_write_b128 v236, %s offset:%d" % (vr(DA), RF))
        self.stamp(8)
        a("s_mov_b64 exec, 1\nds_add_rtn_u32 v3, v10, v8 offset:%d\ns_mov_b64 exec, -1" % C_F)
        a("ds_read_b128 %s, v255 offset:%d" % (vr(DB), RF))
        a("s_waitcnt lgkmcnt(0)\nv_readfirstlane_b32 s%d, v3" % sA)
        for r in range(4):
            a("v_add_f32 v%d, v%d, v%d" % (DA + r, DA + r, DB + r))
        a("s_cmp_lg_u32 s%d, 1\ns_cbranch_scc1 L_end" % sA)
        self.tag4(DA, [DA + r for r in range(4)])
        a("buffer_store_dwordx4 %s, v241, %s, s%d offen sc1" % (vr(DA), srd("ws"), sP))
        self.stamp(9)
        a("L_fin:")
        self.guard()
        self.load(40, 242, "ws", "s%d" % (sP + 1), 0, o["rpol"])
        a("s_waitcnt vmcnt(0)")
        self.untag(40, 1, 3)
        a("s_cbranch_vccnz L_fin")
        self.stamp(10)
        self.rows_scatter_sum([40])
        for n in (8, 4, 2, 1):
            self.dpp("v_add_f32", 40, 40, 40, "row_ror:%d" % n)
        self.rnd(40, 40)
        a("s_mov_b32 exec_lo, 0x00010001\ns_mov_b32 exec_hi, 0x00010001")
        a("buffer_store_short_d16_hi v40, v245, %s, s%d offen %s" % (srd("out"), sKS, o["outpol"]))
        a("s_cmp_lg_u32 s2, 0\ns_cbranch_scc1 L_end")
        a("s_mov_b64 exec, 1\nv_mov_b32 v3, s%d\nbuffer_store_dword v3, v9, %s, 0 offen sc1" % (sT, srd("ws")))

    def epilogue(self):
        a = self.a
        a("L_end:")
        if self.o["stamps"]:
            a("s_mov_b64 exec, 1\ns_waitcnt vmcnt(0)")
            self.stamp(NST - 1)
            a("s_waitcnt lgkmcnt(0)")
            a("s_lshl_b32 s%d, s3, 8\ns_add_u32 s%d, s%d, s2\ns_mul_i32 s%d, s%d, %d\ns_add_u32 s%d, s%d, 0x%x" % (
                sA, sA, sA, sA, sA, NST * 8, sA, sA, STAMP_OFF))
            a("v_mov_b32 v1, s%d" % sA)
            for i in range(NST):
                a("v_mov_b32 v4, s%d\nv_mov_b32 v5, s%d" % (sST + 2 * i, sST + 2 * i + 1))
                a("buffer_store_dwordx2 v[4:5], v1, %s, 0 offen offset:%d\ns_nop 1" % (srd("ws"), 8 * i))
        if self.o["hold"]:
            a("s_cmp_lg_u32 s3, %d\ns_cbranch_scc1 L_exit" % self.o["ampwave"])
            if self.o["ampwg"] is not None:
                a("s_cmp_lg_u32 s2, %d\ns_cbranch_scc1 L_exit" % self.o["ampwg"])
            a("s_waitcnt lgkmcnt(0)\ns_mov_b32 s%d, %d" % (sA, self.o["hold"]))
            if self.o["amp"]:
                a("s_sub_u32 s%d, s%d, s%d\ns_lshl_b32 s%d, s%d, 2\ns_and_b32 s%d, s%d, 0x3fff\ns_add_u32 s%d, s%d, s%d" % (
                    sB, sST + 2 * self.o["amp"], sST, sB, sB, sB, sB, sA, sA, sB))
            a("L_hold:\ns_memrealtime s[%d:%d]\ns_waitcnt lgkmcnt(0)\ns_sub_u32 s%d, s%d, s%d\ns_cmp_lt_u32 s%d, s%d\ns_cbranch_scc1 L_hold" % (
                sD, sD + 1, sD, sD, sST, sD, sA))
        a("L_exit:\ns_endpgm")

    def build(self):
        if self.o["stamps"]:
            for i in range(1, NST):
                self.a("s_mov_b64 s[%d:%d], 0" % (sST + 2 * i, sST + 2 * i + 1))
        self.prologue()
        self.a_waves()
        self.f_waves()
        self.epilogue()
        lab = NAME + "_kernel"
        lines = [l[:-3] + self.o["spol"] if "buffer_store_dwordx4" in l and l.endswith("sc1") else l for l in self.a.lines]
        body = "\n".join(hazard.pad(lines)) + "\n"
        return (header(["; @launch grid=(256,1,1) block=(512,1,1) lds=%d" % LDS_BYTES]) + kernel_open(lab) + body
                + RODATA + descriptor(lab, 256))


def main():
    out = sys.argv[1]
    kw = {}
    for s in sys.argv[2:]:
        k, v = s.split("=")
        try:
            v = int(v, 0)
        except ValueError:
            pass
        kw[k] = v.replace("+", " ") if isinstance(v, str) else v
    open(out, "w").write(Gen(**kw).build())


if __name__ == "__main__":
    main()
```

```python
import sys
from asmlib import *
import hazard

DEFAULTS = dict(wa=5, wf=5, pol="nt", stamps=False, spin=100000, outpol="sc1", wa0=8, qpos=7, to=13, th=22, pf=1, ilv=1, colmap=1, gpol="sc1", rpol="sc1", spol="sc1", diag=0, hold=0, amp=None, ampwave=0, ampwg=None)

QX, HX, FX, OX = 0x10000, 0x40000, 0x80000, 0x100000
STAMP_OFF = 128 << 20
F_Q, F_O, C_H, F_IM, C_F, F_T = 0, 4, 8, 12, 16, 24
GP, MLL, IM = 64, 256, 512
RQ, RH, RF, QI, OL = 2048, 6144, 10240, 14336, 16640
XS = OL + 4 * 4224
LDS_BYTES = XS + 8192
SRD = dict(x=4, wq=8, k=12, v=16, wg=20, wu=24, wo=28, wd=32, gw=36, ws=40, out=44)
sX, sS, sW, sT, sT0, sCNT = 48, 49, 50, 51, 52, 56
sA, sB, sC, sD, sE, sF, sG, sH, sRB, sKS = 57, 58, 59, 60, 61, 62, 63, 64, 65, 66
sOK, sP, sR = 67, 68, 94
sST = 70
NST = 12
OOB = 0x7f000000
LOG2E = 0x3fb8aa3b
SCALE = 0x3db504f3
KVBASE = (32768 - 4096) * 256


def srd(n):
    return "s[%d:%d]" % (SRD[n], SRD[n] + 3)


def vr(b, n=4):
    return "v[%d:%d]" % (b, b + n - 1)


class VM:
    def __init__(self, a):
        self.a, self.q = a, []

    def note(self, name):
        self.q.append(name)

    def wait(self, name):
        self.a("s_waitcnt vmcnt(%d)" % (len(self.q) - 1 - self.q.index(name)))


class Gen:
    def __init__(self, **kw):
        self.o = dict(DEFAULTS)
        self.o.update(kw)
        self.a = Asm()

    def stamp(self, i):
        if self.o["stamps"] or (self.o["hold"] and i in (0, self.o["amp"])):
            self.a("s_memrealtime s[%d:%d]" % (sST + 2 * i, sST + 2 * i + 1))

    def count(self, unit):
        if self.o["diag"]:
            self.a("s_add_u32 s%d, s%d, %d" % (sST + 2, sST + 2, 100 * unit))

    def ack(self, i):
        if self.o["diag"]:
            self.a("s_waitcnt vmcnt(0)")
            self.stamp(i)

    def ptr(self, n):
        self.a("s_load_dwordx2 s[%d:%d], s[0:1], %d" % (SRD[n], SRD[n] + 1, KARG[n]))

    def desc(self, n):
        self.a("s_mov_b32 s%d, 0x%x\ns_mov_b32 s%d, 0x20000" % (SRD[n] + 2, SIZE[n], SRD[n] + 3))

    def guard(self):
        self.a("s_sub_u32 s%d, s%d, 1\ns_cbranch_scc1 L_end" % (sCNT, sCNT))

    def load(self, dst, voff, buf, soff, imm=0, pol=""):
        self.a("buffer_load_dwordx4 %s, v%d, %s, %s offen%s%s" % (
            vr(dst), voff, srd(buf), soff, " offset:%d" % imm if imm else "", " " + pol if pol else ""))

    def flag_wait(self, lbl, vaddr, flag):
        self.a("%s:" % lbl)
        self.guard()
        self.a("ds_read_u8 v3, v%d offset:%d\ns_waitcnt lgkmcnt(0)\nv_cmp_ne_u32 vcc, 1, v3\ns_cbranch_vccnz %s" % (vaddr, flag, lbl))

    def tags(self):
        a = self.a
        a("s_add_u32 s%d, s%d, 0x01010101" % (sT, sT))
        a("s_and_b32 s%d, s%d, 0xff" % (sT0, sT))
        a("s_bfe_u32 s%d, s%d, 0x80008" % (sT0 + 1, sT))
        a("s_bfe_u32 s%d, s%d, 0x80010" % (sT0 + 2, sT))
        a("s_lshr_b32 s%d, s%d, 24" % (sT0 + 3, sT))

    def tag4(self, dst, src):
        for j in range(4):
            self.a("v_bfi_b32 v%d, v2, s%d, v%d" % (dst + j, sT0 + j, src[j]))

    def untag(self, base, n, acc, cmp=True, also=None):
        a = self.a
        regs = list(range(base, base + 4 * n))
        for r in regs:
            a("v_xor_b32 v%d, s%d, v%d" % (r, sT0 + (r - base) % 4, r))
        a("v_or_b32 v%d, v%d, v%d" % (acc, regs[0], regs[1]))
        for i in range(2, len(regs), 2):
            a("v_or3_b32 v%d, v%d, v%d, v%d" % (acc, acc, regs[i], regs[i + 1]))
        if also is not None:
            a("v_or_b32 v%d, v%d, v%d" % (acc, acc, also))
        if cmp:
            a("v_and_b32 v%d, v2, v%d" % (acc, acc))
            a("v_cmp_ne_u32 vcc, 0, v%d" % acc)

    def dpp(self, op, d, s0, s1, ctl, bank=0xf):
        self.a("%s_dpp v%d, v%d, %s%s row_mask:0xf bank_mask:0x%x" % (
            op, d, s0, "v%d " % s1 if s1 is not None else "", ctl, bank) if s1 is not None else
            "%s_dpp v%d, v%d %s row_mask:0xf bank_mask:0x%x" % (op, d, s0, ctl, bank))

    def rows_allreduce(self, op, x, t, which=(16, 32)):
        for n in which:
            self.a("v_mov_b32 v%d, v%d\nv_permlane%d_swap_b32 v%d, v%d\n%s v%d, v%d, v%d" % (t, x, n, x, t, op, x, x, t))

    def rows_scatter_sum(self, sets):
        a = self.a
        for b in sets:
            a("v_permlane32_swap_b32 v%d, v%d\nv_permlane32_swap_b32 v%d, v%d" % (b, b + 2, b + 1, b + 3))
        for b in sets:
            a("v_add_f32 v%d, v%d, v%d\nv_add_f32 v%d, v%d, v%d" % (b, b, b + 2, b + 1, b + 1, b + 3))
        for b in sets:
            a("v_permlane16_swap_b32 v%d, v%d" % (b, b + 1))
        for b in sets:
            a("v_add_f32 v%d, v%d, v%d" % (b, b, b + 1))

    def rnd(self, d, s):
        self.a("v_cvt_pk_bf16_f32 v%d, 0, v%d" % (d, s))

    def sigmoid(self, d, z):
        a = self.a
        a("v_mul_f32 v%d, 0x%x, v%d" % (d, LOG2E ^ 0x80000000, z))
        a("v_exp_f32 v%d, v%d\nv_add_f32 v%d, 1.0, v%d\nv_rcp_f32 v%d, v%d" % (d, d, d, d, d, d))
        self.rnd(d, d)

    def sel_x(self):
        a = self.a
        a("v_bfe_u32 v3, v1, 2, 1\nv_mul_u32_u24 v3, 0x202, v3\nv_add_u32 v3, 0x0c0c0100, v3")
        a("v_lshlrev_b32 v4, 4, v1\nv_alignbit_b32 v3, v3, v3, v4")
        a("v_and_b32 v4, 2, v1\nv_cmp_eq_u32 vcc, 0, v4\nv_mov_b32 v4, 0x0c0c0c0c")
        a("v_cndmask_b32 v14, v4, v3, vcc\nv_cndmask_b32 v15, v3, v4, vcc")

    def x_operands(self):
        for m in range(8):
            self.a("v_perm_b32 v%d, v%d, v%d, v14\nv_perm_b32 v%d, v%d, v%d, v15" % (
                24 + 2 * m, 16 + m, 16 + m, 25 + 2 * m, 16 + m, 16 + m))

    def mf16(self, d, av, bv, first):
        self.a("v_mfma_f32_16x16x16_bf16 %s, %s, %s, %s" % (vr(d), vr(av, 2), vr(bv, 2), "0" if first else vr(d)))

    def mf32(self, d, av, bv, first):
        self.a("v_mfma_f32_16x16x32_bf16 %s, %s, %s, %s" % (vr(d), vr(av), vr(bv), "0" if first else vr(d)))

    def sum4(self, b):
        for r in range(4):
            self.a("v_add_f32 v%d, v%d, v%d\nv_add_f32 v%d, v%d, v%d" % (b + r, b + r, b + 4 + r, b + 8 + r, b + 8 + r, b + 12 + r))
        for r in range(4):
            self.a("v_add_f32 v%d, v%d, v%d" % (b + r, b + r, b + 8 + r))

    def last_arriver(self, cnt, skip):
        a = self.a
        a("s_mov_b64 exec, 1\nds_add_rtn_u32 v3, v9, v8 offset:%d\ns_mov_b64 exec, -1" % cnt)
        a("s_waitcnt lgkmcnt(0)\nv_readfirstlane_b32 s%d, v3\ns_cmp_lg_u32 s%d, 3\ns_cbranch_scc1 %s" % (sA, sA, skip))

    def prologue(self):
        a = self.a
        self.stamp(0)
        a("s_cmp_ge_u32 s2, 256\ns_cbranch_scc1 L_exit")
        for n in ("x", "wq", "ws"):
            self.ptr(n)
        a("v_lshrrev_b32 v3, 6, v0\nv_and_b32 v1, 63, v0")
        a("s_and_b32 s%d, s2, 7\ns_lshr_b32 s%d, s2, 3" % (sX, sS))
        a("v_readfirstlane_b32 s3, v3")
        a("s_lshr_b32 s%d, s%d, 1" % (sKS, sX))
        self.desc("x")
        a("v_bfe_u32 v5, v1, 3, 1\nv_and_b32 v6, 0x30, v1\nv_and_b32 v7, 7, v1")
        a("s_and_b32 s%d, s3, 3" % sW)
        a("v_lshlrev_b32 v10, 11, v5\nv_lshl_add_u32 v10, v6, 1, v10")
        a("v_or_b32 v6, v6, v5\nv_lshlrev_b32 v7, 4, v7")
        a("s_lshl_b32 s%d, s%d, 2\ns_add_u32 s%d, s%d, s%d" % (sB, sKS, sB, sB, sW))
        a("s_lshl_b32 s%d, s%d, 7" % (sA, sB))
        a("s_cmp_ge_u32 s3, 4\ns_cbranch_scc1 L_F")

    def a_waves(self):
        a, o = self.a, self.o
        W, pol = o["wa"], o["pol"]
        WQ, KD, VD, VT, PV, QG, QB, SD = 48, 80, 112, 144, 176, 208, 224, 232
        self.ptr("k"); self.ptr("v")
        self.desc("wq")
        a("v_lshl_add_u32 v11, v6, 13, v7")
        a("s_and_b32 s%d, s%d, 1\ns_lshl_b32 s%d, s%d, 5\ns_add_u32 s%d, s%d, s%d\ns_xor_b32 s%d, s%d, 2" % (sC, sX, sC, sC, sC, sC, sS, sC, sC))
        a("s_lshl_b32 s%d, s%d, 7\ns_lshl_b32 s%d, s%d, 19\ns_add_u32 s%d, s%d, s%d" % (sC, sC, sB, sB, sB, sB, sC))
        a("s_waitcnt lgkmcnt(0)")
        vm = VM(a)
        self.load(16, 10, "x", "s%d" % sA)
        self.load(20, 10, "x", "s%d" % sA, 16)
        vm.note("x0"); vm.note("x1")

        def q_loads(v, p=o["gpol"]):
            for ks in range(4):
                self.load(QG + 4 * ks, v, "ws", "s%d" % sF, ks * 1024, p)

        def issue(i):
            if i < 8:
                self.load(WQ + 4 * i, 11, "wq", "s%d" % sB, 0, pol)
                if i < 7:
                    a("s_add_u32 s%d, s%d, 0x4000" % (sB, sB))
            elif i < 16:
                oc, hh = (i - 8) >> 1, (i - 8) & 1
                self.load(KD + 4 * (i - 8), 12, "k", "s%d" % (sD if oc < 2 else sE), (oc & 1) * 512 + hh * 128, pol)
            else:
                m = i - 16
                self.load(VD + 4 * m, 13, "v", "s%d" % (sD if m < 4 else sE), (m & 3) * 1024, pol)
            vm.note(i)
            if i == 16 + o["qpos"]:
                q_loads(13)
                for ks in range(4):
                    vm.note("q%d" % ks)

        W0 = o["wa0"]
        assert W0 <= 8
        for i in range(W0):
            issue(i)
        if o["diag"]:
            a("s_mov_b64 s[%d:%d], s[%d:%d]" % (sST + 2, sST + 3, sST, sST + 1))
        else:
            self.stamp(1)
        a("s_load_dword s%d, s[%d:%d], 0" % (sT, SRD["ws"], SRD["ws"] + 1))
        self.desc("k"); self.desc("v"); self.desc("ws")
        a("s_lshl_b32 s%d, s%d, 23\ns_lshl_b32 s%d, s%d, 15\ns_add_u32 s%d, s%d, s%d" % (sD, sX, sE, sS, sD, sD, sE))
        a("s_lshl_b32 s%d, s%d, 13\ns_add_u32 s%d, s%d, s%d\ns_add_u32 s%d, s%d, 0x%x" % (sE, sW, sD, sD, sE, sD, sD, KVBASE))
        a("s_add_u32 s%d, s%d, 0x1000" % (sE, sD))
        a("v_and_b32 v3, 3, v1\nv_bfe_u32 v4, v1, 2, 1\nv_lshl_add_u32 v3, v3, 2, v4")
        a("v_lshrrev_b32 v4, 3, v1\nv_lshlrev_b32 v4, 4, v4\nv_lshl_add_u32 v12, v3, 8, v4")
        a("v_lshlrev_b32 v13, 4, v1")
        a("v_mov_b32 v2, 0xff\nv_mov_b32 v8, 1\nv_mov_b32 v9, 0\ns_mov_b32 s%d, %d" % (sCNT, o["spin"]))
        self.sel_x()
        a("s_lshl_b32 s%d, s%d, 3\ns_lshr_b32 s%d, s%d, 2\ns_add_u32 s%d, s%d, s%d" % (sRB, sX, sA, sS, sRB, sRB, sA))
        a("s_lshl_b32 s%d, s%d, 10\nv_add_u32 v5, s%d, v13" % (sA, sW, sA))
        a("s_lshl_b32 s%d, s%d, 14\ns_lshl_b32 s%d, s%d, 12\ns_add_u32 s%d, s%d, s%d\ns_add_u32 s%d, s%d, 0x%x" % (
            sF, sX, sA, sW, sF, sF, sA, sF, sF, QX))
        a("s_mov_b32 s%d, 0x05040100\ns_mov_b32 s%d, 0x07060302" % (sG, sH))
        vm.wait("x1")
        a("ds_write_b128 v5, v[16:19] offset:%d\nds_write_b128 v5, v[20:23] offset:%d" % (XS, XS + 4096))
        self.x_operands()
        n = W0
        for i in range(24 - W):
            if i < 8 or n < i + 1 + W:
                vm.wait(i)
            while n < i + 1 + W:
                issue(n)
                n += 1
            if i < 8:
                self.mf16(40, 24 + 2 * i, WQ + 4 * i, i == 0)
                self.mf16(44, 24 + 2 * i, WQ + 4 * i + 2, i == 0)
            if i == 7:
                for r in range(4):
                    a("v_permlane16_swap_b32 v%d, v%d" % (40 + r, 44 + r))
                for r in range(4):
                    self.dpp("v_add_f32", 40 + r, 44 + r, 40 + r, "row_ror:8")
                a("ds_write_b128 v5, v[40:43] offset:%d" % RQ)
                a("s_waitcnt lgkmcnt(0)\ns_barrier")
                self.stamp(2)
                self.tags()
        a("s_barrier")
        self.stamp(3)
        a("v_lshrrev_b32 v3, 5, v1\ns_lshl_b32 s%d, s%d, 1\nv_add_u32 v3, s%d, v3" % (sA, sW, sA))
        a("v_and_b32 v4, 31, v1\nv_mul_u32_u24 v16, 272, v3\nv_lshl_add_u32 v16, v4, 3, v16")
        a("v_mul_u32_u24 v20, 528, v3\nv_lshl_add_u32 v20, v4, 4, v20\nv_lshlrev_b32 v21, 5, v3")
        a("v_lshrrev_b32 v4, 3, v4\nv_lshl_add_u32 v23, v3, 2, v4\nv_lshl_add_u32 v23, v23, 13, v7")
        a("v_and_b32 v3, 7, v1\nv_lshrrev_b32 v4, 3, v1\nv_mul_u32_u24 v17, 272, v3\nv_lshl_add_u32 v17, v4, 4, v17")
        a("v_mul_u32_u24 v18, 528, v3\nv_and_b32 v5, 0x30, v1\ns_mul_i32 s%d, s%d, 4224\nv_add3_u32 v18, v18, v5, s%d" % (sA, sW, sA))
        a("s_lshl_b32 s%d, s%d, 3\nv_lshlrev_b32 v19, 5, v3\nv_add_u32 v19, s%d, v19" % (sA, sW, sA))
        a("v_mov_b32 v22, s%d" % sW)
        vm.wait("q3")
        a("L_qchk:")
        self.untag(QG, 4, 3)
        a("s_cbranch_vccz L_qok")
        self.guard()
        q_loads(13, o["rpol"])
        self.count(1)
        a("s_waitcnt vmcnt(0)\ns_branch L_qchk\nL_qok:")
        self.stamp(4)
        self.sum4(QG)
        a("v_cvt_pk_bf16_f32 v4, v%d, v%d\nv_cvt_pk_bf16_f32 v5, v%d, v%d" % (QG, QG + 1, QG + 2, QG + 3))
        a("ds_write_b64 v16, v[4:5] offset:%d\nds_write_b8 v22, v8 offset:%d" % (QI, F_Q))
        a("s_mov_b32 s%d, 0x01010101" % sA)
        a("L_qi:")
        self.guard()
        a("ds_read_b32 v3, v9 offset:%d" % F_Q)
        a("ds_read_b128 %s, v17 offset:%d\nds_read_b128 %s, v17 offset:%d" % (vr(QB), QI, vr(QB + 4), QI + 128))
        a("s_waitcnt lgkmcnt(0)\nv_cmp_ne_u32 vcc, s%d, v3\ns_cbranch_vccnz L_qi" % sA)
        for hh in range(2):
            for oc in range(4):
                self.mf32(SD + 4 * oc, KD + 8 * oc + 4 * hh, QB + 4 * hh, hh == 0)
        for p in range(2):
            for r in range(4):
                a("v_permlane32_swap_b32 v%d, v%d" % (SD + 8 * p + r, SD + 8 * p + 4 + r))
        for r in range(4):
            self.dpp("v_add_f32", 28 + r, SD + 4 + r, SD + r, "row_ror:8", 0x3)
        for r in range(4):
            self.dpp("v_add_f32", 28 + r, SD + 8 + r, SD + 12 + r, "row_ror:8", 0xc)
        for r in range(4):
            self.rnd(28 + r, 28 + r)
        for r in range(4):
            a("v_mul_f32 v%d, 0x%x, v%d" % (28 + r, SCALE, 28 + r))
        for r in range(4):
            self.rnd(28 + r, 28 + r)
        a("v_max3_f32 v32, v28, v29, v30\nv_max_f32 v32, v32, v31")
        self.dpp("v_max_f32", 32, 32, 32, "row_ror:8")
        self.rows_allreduce("v_max_f32", 32, 3)
        a("s_mov_b32 s%d, 0x%x" % (sB, LOG2E))
        for r in range(4):
            a("v_sub_f32 v%d, v%d, v32" % (28 + r, 28 + r))
        for r in range(4):
            a("v_mul_f32 v%d, s%d, v%d" % (28 + r, sB, 28 + r))
        for r in range(4):
            a("v_exp_f32 v%d, v%d" % (28 + r, 28 + r))
        a("v_cvt_pk_bf16_f32 v36, v28, v29\nv_cvt_pk_bf16_f32 v37, v30, v31")
        a("v_add_f32 v33, v28, v29\nv_add_f32 v30, v30, v31")
        self.dpp("v_mov_b32", 38, 36, None, "row_ror:8")
        self.dpp("v_mov_b32", 39, 37, None, "row_ror:8")
        a("v_add_f32 v33, v33, v30")
        self.dpp("v_add_f32", 33, 33, 33, "row_ror:8")
        self.rows_allreduce("v_add_f32", 33, 3)
        for j in range(4):
            vm.wait(16 + 2 * j + 1)
            for e in range(8):
                a("v_perm_b32 v%d, v%d, v%d, s%d" % (VT + 4 * e + j, VD + 8 * j + 4 + (e >> 1), VD + 8 * j + (e >> 1), sH if e & 1 else sG))
        for e in range(8):
            self.mf32(PV + 4 * e, VT + 4 * e, 36, True)
        a("s_mov_b32 exec_lo, 0x00ff00ff\ns_mov_b32 exec_hi, 0x00ff00ff")
        for e in range(8):
            a("ds_write_b128 v18, %s offset:%d" % (vr(PV + 4 * e), OL + 64 * e))
        a("ds_write_b64 v19, v[32:33] offset:%d" % MLL)
        a("ds_write_b8 v22, v8 offset:%d" % F_O)
        a("s_mov_b64 exec, -1")
        a("s_and_b32 s%d, s%d, 3\ns_lshl_b32 s%d, s%d, 18" % (sC, sX, sC, sC))
        a("s_lshr_b32 s%d, s%d, 2\ns_lshl_b32 s%d, s%d, 1\ns_add_u32 s%d, s%d, s%d" % (sD, sX, sE, sS, sD, sD, sE))
        a("s_lshl_b32 s%d, s%d, 7\ns_add_u32 s%d, s%d, s%d\ns_add_u32 s%d, s%d, 0x%x" % (sD, sD, sC, sC, sD, sC, sC, OX))
        a("s_mov_b32 s%d, 0x07060501\ns_mov_b32 s%d, 0x07060502\ns_mov_b32 s%d, 0x07060503" % (sD, sE, sF))
        a("L_ox:")
        self.guard()
        a("ds_read_b32 v3, v9 offset:%d" % F_O)
        a("ds_read_b128 v[28:31], v21 offset:%d\nds_read_b128 v[32:35], v21 offset:%d" % (MLL, MLL + 16))
        for k in range(4):
            a("ds_read_b128 %s, v20 offset:%d" % (vr(QG + 4 * k), OL + 4224 * k))
        a("s_waitcnt lgkmcnt(0)\nv_cmp_ne_u32 vcc, s%d, v3\ns_cbranch_vccnz L_ox" % sA)
        a("v_max3_f32 v36, v28, v30, v32\nv_max_f32 v36, v36, v34")
        for k in range(4):
            a("v_sub_f32 v%d, v%d, v36" % (28 + 2 * k, 28 + 2 * k))
        for k in range(4):
            a("v_mul_f32 v%d, s%d, v%d" % (28 + 2 * k, sB, 28 + 2 * k))
        for k in range(4):
            a("v_exp_f32 v%d, v%d" % (28 + 2 * k, 28 + 2 * k))
        a("v_mul_f32 v37, v28, v29")
        for k in range(1, 4):
            a("v_fmac_f32 v37, v%d, v%d" % (28 + 2 * k, 29 + 2 * k))
        a("v_log_f32 v38, v37\nv_rcp_f32 v37, v37")
        for r in range(4):
            a("v_mul_f32 v%d, v28, v%d" % (QG + r, QG + r))
        a("v_fmac_f32 v38, s%d, v36" % sB)
        for k in range(1, 4):
            for r in range(4):
                a("v_fmac_f32 v%d, v%d, v%d" % (QG + r, 28 + 2 * k, QG + 4 * k + r))
        for r in range(4):
            a("v_mul_f32 v%d, v37, v%d" % (QG + r, QG + r))
        a("v_bfi_b32 v%d, v2, s%d, v%d" % (QG, sT0, QG))
        for r in range(1, 4):
            a("v_perm_b32 v%d, v%d, v38, s%d" % (QG + r, QG + r, sD + r - 1))
        a("buffer_store_dwordx4 %s, v23, %s, s%d offen sc1" % (vr(QG), srd("ws"), sC))
        self.stamp(5)
        self.ack(10)
        a("s_cmp_ge_u32 s%d, 2\ns_cbranch_scc1 L_H" % sW)
        a("s_lshl_b32 s%d, s%d, 1\ns_add_u32 s%d, s%d, s%d\ns_lshl_b32 s%d, s%d, 13" % (sC, sRB, sC, sC, sW, sC, sC))
        a("s_add_u32 s%d, s%d, 0x%x\ns_add_u32 s%d, s%d, 0x1000\ns_mov_b32 s%d, 0x0c04000c" % (sC, sC, OX, sD, sC, sE))
        a("s_lshl_b32 s%d, s%d, 7\nv_lshlrev_b32 v27, 1, v1\nv_add_u32 v27, s%d, v27" % (sA, sW, sA))
        self.flag_wait("L_to", 22, F_T)
        self.stamp(6)
        a("L_og:")
        self.guard()
        self.count(32)
        for m in range(8):
            self.load(WQ + 4 * m, 13, "ws", "s%d" % (sC if m < 4 else sD), (m & 3) * 1024, o["rpol"])
        for m in range(8):
            if m % 4 == 0:
                a("s_waitcnt vmcnt(%d)" % (4 - m))
            d = WQ + 4 * m
            a("v_xor_b32 v%d, s%d, v%d\nv_perm_b32 v%d, v%d, v%d, s%d" % (d, sT0, d, 28 + m, d + 2, d + 1, sE))
            a("v_lshl_or_b32 v%d, v%d, 24, v%d" % (28 + m, d + 3, 28 + m))
        a("v_or3_b32 v3, v%d, v%d, v%d\nv_or3_b32 v4, v%d, v%d, v%d" % tuple(WQ + 4 * m for m in range(6)))
        a("v_or3_b32 v3, v3, v%d, v%d\nv_or_b32 v3, v3, v4\nv_and_b32 v3, v2, v3\nv_cmp_ne_u32 vcc, 0, v3" % (WQ + 24, WQ + 28))
        a("v_max3_f32 v36, v28, v29, v30\nv_max3_f32 v37, v31, v32, v33\nv_max3_f32 v36, v36, v34, v35\nv_max_f32 v36, v36, v37")
        a("s_cbranch_vccnz L_og")
        self.rows_allreduce("v_max_f32", 36, 3)
        for m in range(8):
            a("v_sub_f32 v%d, v%d, v36" % (28 + m, 28 + m))
        for m in range(8):
            a("v_exp_f32 v%d, v%d" % (28 + m, 28 + m))
        for r in range(4):
            a("v_mul_f32 v%d, v28, v%d" % (40 + r, WQ + r))
        a("v_add_f32 v36, v28, v29")
        for m in range(1, 8):
            for r in range(4):
                a("v_fmac_f32 v%d, v%d, v%d" % (40 + r, 28 + m, WQ + 4 * m + r))
            if m > 1:
                a("v_add_f32 v36, v36, v%d" % (28 + m))
        self.rows_allreduce("v_add_f32", 36, 3)
        a("v_rcp_f32 v36, v36")
        self.rows_scatter_sum([40])
        a("v_mul_f32 v4, v36, v40")
        a("s_branch L_im")
        a("L_H:")
        a("s_lshl_b32 s%d, s%d, 1\ns_add_u32 s%d, s%d, s%d\ns_mul_i32 s%d, s%d, 224" % (sF, sRB, sF, sF, sW, sF, sF))
        a("s_add_u32 s%d, s%d, 0x%x\ns_add_u32 s%d, s%d, 28672" % (sF, sF, HX - 448, sG, sF))
        a("v_and_b32 v3, 15, v1\nv_min_u32 v3, 13, v3\nv_lshrrev_b32 v5, 4, v1")
        a("v_mul_u32_u24 v26, 57344, v5\nv_lshl_add_u32 v26, v3, 4, v26")
        a("v_and_b32 v4, 1, v3\nv_and_b32 v6, 1, v5\nv_lshl_add_u32 v4, v4, 1, v6\nv_and_b32 v3, 14, v3")
        a("v_lshl_add_u32 v27, v4, 5, v3\nv_lshrrev_b32 v5, 1, v5\nv_lshl_add_u32 v27, v5, 4, v27")
        a("s_lshl_b32 s%d, s%d, 7\nv_add_u32 v27, s%d, v27" % (sA, sW, sA))
        self.flag_wait("L_th", 22, F_T)
        self.stamp(6)
        a("L_hg:")
        self.guard()
        self.count(1024)
        self.load(QB, 26, "ws", "s%d" % sF, 0, o["rpol"])
        self.load(QB + 4, 26, "ws", "s%d" % sG, 0, o["rpol"])
        a("s_waitcnt vmcnt(0)")
        self.untag(QB, 2, 3)
        a("s_cbranch_vccnz L_hg")
        self.rows_scatter_sum([QB, QB + 4])
        self.rnd(4, QB)
        self.rnd(5, QB + 4)
        self.sigmoid(4, 4)
        a("v_mul_f32 v4, v4, v5")
        a("L_im:")
        self.rnd(4, 4)
        a("ds_write_b16_d16_hi v27, v4 offset:%d\nds_write_b8 v22, v8 offset:%d" % (IM, F_IM))
        self.stamp(7)
        a("s_waitcnt lgkmcnt(0)")
        a("s_branch L_end" if o["stamps"] or o["hold"] else "s_endpgm")

    def f_waves(self):
        a, o = self.a, self.o
        W, pol = o["wf"], o["pol"]
        SEL, GU, WO, WD, Y, AO, DA, DB, VG = 56, 64, 128, 160, 188, 192, 224, 228, 232
        a("L_F:")
        for n in ("gw", "wg", "wu", "wo", "wd", "out"):
            self.ptr(n)
        self.desc("gw")
        if o["pf"]:
            a("s_getpc_b64 s[%d:%d]\nL_pc:" % (sP, sP + 1))
            a("s_sub_u32 s%d, s%d, L_pc-%s_kernel\ns_subb_u32 s%d, s%d, 0" % (sP, sP, NAME, sP + 1, sP + 1))
            a("s_lshl_b32 s%d, s%d, 9\nv_lshl_add_u32 v250, v7, 2, s%d\nv_min_u32 v250, L_exit-%s_kernel, v250" % (sC, sS, sC, NAME))
            a("v_mov_b32 v251, s%d\nv_add_co_u32 v250, vcc, s%d, v250\ns_nop 1\nv_addc_co_u32 v251, vcc, 0, v251, vcc" % (sP + 1, sP))
            a("s_cmp_lg_u32 s%d, 0\ns_cbranch_scc1 L_nopf\nglobal_load_dword v252, v[250:251], off\nL_nopf:" % sW)
        a("v_and_b32 v3, 31, v1\nv_lshlrev_b32 v253, 4, v3\nv_lshrrev_b32 v4, 5, v1\nv_lshl_add_u32 v254, v4, 11, v253")
        a("v_mov_b32 v8, 1\nv_mov_b32 v9, 0\nv_mov_b32 v2, 0xff")
        a("s_waitcnt lgkmcnt(0)")
        a("s_load_dword s%d, s[%d:%d], 0" % (sT, SRD["ws"], SRD["ws"] + 1))
        self.stamp(1)
        for n in ("ws", "wg", "wu", "wo", "wd", "out"):
            self.desc(n)
        a("v_lshlrev_b32 v3, 2, v1\nv_and_b32 v3, 31, v3\nds_write_b32 v3, v9")
        a("s_mov_b32 s%d, %d" % (sCNT, o["spin"]))
        a("s_lshl_b32 s%d, s%d, 2\nv_lshlrev_b32 v234, 4, v4\nv_add_u32 v235, s%d, v234" % (sA, sW, sA))
        a("s_and_b32 s%d, s%d, 1\ns_lshl_b32 s%d, s%d, 5\ns_add_u32 s%d, s%d, s%d" % (sA, sX, sA, sA, sA, sA, sS))
        a("s_lshr_b32 s%d, s%d, 2\ns_and_b32 s%d, s%d, 3" % (sC, sA, sD, sA))
        a("s_max_u32 s%d, s%d, 1\ns_mul_i32 s%d, s%d, 3\ns_add_u32 s%d, s%d, s%d" % (sE, sD, sG, sC, sG, sG, sE))
        a("s_add_u32 s%d, s%d, 3\ns_mul_i32 s%d, s%d, 37\ns_lshr_b32 s%d, s%d, 8" % (sE, sG, sE, sE, sE, sE))
        a("s_add_u32 s%d, s%d, s%d\ns_sub_u32 s%d, s%d, 1" % (sG, sG, sE, sG, sG))
        a("s_lshr_b32 s%d, s%d, 1\ns_lshl_b32 s%d, s%d, 3\ns_add_u32 s%d, s%d, 3\ns_min_u32 s%d, s%d, 55" % (sE, sC, sE, sE, sE, sE, sE, sE))
        a("s_cmp_eq_u32 s%d, 1\ns_cselect_b32 s%d, s%d, s%d\ns_cselect_b32 s%d, 8, 0" % (sD, sG, sE, sG, sE))
        a("s_lshr_b32 s%d, s%d, 1\nv_mov_b32 v244, s%d\ns_add_u32 s%d, s%d, s%d\nv_mov_b32 v247, s%d" % (sC, sW, sC, sE, sE, sC, sE))
        a("s_and_b32 s%d, s%d, 7\ns_cmp_eq_u32 s%d, 5\ns_cselect_b32 s%d, 0x%x, 0" % (sC, sA, sC, sH, OOB))
        a("s_cmp_eq_u32 s%d, 1\ns_cselect_b32 s%d, 0x%x, 0" % (sC, sOK, OOB))
        a("v_mul_u32_u24 v11, 7168, v6\nv_add_u32 v11, v11, v7")
        a("v_add_u32 v246, s%d, v11\nv_add_u32 v11, s%d, v11" % (sOK, sH))
        a("v_mov_b32 v248, s%d\nv_mov_b32 v249, s%d\nv_cmp_gt_u32 vcc, 32, v1\nv_cndmask_b32 v248, v249, v248, vcc" % (sH, sOK))
        a("s_mul_i32 s%d, s%d, %d\ns_lshl_b32 s%d, s%d, 7\ns_add_u32 s%d, s%d, s%d" % (sB, sB, 64 * 7168, sC, sG, sB, sB, sC))
        a("s_lshl_b32 s%d, s%d, 9\ns_mul_i32 s%d, s%d, 57344\ns_add_u32 s%d, s%d, s%d\ns_add_u32 s%d, s%d, 0x%x" % (
            sG, sG, sC, sKS, sG, sG, sC, sG, sG, HX))
        a("s_xor_b32 s%d, s%d, 2" % (sA, sA))
        a("s_lshr_b32 s%d, s%d, 2\ns_lshl_b32 s%d, s%d, 12\ns_and_b32 s%d, s%d, 3\ns_lshl_b32 s%d, s%d, 8" % (sF, sA, sF, sF, sA, sA, sA, sA))
        a("s_add_u32 s%d, s%d, s%d\ns_lshl_b32 s%d, s%d, 10\ns_add_u32 s%d, s%d, s%d\ns_add_u32 s%d, s%d, 0x%x" % (
            sF, sF, sA, sA, sKS, sF, sF, sA, sF, sF, QX))
        a("s_lshl_b32 s%d, s%d, 3\ns_lshr_b32 s%d, s%d, 2\ns_add_u32 s%d, s%d, s%d" % (sRB, sX, sA, sS, sRB, sRB, sA))
        if o["colmap"]:
            a("s_and_b32 s%d, s%d, 3\ns_and_b32 s%d, s%d, 1" % (sH, sS, sOK, sW))
            a("s_lshl_b32 s%d, s%d, 1\ns_add_u32 s%d, s%d, s%d\ns_lshl_b32 s%d, s%d, 8" % (sC, sH, sC, sC, sOK, sC, sC))
        else:
            a("s_and_b32 s%d, s%d, 3\ns_xor_b32 s%d, s%d, 2\ns_and_b32 s%d, s%d, 1" % (sH, sS, sH, sH, sOK, sW))
            a("s_lshl_b32 s%d, s%d, 3\ns_add_u32 s%d, s%d, s%d\ns_lshl_b32 s%d, s%d, 7" % (sC, sOK, sC, sC, sH, sC, sC))
        a("s_lshl_b32 s%d, s%d, 1\ns_lshr_b32 s%d, s%d, 1\ns_add_u32 s%d, s%d, s%d" % (sE, sRB, sA, sW, sE, sE, sA))
        a("s_lshr_b32 s%d, s%d, 2\ns_lshl_b32 s%d, s%d, 18\ns_and_b32 s%d, s%d, 3\ns_lshl_b32 s%d, s%d, 12" % (sD, sE, sD, sD, sA, sE, sA, sA))
        a("s_add_u32 s%d, s%d, s%d\ns_add_u32 s%d, s%d, s%d" % (sD, sD, sA, sD, sD, sC))
        a("s_mul_i32 s%d, s%d, %d\ns_add_u32 s%d, s%d, s%d" % (sE, sE, 28 * 2048, sE, sE, sC))
        a("v_lshrrev_b32 v3, 4, v1\nv_lshl_add_u32 v6, v5, %d, v7" % (7 if o["colmap"] else 9))
        a("v_lshl_add_u32 v12, v3, 14, v6\nv_lshl_add_u32 v13, v3, 11, v6")
        a("s_lshl_b32 s%d, s%d, 10\nv_lshlrev_b32 v236, 4, v1\nv_add_u32 v236, s%d, v236\nv_xor_b32 v255, 0x800, v236" % (sA, sW, sA))
        a("v_mul_u32_u24 v240, 28672, v4\nv_add3_u32 v240, v240, v253, v248")
        a("v_and_b32 v5, 15, v1\nv_lshlrev_b32 v6, 4, v5\nv_lshl_add_u32 v239, v3, 16, v6")
        a("v_and_b32 v6, 1, v1\nv_lshl_add_u32 v237, v3, 1, v6\nv_lshlrev_b32 v237, 8, v237")
        a("v_lshrrev_b32 v5, 1, v5\nv_lshl_add_u32 v237, v5, 4, v237")
        a("v_lshlrev_b32 v238, 3, v6\nv_lshl_add_u32 v238, v4, 7, v238\nv_bfe_u32 v5, v1, 1, 1\nv_lshl_add_u32 v238, v5, 8, v238")
        a("v_bfe_u32 v5, v1, 2, 3\nv_lshl_add_u32 v238, v5, 4, v238")
        a("v_lshrrev_b32 v4, 3, v1\nv_lshl_add_u32 v241, v4, 13, v7")
        a("v_lshlrev_b32 v243, 7, v244\nv_lshl_add_u32 v243, v4, 4, v243")
        a("v_lshlrev_b32 v242, 7, v1\nv_lshlrev_b32 v245, 1, v3")
        a("s_lshl_b32 s%d, s%d, 2\nv_mov_b32 v10, s%d" % (sA, sOK, sA))
        a("s_lshl_b32 s%d, s%d, 1\ns_add_u32 s%d, s%d, s%d\ns_lshl_b32 s%d, s%d, 16" % (sA, sH, sA, sA, sOK, sA, sA))
        a("s_lshl_b32 s%d, s%d, 7\ns_add_u32 s%d, s%d, s%d\ns_add_u32 s%d, s%d, 0x%x" % (sC, sRB, sA, sA, sC, sP, sA, FX))
        a("s_and_b32 s%d, s%d, 3\ns_lshl_b32 s%d, s%d, 1\ns_add_u32 s%d, s%d, s%d\ns_lshl_b32 s%d, s%d, 4" % (sH, sS, sH, sH, sH, sH, sOK, sH, sH))
        a("s_lshl_b32 s%d, s%d, 13\ns_add_u32 s%d, s%d, s%d\ns_add_u32 s%d, s%d, 0x%x" % (sA, sRB, sA, sA, sH, sP + 1, sA, FX))
        if o["colmap"]:
            a("s_lshl_b32 s%d, s%d, 1\ns_and_b32 s%d, s%d, 1\ns_add_u32 s%d, s%d, s%d\ns_lshl_b32 s%d, s%d, 7" % (sA, sX, sC, sRB, sA, sA, sC, sA, sA))
        else:
            a("s_lshr_b32 s%d, s%d, 4\ns_and_b32 s%d, s%d, 8\ns_add_u32 s%d, s%d, s%d" % (sA, sRB, sC, sRB, sA, sA, sC))
            a("s_and_b32 s%d, s%d, 1\ns_lshl_b32 s%d, s%d, 2\ns_add_u32 s%d, s%d, s%d\ns_lshl_b32 s%d, s%d, 7" % (sC, sRB, sC, sC, sA, sA, sC, sA, sA))
        a("s_add_u32 s%d, s%d, s%d\ns_and_b32 s%d, s%d, 2\ns_lshl_b32 s%d, s%d, 2\ns_add_u32 s%d, s%d, s%d" % (sH, sH, sA, sC, sRB, sC, sC, sH, sH, sC))
        a("s_and_b32 s%d, s%d, 4\ns_lshl_b32 s%d, s%d, 9\ns_add_u32 s%d, s%d, s%d" % (sC, sRB, sC, sC, sKS, sH, sC))
        self.sel_x()
        a("v_lshlrev_b32 v4, 4, v1\nv_mov_b32 v3, 0x0c0c0100\nv_alignbit_b32 v5, v3, v3, v4")
        a("v_mov_b32 v3, 0x0c0c0302\nv_alignbit_b32 v6, v3, v3, v4\nv_bfe_u32 v7, v1, 1, 2\nv_mov_b32 v4, 0x0c0c0c0c")
        for j in range(4):
            a("v_cmp_eq_u32 vcc, %d, v7\nv_cndmask_b32 v%d, v4, v5, vcc\nv_cndmask_b32 v%d, v4, v6, vcc" % (j, SEL + j, SEL + 4 + j))
        a("s_lshl_b32 s%d, s%d, 9\ns_waitcnt lgkmcnt(0)" % (sC, sW))
        self.tags()
        a("s_barrier")
        a("s_cmp_lg_u32 s%d, 0\ns_cbranch_scc1 L_noq" % sW)
        for k in range(4):
            a("ds_read_b128 %s, v237 offset:%d" % (vr(GU + 4 * k), RQ + 1024 * k))
        a("s_waitcnt lgkmcnt(0)")
        self.sum4(GU)
        self.tag4(248, [GU, GU + 1, GU + 2, GU + 3])
        a("s_mov_b32 exec_hi, 0")
        a("buffer_store_dwordx4 v[248:251], v239, %s, s%d offen sc1" % (srd("ws"), sF))
        a("s_mov_b32 exec_hi, -1")
        a("L_noq:")
        self.stamp(2)
        self.load(GU, 254, "x", "s%d" % sC)
        self.load(GU + 4, 253, "gw", "s%d" % sC)
        a("ds_read_b128 v[16:19], v236 offset:%d\nds_read_b128 v[20:23], v236 offset:%d\ns_waitcnt lgkmcnt(0)" % (XS, XS + 4096))
        self.x_operands()
        a("s_waitcnt vmcnt(0)")
        self.ack(1)
        t = GU + 8
        for j in range(4):
            a("v_lshlrev_b32 v%d, 16, v%d\nv_lshlrev_b32 v%d, 16, v%d" % (t + j, GU + j, t + 4 + j, GU + 4 + j))
            a("v_and_b32 v%d, 0xffff0000, v%d\nv_and_b32 v%d, 0xffff0000, v%d" % (GU + j, GU + j, GU + 4 + j, GU + 4 + j))
        for j in range(4):
            a("v_mul_f32 v%d, v%d, v%d\nv_mul_f32 v%d, v%d, v%d" % (t + j, t + j, t + 4 + j, GU + j, GU + j, GU + 4 + j))
        for j in range(4):
            self.rnd(t + j, t + j); self.rnd(GU + j, GU + j)
        for j in range(4):
            a("v_add_f32 v%d, v%d, v%d" % (t + j, t + j, GU + j))
        a("v_add_f32 v%d, v%d, v%d\nv_add_f32 v%d, v%d, v%d\nv_add_f32 v4, v%d, v%d" % (t, t, t + 1, t + 2, t + 2, t + 3, t, t + 2))
        for n in (8, 4, 2, 1):
            self.dpp("v_add_f32", 4, 4, 4, "row_ror:%d" % n)
        self.rows_allreduce("v_add_f32", 4, 3, (16,))
        a("ds_write_b32 v235, v4 offset:%d" % GP)
        a("s_waitcnt lgkmcnt(0)")
        a("s_barrier")
        self.stamp(3)

        def issue(i):
            if i < 16 and o["ilv"]:
                self.load(GU + 4 * i, 246 if i & 1 else 11, "wu" if i & 1 else "wg", "s%d" % sB, 0, pol)
                if i & 1 and i < 15:
                    a("s_add_u32 s%d, s%d, 14336" % (sB, sB))
            elif i < 16:
                self.load(GU + 4 * i, 246 if i >= 8 else 11, "wu" if i >= 8 else "wg", "s%d" % sB, 0, pol)
                if i == 7:
                    a("s_sub_u32 s%d, s%d, %d" % (sB, sB, 7 * 14336))
                elif i < 15:
                    a("s_add_u32 s%d, s%d, 14336" % (sB, sB))
            elif i < 24:
                k = i - 16
                m = (k >> 1) + 4 * (k & 1)
                self.load(WO + 4 * m, 12, "wo", "s%d" % sD, 2048 * (k & 1), pol)
                if k & 1 and k < 7:
                    a("s_add_u32 s%d, s%d, 0x10000" % (sD, sD))
            else:
                m = i - 24
                self.load(WD + 4 * m, 13, "wd", "s%d" % sE, 0, pol)
                if m < 6:
                    a("s_add_u32 s%d, s%d, 0x2000" % (sE, sE))

        for i in range(W):
            issue(i)
        a("ds_read_b128 v[4:7], v234 offset:%d\ns_waitcnt lgkmcnt(0)" % GP)
        a("v_add_f32 v4, v4, v5\nv_add_f32 v6, v6, v7\nv_add_f32 v4, v4, v6")
        self.rnd(4, 4)
        self.sigmoid(VG, 4)
        a("v_sub_f32 v%d, 1.0, v%d" % (VG + 1, VG))
        self.rnd(VG + 1, VG + 1)
        for i in range(max(31 - W, 16)):
            if i + W < 31:
                a("s_waitcnt vmcnt(%d)" % (W - 1))
                issue(i + W)
            else:
                a("s_waitcnt vmcnt(%d)" % (30 - i))
            if i < 16:
                gu, m = (i & 1, i >> 1) if o["ilv"] else (i >> 3, i & 7)
                self.mf16(40 + 8 * gu, 24 + 2 * m, GU + 4 * i, m == 0)
                self.mf16(44 + 8 * gu, 24 + 2 * m, GU + 4 * i + 2, m == 0)
            last = max(31 - W, 16) - 1
            for flag, step in ((F_T, o["to"]), (F_T + 2, o["th"])):
                if i == min(step + (0 if o["ilv"] else 8), last):
                    a("ds_write_b8 v244, v8 offset:%d" % flag)
                elif i == step:
                    a("ds_write_b8 v247, v8 offset:%d" % flag)
            if i == 15:
                for r in range(4):
                    a("v_permlane16_swap_b32 v%d, v%d" % (40 + r, 44 + r))
                for r in range(4):
                    a("v_permlane16_swap_b32 v%d, v%d" % (48 + r, 52 + r))
                for r in range(4):
                    self.dpp("v_add_f32", 40 + r, 44 + r, 40 + r, "row_ror:8", 0x3)
                for r in range(4):
                    self.dpp("v_add_f32", 40 + r, 48 + r, 52 + r, "row_ror:8", 0xc)
                a("ds_write_b128 v236, v[40:43] offset:%d" % RH)
                self.last_arriver(C_H, "L_noh")
                for k in range(4):
                    a("ds_read2st64_b64 %s, v238 offset0:%d offset1:%d" % (vr(GU + 4 * k), RH // 512 + 2 * k, RH // 512 + 2 * k + 1))
                a("s_waitcnt lgkmcnt(0)")
                self.sum4(GU)
                self.tag4(GU, [GU, GU + 1, GU + 2, GU + 3])
                a("buffer_store_dwordx4 %s, v240, %s, s%d offen sc1" % (vr(GU), srd("ws"), sG))
                a("L_noh:")
                self.stamp(4)
        self.stamp(5)

        def image(lbl, flag, img):
            a("%s:" % lbl)
            self.guard()
            a("ds_read_u8 v3, v244 offset:%d\nds_read_b128 %s, v243 offset:%d" % (flag, vr(Y), img))
            a("s_waitcnt lgkmcnt(0)\nv_cmp_ne_u32 vcc, 1, v3\ns_cbranch_vccnz %s" % lbl)

        def operands(m):
            for j in range(4):
                a("v_perm_b32 v%d, v%d, v%d, v%d" % (AO + 4 * m + j, Y + (m >> 1), Y + (m >> 1), SEL + 4 * (m & 1) + j))

        image("L_oi", F_IM, IM)
        self.stamp(6)
        operands(0)
        a("s_waitcnt vmcnt(7)")
        for m in range(8):
            if m < 7:
                operands(m + 1)
            self.mf32(DA, AO + 4 * m, WO + 4 * m, m == 0)
        image("L_hi", F_IM + 2, IM + 256)
        self.stamp(7)
        operands(0)
        for m in range(7):
            if m < 6:
                operands(m + 1)
            else:
                for r in range(4):
                    a("v_mul_f32 v%d, v%d, v%d" % (DA + r, VG, DA + r))
            a("s_waitcnt vmcnt(%d)" % (6 - m))
            self.mf32(DB, AO + 4 * m, WD + 4 * m, m == 0)
        for r in range(4):
            a("v_fmac_f32 v%d, v%d, v%d" % (DA + r, VG + 1, DB + r))
        a("ds_write_b128 v236, %s offset:%d" % (vr(DA), RF))
        self.stamp(8)
        a("s_mov_b64 exec, 1\nds_add_rtn_u32 v3, v10, v8 offset:%d\ns_mov_b64 exec, -1" % C_F)
        a("ds_read_b128 %s, v255 offset:%d" % (vr(DB), RF))
        a("s_waitcnt lgkmcnt(0)\nv_readfirstlane_b32 s%d, v3" % sA)
        for r in range(4):
            a("v_add_f32 v%d, v%d, v%d" % (DA + r, DA + r, DB + r))
        a("s_cmp_lg_u32 s%d, 1\ns_cbranch_scc1 L_end" % sA)
        self.tag4(DA, [DA + r for r in range(4)])
        a("buffer_store_dwordx4 %s, v241, %s, s%d offen sc1" % (vr(DA), srd("ws"), sP))
        self.stamp(9)
        a("L_fin:")
        self.guard()
        self.load(40, 242, "ws", "s%d" % (sP + 1), 0, o["rpol"])
        a("s_waitcnt vmcnt(0)")
        self.untag(40, 1, 3)
        a("s_cbranch_vccnz L_fin")
        self.stamp(10)
        self.rows_scatter_sum([40])
        for n in (8, 4, 2, 1):
            self.dpp("v_add_f32", 40, 40, 40, "row_ror:%d" % n)
        self.rnd(40, 40)
        a("s_mov_b32 exec_lo, 0x00010001\ns_mov_b32 exec_hi, 0x00010001")
        a("buffer_store_short_d16_hi v40, v245, %s, s%d offen %s" % (srd("out"), sKS, o["outpol"]))
        a("s_cmp_lg_u32 s2, 0\ns_cbranch_scc1 L_end")
        a("s_mov_b64 exec, 1\nv_mov_b32 v3, s%d\nbuffer_store_dword v3, v9, %s, 0 offen sc1" % (sT, srd("ws")))

    def epilogue(self):
        a = self.a
        a("L_end:")
        if self.o["stamps"]:
            a("s_mov_b64 exec, 1\ns_waitcnt vmcnt(0)")
            self.stamp(NST - 1)
            a("s_waitcnt lgkmcnt(0)")
            a("s_lshl_b32 s%d, s3, 8\ns_add_u32 s%d, s%d, s2\ns_mul_i32 s%d, s%d, %d\ns_add_u32 s%d, s%d, 0x%x" % (
                sA, sA, sA, sA, sA, NST * 8, sA, sA, STAMP_OFF))
            a("v_mov_b32 v1, s%d" % sA)
            for i in range(NST):
                a("v_mov_b32 v4, s%d\nv_mov_b32 v5, s%d" % (sST + 2 * i, sST + 2 * i + 1))
                a("buffer_store_dwordx2 v[4:5], v1, %s, 0 offen offset:%d\ns_nop 1" % (srd("ws"), 8 * i))
        if self.o["hold"]:
            a("s_cmp_lg_u32 s3, %d\ns_cbranch_scc1 L_exit" % self.o["ampwave"])
            if self.o["ampwg"] is not None:
                a("s_cmp_lg_u32 s2, %d\ns_cbranch_scc1 L_exit" % self.o["ampwg"])
            a("s_waitcnt lgkmcnt(0)\ns_mov_b32 s%d, %d" % (sA, self.o["hold"]))
            if self.o["amp"]:
                a("s_sub_u32 s%d, s%d, s%d\ns_lshl_b32 s%d, s%d, 2\ns_and_b32 s%d, s%d, 0x3fff\ns_add_u32 s%d, s%d, s%d" % (
                    sB, sST + 2 * self.o["amp"], sST, sB, sB, sB, sB, sA, sA, sB))
            a("L_hold:\ns_memrealtime s[%d:%d]\ns_waitcnt lgkmcnt(0)\ns_sub_u32 s%d, s%d, s%d\ns_cmp_lt_u32 s%d, s%d\ns_cbranch_scc1 L_hold" % (
                sD, sD + 1, sD, sD, sST, sD, sA))
        a("L_exit:\ns_endpgm")

    def build(self):
        if self.o["stamps"]:
            for i in range(1, NST):
                self.a("s_mov_b64 s[%d:%d], 0" % (sST + 2 * i, sST + 2 * i + 1))
        self.prologue()
        self.a_waves()
        self.f_waves()
        self.epilogue()
        lab = NAME + "_kernel"
        lines = [l[:-3] + self.o["spol"] if "buffer_store_dwordx4" in l and l.endswith("sc1") else l for l in self.a.lines]
        body = "\n".join(hazard.pad(lines)) + "\n"
        return (header(["; @launch grid=(256,1,1) block=(512,1,1) lds=%d" % LDS_BYTES]) + kernel_open(lab) + body
                + RODATA + descriptor(lab, 256))


def main():
    out = sys.argv[1]
    kw = {}
    for s in sys.argv[2:]:
        k, v = s.split("=")
        try:
            v = int(v, 0)
        except ValueError:
            pass
        kw[k] = v.replace("+", " ") if isinstance(v, str) else v
    open(out, "w").write(Gen(**kw).build())


if __name__ == "__main__":
    main()
```

```python
import sys
from asmlib import *
import hazard

DEFAULTS = dict(wa=5, wf=5, pol="nt", stamps=False, spin=100000, outpol="", wa0=8, qpos=7, to=18, th=24, wsoff=0, pf=2, tearly=1, ilv=0, colmap=0, mask=1, fine=0, sync=None, stag="102", stx=0, tol=3, thl=8, cut="", pre="", prepos=1, lag=1, gpol="sc1", rpol="sc1", spol="sc1", diag=0, hold=0, amp=None, ampwave=0, ampwg=None)

QX, HX, FX, OX = 0x10000, 0x40000, 0x80000, 0x100000
STAMP_OFF = 128 << 20
F_Q, F_O, C_H, F_IM, C_F, F_T = 0, 4, 8, 12, 16, 24
GP, MLL, IM = 64, 256, 512
RQ, RH, RF, QI, OL = 2048, 6144, 10240, 14336, 16640
XS = OL + 4 * 4224
LDS_BYTES = XS + 8192
SRD = dict(x=4, wq=8, k=12, v=16, wg=20, wu=24, wo=28, wd=32, gw=36, ws=40, out=44)
sX, sS, sW, sT, sT0, sCNT = 48, 49, 50, 51, 52, 56
sA, sB, sC, sD, sE, sF, sG, sH, sRB, sKS = 57, 58, 59, 60, 61, 62, 63, 64, 65, 66
sOK, sP, sR = 67, 68, 94
sST = 70
NST = 12
OOB = 0x7f000000
LOG2E = 0x3fb8aa3b
SCALE = 0x3db504f3
KVBASE = (32768 - 4096) * 256


def srd(n):
    return "s[%d:%d]" % (SRD[n], SRD[n] + 3)


def vr(b, n=4):
    return "v[%d:%d]" % (b, b + n - 1)


class VM:
    def __init__(self, a):
        self.a, self.q = a, []

    def note(self, name):
        self.q.append(name)

    def wait(self, name):
        self.a("s_waitcnt vmcnt(%d)" % (len(self.q) - 1 - self.q.index(name)))


class Gen:
    def __init__(self, **kw):
        self.o = dict(DEFAULTS)
        self.o.update(kw)
        self.a = Asm()
        global QX, HX, FX, OX
        QX, HX, FX, OX = (v + (self.o["wsoff"] << 20) for v in (QX, HX, FX, OX))

    def stamp(self, i, fine=False):
        if self.o["fine"] and i in (1, 6, 7, 8, 9, 10) and not fine or fine and not self.o["fine"]:
            return
        if self.o["stamps"] or (self.o["hold"] and i in (0, self.o["amp"])):
            self.a("s_memrealtime s[%d:%d]" % (sST + 2 * i, sST + 2 * i + 1))

    def count(self, unit):
        if self.o["diag"]:
            self.a("s_add_u32 s%d, s%d, %d" % (sST + 2, sST + 2, 100 * unit))

    def ack(self, i):
        if self.o["diag"]:
            self.a("s_waitcnt vmcnt(0)")
            self.stamp(i)

    def ptr(self, n):
        self.a("s_load_dwordx2 s[%d:%d], s[0:1], %d" % (SRD[n], SRD[n] + 1, KARG[n]))

    def desc(self, n):
        self.a("s_mov_b32 s%d, 0x%x\ns_mov_b32 s%d, 0x20000" % (SRD[n] + 2, SIZE[n], SRD[n] + 3))

    def guard(self):
        self.a("s_sub_u32 s%d, s%d, 1\ns_cbranch_scc1 L_end" % (sCNT, sCNT))

    def load(self, dst, voff, buf, soff, imm=0, pol=""):
        self.a("buffer_load_dwordx4 %s, v%d, %s, %s offen%s%s" % (
            vr(dst), voff, srd(buf), soff, " offset:%d" % imm if imm else "", " " + pol if pol else ""))

    def flag_wait(self, lbl, vaddr, flag):
        self.a("%s:" % lbl)
        self.guard()
        self.a("ds_read_u8 v3, v%d offset:%d\ns_waitcnt lgkmcnt(0)\nv_cmp_ne_u32 vcc, 1, v3\ns_cbranch_vccnz %s" % (vaddr, flag, lbl))

    def tags(self):
        a = self.a
        a("s_add_u32 s%d, s%d, 0x01010101" % (sT, sT))
        a("s_and_b32 s%d, s%d, 0xff" % (sT0, sT))
        a("s_bfe_u32 s%d, s%d, 0x80008" % (sT0 + 1, sT))
        a("s_bfe_u32 s%d, s%d, 0x80010" % (sT0 + 2, sT))
        a("s_lshr_b32 s%d, s%d, 24" % (sT0 + 3, sT))

    def tag4(self, dst, src):
        for j in range(4):
            self.a("v_bfi_b32 v%d, v2, s%d, v%d" % (dst + j, sT0 + j, src[j]))

    def untag(self, base, n, acc, cmp=True, also=None):
        a = self.a
        regs = list(range(base, base + 4 * n))
        for r in regs:
            a("v_xor_b32 v%d, s%d, v%d" % (r, sT0 + (r - base) % 4, r))
        a("v_or_b32 v%d, v%d, v%d" % (acc, regs[0], regs[1]))
        for i in range(2, len(regs), 2):
            a("v_or3_b32 v%d, v%d, v%d, v%d" % (acc, acc, regs[i], regs[i + 1]))
        if also is not None:
            a("v_or_b32 v%d, v%d, v%d" % (acc, acc, also))
        if cmp:
            a("v_and_b32 v%d, v2, v%d" % (acc, acc))
            a("v_cmp_ne_u32 vcc, 0, v%d" % acc)

    def narrow(self):
        if self.o["mask"]:
            self.a("s_wqm_b64 exec, vcc")

    def widen(self):
        if self.o["mask"]:
            self.a("s_mov_b64 exec, -1")

    def again(self, lbl):
        self.narrow()
        self.a("s_cbranch_vccnz %s" % lbl)
        self.widen()

    def dpp(self, op, d, s0, s1, ctl, bank=0xf):
        self.a("%s_dpp v%d, v%d, %s%s row_mask:0xf bank_mask:0x%x" % (
            op, d, s0, "v%d " % s1 if s1 is not None else "", ctl, bank) if s1 is not None else
            "%s_dpp v%d, v%d %s row_mask:0xf bank_mask:0x%x" % (op, d, s0, ctl, bank))

    def rows_allreduce(self, op, x, t, which=(16, 32)):
        for n in which:
            self.a("v_mov_b32 v%d, v%d\nv_permlane%d_swap_b32 v%d, v%d\n%s v%d, v%d, v%d" % (t, x, n, x, t, op, x, x, t))

    def rows_scatter_sum(self, sets):
        a = self.a
        for b in sets:
            a("v_permlane32_swap_b32 v%d, v%d\nv_permlane32_swap_b32 v%d, v%d" % (b, b + 2, b + 1, b + 3))
        for b in sets:
            a("v_add_f32 v%d, v%d, v%d\nv_add_f32 v%d, v%d, v%d" % (b, b, b + 2, b + 1, b + 1, b + 3))
        for b in sets:
            a("v_permlane16_swap_b32 v%d, v%d" % (b, b + 1))
        for b in sets:
            a("v_add_f32 v%d, v%d, v%d" % (b, b, b + 1))

    def rnd(self, d, s):
        self.a("v_cvt_pk_bf16_f32 v%d, 0, v%d" % (d, s))

    def sigmoid(self, d, z):
        a = self.a
        a("v_mul_f32 v%d, 0x%x, v%d" % (d, LOG2E ^ 0x80000000, z))
        a("v_exp_f32 v%d, v%d\nv_add_f32 v%d, 1.0, v%d\nv_rcp_f32 v%d, v%d" % (d, d, d, d, d, d))
        self.rnd(d, d)

    def sel_x(self):
        a = self.a
        a("v_bfe_u32 v3, v1, 2, 1\nv_mul_u32_u24 v3, 0x202, v3\nv_add_u32 v3, 0x0c0c0100, v3")
        a("v_lshlrev_b32 v4, 4, v1\nv_alignbit_b32 v3, v3, v3, v4")
        a("v_and_b32 v4, 2, v1\nv_cmp_eq_u32 vcc, 0, v4\nv_mov_b32 v4, 0x0c0c0c0c")
        a("v_cndmask_b32 v14, v4, v3, vcc\nv_cndmask_b32 v15, v3, v4, vcc")

    def x_operands(self):
        for m in range(8):
            self.a("v_perm_b32 v%d, v%d, v%d, v14\nv_perm_b32 v%d, v%d, v%d, v15" % (
                24 + 2 * m, 16 + m, 16 + m, 25 + 2 * m, 16 + m, 16 + m))

    def mf16(self, d, av, bv, first):
        self.a("v_mfma_f32_16x16x16_bf16 %s, %s, %s, %s" % (vr(d), vr(av, 2), vr(bv, 2), "0" if first else vr(d)))

    def mf32(self, d, av, bv, first):
        self.a("v_mfma_f32_16x16x32_bf16 %s, %s, %s, %s" % (vr(d), vr(av), vr(bv), "0" if first else vr(d)))

    def sum4(self, b):
        for r in range(4):
            self.a("v_add_f32 v%d, v%d, v%d\nv_add_f32 v%d, v%d, v%d" % (b + r, b + r, b + 4 + r, b + 8 + r, b + 8 + r, b + 12 + r))
        for r in range(4):
            self.a("v_add_f32 v%d, v%d, v%d" % (b + r, b + r, b + 8 + r))

    def last_arriver(self, cnt, skip):
        a = self.a
        a("s_mov_b64 exec, 1\nds_add_rtn_u32 v3, v9, v8 offset:%d\ns_mov_b64 exec, -1" % cnt)
        a("s_waitcnt lgkmcnt(0)\nv_readfirstlane_b32 s%d, v3\ns_cmp_lg_u32 s%d, 3\ns_cbranch_scc1 %s" % (sA, sA, skip))

    def prologue(self):
        a = self.a
        self.stamp(0)
        if self.o["sync"] is not None:
            a("s_waitcnt lgkmcnt(0)\ns_add_u32 s4, s%d, 300\ns_or_b32 s4, s4, 0x7ff\ns_and_b32 s5, s2, 6\ns_cselect_b32 s5, %d, 0\ns_add_u32 s4, s4, s5" % (sST, self.o["sync"]))
            a("L_sync:\ns_memrealtime s[%d:%d]\ns_waitcnt lgkmcnt(0)\ns_sub_u32 s5, s%d, s4\ns_cmp_lt_i32 s5, 0\ns_cbranch_scc1 L_sync" % (sST, sST + 1, sST))
        a("s_cmp_ge_u32 s2, 256\ns_cbranch_scc1 L_exit")
        for n in ("x", "wq", "ws"):
            self.ptr(n)
        a("s_lshr_b32 s%d, s2, 3" % sS)
        if self.o["pf"] == 2:
            a("s_getpc_b64 s[%d:%d]\nL_pc:" % (sP, sP + 1))
            a("s_lshl_b32 s%d, s%d, 9\ns_min_u32 s%d, s%d, L_exit-L_pc-512" % (sA, sS, sA, sA))
            a("s_add_u32 s%d, s%d, s%d\ns_addc_u32 s%d, s%d, 0" % (sP, sP, sA, sP + 1, sP + 1))
            a("v_add_co_u32 v250, vcc, s%d, v0\nv_mov_b32 v251, s%d\nv_lshrrev_b32 v3, 6, v0\nv_addc_co_u32 v251, vcc, 0, v251, vcc" % (sP, sP + 1))
            a("global_load_ubyte v252, v[250:251], off")
        else:
            a("v_lshrrev_b32 v3, 6, v0")
        a("v_and_b32 v1, 63, v0\ns_and_b32 s%d, s2, 7" % sX)
        a("v_readfirstlane_b32 s3, v3")
        a("s_lshr_b32 s%d, s%d, 1" % (sKS, sX))
        self.desc("x")
        a("v_bfe_u32 v5, v1, 3, 1\nv_and_b32 v6, 0x30, v1\nv_and_b32 v7, 7, v1")
        a("s_and_b32 s%d, s3, 3" % sW)
        a("v_lshlrev_b32 v10, 11, v5\nv_lshl_add_u32 v10, v6, 1, v10")
        a("v_or_b32 v6, v6, v5\nv_lshlrev_b32 v7, 4, v7")
        a("s_lshl_b32 s%d, s%d, 2\ns_add_u32 s%d, s%d, s%d" % (sB, sKS, sB, sB, sW))
        a("s_lshl_b32 s%d, s%d, 7" % (sA, sB))
        a("s_cmp_ge_u32 s3, 4\ns_cbranch_scc1 L_F")

    def a_waves(self):
        a, o = self.a, self.o
        W, pol = o["wa"], o["pol"]
        WQ, KD, VD, VT, PV, QG, QB, SD = 48, 80, 112, 144, 176, 208, 224, 232
        self.ptr("k"); self.ptr("v")
        self.desc("wq")
        a("v_lshl_add_u32 v11, v6, 13, v7")
        a("s_and_b32 s%d, s%d, 1\ns_lshl_b32 s%d, s%d, 5\ns_add_u32 s%d, s%d, s%d\ns_xor_b32 s%d, s%d, 2" % (sC, sX, sC, sC, sC, sC, sS, sC, sC))
        a("s_lshl_b32 s%d, s%d, 7\ns_lshl_b32 s%d, s%d, 19\ns_add_u32 s%d, s%d, s%d" % (sC, sC, sB, sB, sB, sB, sC))
        a("s_waitcnt lgkmcnt(0)")
        vm = VM(a)
        if o["tearly"]:
            a("s_load_dword s%d, s[%d:%d], 0" % (sT, SRD["ws"], SRD["ws"] + 1))
        self.load(16, 10, "x", "s%d" % sA)
        self.load(20, 10, "x", "s%d" % sA, 16)
        vm.note("x0"); vm.note("x1")

        def q_loads(v, p=o["gpol"]):
            for ks in range(4):
                self.load(QG + 4 * ks, v, "ws", "s%d" % sF, ks * 1024, p)

        def issue(i):
            if i < 8:
                self.load(WQ + 4 * i, 11, "wq", "s%d" % sB, 0, pol)
                if i < 7:
                    a("s_add_u32 s%d, s%d, 0x4000" % (sB, sB))
            elif i < 16:
                oc, hh = (i - 8) >> 1, (i - 8) & 1
                a("s_xor_b32 s%d, s%d, 0x%x" % (sC, sD, (oc >> 1) * 4096 + (oc & 1) * 512 + hh * 128))
                self.load(KD + 4 * (i - 8), 12, "k", "s%d" % sC, 0, pol)
            else:
                a("s_xor_b32 s%d, s%d, 0x%x" % (sC, sE, (i - 16) * 1024))
                self.load(VD + 4 * (i - 16), 10, "v", "s%d" % sC, 0, pol)
            vm.note(i)
            if i == 16 + o["qpos"] and "q" not in o["cut"]:
                q_loads(13)
                for ks in range(4):
                    vm.note("q%d" % ks)

        W0 = o["wa0"]
        assert W0 <= 8
        for i in range(W0):
            issue(i)
        if o["diag"]:
            a("s_mov_b64 s[%d:%d], s[%d:%d]" % (sST + 2, sST + 3, sST, sST + 1))
        else:
            self.stamp(1)
        if not o["tearly"]:
            a("s_load_dword s%d, s[%d:%d], 0" % (sT, SRD["ws"], SRD["ws"] + 1))
        self.desc("k"); self.desc("v"); self.desc("ws")
        a("s_lshl_b32 s%d, s%d, 23\ns_lshl_b32 s%d, s%d, 15\ns_add_u32 s%d, s%d, s%d" % (sD, sX, sE, sS, sD, sD, sE))
        a("s_lshl_b32 s%d, s%d, 13\ns_add_u32 s%d, s%d, s%d\ns_add_u32 s%d, s%d, 0x%x" % (sE, sW, sD, sD, sE, sD, sD, KVBASE))
        a("s_lshl2_add_u32 s%d, s%d, s%d" % (sA, sS, sW))
        if o["stx"]:
            a("s_add_u32 s%d, s%d, s%d" % (sA, sA, sX))
        a("s_mov_b32 s%d, 0" % sR)
        for c, bits in zip(o["stag"], (0x1000, 0x880, 0x600)):
            if c != "-":
                a("s_bitcmp1_b32 s%d, %s\ns_cselect_b32 s%d, 0x%x, 0\ns_or_b32 s%d, s%d, s%d" % (sA, c, sE, bits, sR, sR, sE))
        a("s_and_b32 s%d, s%d, 0x1c00\ns_or_b32 s%d, s%d, s%d" % (sE, sR, sE, sE, sD))
        a("s_and_b32 s%d, s%d, 0x1280\ns_or_b32 s%d, s%d, s%d" % (sA, sR, sD, sD, sA))
        a("v_and_b32 v3, 3, v1\nv_bfe_u32 v4, v1, 2, 1\nv_lshl_add_u32 v3, v3, 2, v4")
        a("v_lshrrev_b32 v4, 3, v1\nv_lshlrev_b32 v4, 4, v4\nv_lshl_add_u32 v12, v3, 8, v4")
        a("s_and_b32 s%d, s%d, 0xc00\nv_xor_b32 v12, s%d, v12" % (sA, sR, sA))
        a("v_lshlrev_b32 v13, 4, v1\ns_and_b32 s%d, s%d, 0x200\nv_xor_b32 v10, s%d, v13" % (sA, sR, sA))
        a("v_mov_b32 v2, 0xff\nv_mov_b32 v8, 1\nv_mov_b32 v9, 0\ns_mov_b32 s%d, %d" % (sCNT, o["spin"]))
        self.sel_x()
        a("s_lshl_b32 s%d, s%d, 3\ns_lshr_b32 s%d, s%d, 2\ns_add_u32 s%d, s%d, s%d" % (sRB, sX, sA, sS, sRB, sRB, sA))
        a("s_lshl_b32 s%d, s%d, 10\nv_add_u32 v5, s%d, v13" % (sA, sW, sA))
        a("s_lshl_b32 s%d, s%d, 14\ns_lshl_b32 s%d, s%d, 12\ns_add_u32 s%d, s%d, s%d\ns_add_u32 s%d, s%d, 0x%x" % (
            sF, sX, sA, sW, sF, sF, sA, sF, sF, QX))
        a("s_mov_b32 s%d, 0x05040100\ns_mov_b32 s%d, 0x07060302" % (sG, sH))
        vm.wait("x1")
        a("ds_write_b128 v5, v[16:19] offset:%d\nds_write_b128 v5, v[20:23] offset:%d" % (XS, XS + 4096))
        self.x_operands()
        n = W0
        for i in range(24 - W):
            if i < 8 or n < i + 1 + W:
                vm.wait(i)
                if i in (0, 8, 10, 12, 15, 18):
                    self.stamp({0: 1, 8: 6, 10: 7, 12: 8, 15: 9, 18: 10}[i], True)
            while n < i + 1 + W:
                issue(n)
                n += 1
            if i < 8:
                self.mf16(40, 24 + 2 * i, WQ + 4 * i, i == 0)
                self.mf16(44, 24 + 2 * i, WQ + 4 * i + 2, i == 0)
            if i == 7:
                for r in range(4):
                    a("v_permlane16_swap_b32 v%d, v%d" % (40 + r, 44 + r))
                for r in range(4):
                    self.dpp("v_add_f32", 40 + r, 44 + r, 40 + r, "row_ror:8")
                a("ds_write_b128 v5, v[40:43] offset:%d" % RQ)
                a("s_waitcnt lgkmcnt(0)\ns_barrier")
                self.stamp(2)
                self.tags()
        a("s_barrier")
        self.stamp(3)
        a("v_lshrrev_b32 v3, 5, v1\ns_lshl_b32 s%d, s%d, 1\nv_add_u32 v3, s%d, v3" % (sA, sW, sA))
        a("v_and_b32 v4, 31, v1\nv_mul_u32_u24 v16, 272, v3\nv_lshl_add_u32 v16, v4, 3, v16")
        a("v_mul_u32_u24 v20, 528, v3\nv_lshl_add_u32 v20, v4, 4, v20\nv_lshlrev_b32 v21, 5, v3")
        a("v_lshrrev_b32 v4, 3, v4\nv_lshl_add_u32 v23, v3, 2, v4\nv_lshl_add_u32 v23, v23, 13, v7")
        a("v_and_b32 v3, 7, v1\nv_lshrrev_b32 v4, 3, v1\nv_mul_u32_u24 v17, 272, v3\nv_lshl_add_u32 v17, v4, 4, v17")
        a("v_mul_u32_u24 v18, 528, v3\nv_and_b32 v5, 0x30, v1\ns_mul_i32 s%d, s%d, 4224\nv_add3_u32 v18, v18, v5, s%d" % (sA, sW, sA))
        a("s_lshl_b32 s%d, s%d, 3\nv_lshlrev_b32 v19, 5, v3\nv_add_u32 v19, s%d, v19" % (sA, sW, sA))
        a("v_mov_b32 v22, s%d" % sW)
        a("s_andn2_b32 s%d, 0x80, s%d\nv_add_u32 v24, s%d, v17\ns_and_b32 s%d, s%d, 0x80\nv_add_u32 v17, s%d, v17" % (sA, sR, sA, sA, sR, sA))
        vm.wait(23 if "q" in o["cut"] else "q3")
        a("L_qchk:")
        self.untag(QG, 4, 3)
        a("s_branch L_qok" if o["cut"] else "s_cbranch_vccz L_qok")
        self.narrow()
        self.guard()
        q_loads(13, o["rpol"])
        self.count(1)
        a("s_waitcnt vmcnt(0)\ns_branch L_qchk\nL_qok:")
        self.widen()
        self.stamp(4)
        self.sum4(QG)
        a("v_cvt_pk_bf16_f32 v4, v%d, v%d\nv_cvt_pk_bf16_f32 v5, v%d, v%d" % (QG, QG + 1, QG + 2, QG + 3))
        a("ds_write_b64 v16, v[4:5] offset:%d\nds_write_b8 v22, v8 offset:%d" % (QI, F_Q))
        a("s_mov_b32 s%d, 0x01010101" % sA)
        a("L_qi:")
        self.guard()
        a("ds_read_b32 v3, v9 offset:%d" % F_Q)
        a("ds_read_b128 %s, v17 offset:%d\nds_read_b128 %s, v24 offset:%d" % (vr(QB), QI, vr(QB + 4), QI))
        a("s_waitcnt lgkmcnt(0)\nv_cmp_ne_u32 vcc, s%d, v3\ns_cbranch_vccnz L_qi" % sA)
        for hh in range(2):
            for oc in range(4):
                self.mf32(SD + 4 * oc, KD + 8 * oc + 4 * hh, QB + 4 * hh, hh == 0)
        for p in range(2):
            for r in range(4):
                a("v_permlane32_swap_b32 v%d, v%d" % (SD + 8 * p + r, SD + 8 * p + 4 + r))
        for r in range(4):
            self.dpp("v_add_f32", 28 + r, SD + 4 + r, SD + r, "row_ror:8", 0x3)
        for r in range(4):
            self.dpp("v_add_f32", 28 + r, SD + 8 + r, SD + 12 + r, "row_ror:8", 0xc)
        for r in range(4):
            self.rnd(28 + r, 28 + r)
        for r in range(4):
            a("v_mul_f32 v%d, 0x%x, v%d" % (28 + r, SCALE, 28 + r))
        for r in range(4):
            self.rnd(28 + r, 28 + r)
        a("v_max3_f32 v32, v28, v29, v30\nv_max_f32 v32, v32, v31")
        self.dpp("v_max_f32", 32, 32, 32, "row_ror:8")
        self.rows_allreduce("v_max_f32", 32, 3)
        a("s_mov_b32 s%d, 0x%x" % (sB, LOG2E))
        for r in range(4):
            a("v_sub_f32 v%d, v%d, v32" % (28 + r, 28 + r))
        for r in range(4):
            a("v_mul_f32 v%d, s%d, v%d" % (28 + r, sB, 28 + r))
        for r in range(4):
            a("v_exp_f32 v%d, v%d" % (28 + r, 28 + r))
        a("v_cvt_pk_bf16_f32 v36, v28, v29\nv_cvt_pk_bf16_f32 v37, v30, v31")
        a("v_add_f32 v33, v28, v29\nv_add_f32 v30, v30, v31")
        self.dpp("v_mov_b32", 38, 36, None, "row_ror:8")
        self.dpp("v_mov_b32", 39, 37, None, "row_ror:8")
        a("v_add_f32 v33, v33, v30")
        self.dpp("v_add_f32", 33, 33, 33, "row_ror:8")
        self.rows_allreduce("v_add_f32", 33, 3)
        for j in range(4):
            vm.wait(16 + 2 * j + 1)
            for e in range(8):
                a("v_perm_b32 v%d, v%d, v%d, s%d" % (VT + 4 * e + j, VD + 8 * j + 4 + (e >> 1), VD + 8 * j + (e >> 1), sH if e & 1 else sG))
        for e in range(8):
            self.mf32(PV + 4 * e, VT + 4 * e, 36, True)
        a("s_mov_b32 exec_lo, 0x00ff00ff\ns_mov_b32 exec_hi, 0x00ff00ff")
        for e in range(8):
            a("ds_write_b128 v18, %s offset:%d" % (vr(PV + 4 * e), OL + 64 * e))
        a("ds_write_b64 v19, v[32:33] offset:%d" % MLL)
        a("ds_write_b8 v22, v8 offset:%d" % F_O)
        a("s_mov_b64 exec, -1")
        a("s_and_b32 s%d, s%d, 3\ns_lshl_b32 s%d, s%d, 18" % (sC, sX, sC, sC))
        a("s_lshr_b32 s%d, s%d, 2\ns_lshl_b32 s%d, s%d, 1\ns_add_u32 s%d, s%d, s%d" % (sD, sX, sE, sS, sD, sD, sE))
        a("s_lshl_b32 s%d, s%d, 7\ns_add_u32 s%d, s%d, s%d\ns_add_u32 s%d, s%d, 0x%x" % (sD, sD, sC, sC, sD, sC, sC, OX))
        a("s_mov_b32 s%d, 0x07060501\ns_mov_b32 s%d, 0x07060502\ns_mov_b32 s%d, 0x07060503" % (sD, sE, sF))
        a("L_ox:")
        self.guard()
        a("ds_read_b32 v3, v9 offset:%d" % F_O)
        a("ds_read_b128 v[28:31], v21 offset:%d\nds_read_b128 v[32:35], v21 offset:%d" % (MLL, MLL + 16))
        for k in range(4):
            a("ds_read_b128 %s, v20 offset:%d" % (vr(QG + 4 * k), OL + 4224 * k))
        a("s_waitcnt lgkmcnt(0)\nv_cmp_ne_u32 vcc, s%d, v3\ns_cbranch_vccnz L_ox" % sA)
        a("v_max3_f32 v36, v28, v30, v32\nv_max_f32 v36, v36, v34")
        for k in range(4):
            a("v_sub_f32 v%d, v%d, v36" % (28 + 2 * k, 28 + 2 * k))
        for k in range(4):
            a("v_mul_f32 v%d, s%d, v%d" % (28 + 2 * k, sB, 28 + 2 * k))
        for k in range(4):
            a("v_exp_f32 v%d, v%d" % (28 + 2 * k, 28 + 2 * k))
        a("v_mul_f32 v37, v28, v29")
        for k in range(1, 4):
            a("v_fmac_f32 v37, v%d, v%d" % (28 + 2 * k, 29 + 2 * k))
        a("v_log_f32 v38, v37\nv_rcp_f32 v37, v37")
        for r in range(4):
            a("v_mul_f32 v%d, v28, v%d" % (QG + r, QG + r))
        a("v_fmac_f32 v38, s%d, v36" % sB)
        for k in range(1, 4):
            for r in range(4):
                a("v_fmac_f32 v%d, v%d, v%d" % (QG + r, 28 + 2 * k, QG + 4 * k + r))
        for r in range(4):
            a("v_mul_f32 v%d, v37, v%d" % (QG + r, QG + r))
        a("v_bfi_b32 v%d, v2, s%d, v%d" % (QG, sT0, QG))
        for r in range(1, 4):
            a("v_perm_b32 v%d, v%d, v38, s%d" % (QG + r, QG + r, sD + r - 1))
        if "P" in o["cut"] or "X" in o["cut"]:
            a("s_bitcmp1_b32 s%d, %d\ns_cbranch_scc0 L_noO" % ((sS, 2) if "P" in o["cut"] else (sX, 0)))
        if "C" in o["cut"]:
            a("s_lshl_b32 s%d, s2, 12\ns_lshl_b32 s%d, s%d, 10\ns_add_u32 s%d, s%d, s%d\ns_add_u32 s%d, s%d, 0x%x\nv_mov_b32 v23, v13" % (sC, sD, sW, sC, sC, sD, sC, sC, OX))
        if "2" in o["cut"]:
            a("s_mov_b32 exec_hi, 0")
        if "4" in o["cut"]:
            a("s_mov_b64 exec, 0xffff")
        if "O" not in o["cut"]:
            a("buffer_store_dwordx4 %s, v23, %s, s%d offen sc1" % (vr(QG), srd("ws"), sC))
        if o["cut"]:
            a("L_noO:\ns_mov_b64 exec, -1")
        self.stamp(5)
        self.ack(10)
        a("s_cmp_ge_u32 s%d, 2\ns_cbranch_scc1 L_H" % sW)
        a("s_lshl_b32 s%d, s%d, 1\ns_add_u32 s%d, s%d, s%d\ns_lshl_b32 s%d, s%d, 13" % (sC, sRB, sC, sC, sW, sC, sC))
        a("s_add_u32 s%d, s%d, 0x%x\ns_add_u32 s%d, s%d, 0x1000\ns_mov_b32 s%d, 0x0c04000c" % (sC, sC, OX, sD, sC, sE))
        a("s_lshl_b32 s%d, s%d, 7\nv_lshlrev_b32 v27, 1, v1\nv_add_u32 v27, s%d, v27" % (sA, sW, sA))
        self.flag_wait("L_to", 22, F_T)
        self.stamp(6)
        a("L_og:")
        self.guard()
        self.count(32)
        for m in range(0 if "o" in o["cut"] else 8):
            self.load(WQ + 4 * m, 13, "ws", "s%d" % (sC if m < 4 else sD), (m & 3) * 1024, o["rpol"])
        for m in range(8):
            if m % 4 == 0:
                a("s_waitcnt vmcnt(%d)" % (4 - m))
            d = WQ + 4 * m
            a("v_xor_b32 v%d, s%d, v%d\nv_perm_b32 v%d, v%d, v%d, s%d" % (d, sT0, d, 28 + m, d + 2, d + 1, sE))
            a("v_lshl_or_b32 v%d, v%d, 24, v%d" % (28 + m, d + 3, 28 + m))
        a("v_or3_b32 v3, v%d, v%d, v%d\nv_or3_b32 v4, v%d, v%d, v%d" % tuple(WQ + 4 * m for m in range(6)))
        a("v_or3_b32 v3, v3, v%d, v%d\nv_or_b32 v3, v3, v4\nv_and_b32 v3, v2, v3\nv_cmp_ne_u32 vcc, 0, v3" % (WQ + 24, WQ + 28))
        a("v_max3_f32 v36, v28, v29, v30\nv_max3_f32 v37, v31, v32, v33\nv_max3_f32 v36, v36, v34, v35\nv_max_f32 v36, v36, v37")
        if not o["cut"]:
            self.again("L_og")
        self.rows_allreduce("v_max_f32", 36, 3)
        for m in range(8):
            a("v_sub_f32 v%d, v%d, v36" % (28 + m, 28 + m))
        for m in range(8):
            a("v_exp_f32 v%d, v%d" % (28 + m, 28 + m))
        for r in range(4):
            a("v_mul_f32 v%d, v28, v%d" % (40 + r, WQ + r))
        a("v_add_f32 v36, v28, v29")
        for m in range(1, 8):
            for r in range(4):
                a("v_fmac_f32 v%d, v%d, v%d" % (40 + r, 28 + m, WQ + 4 * m + r))
            if m > 1:
                a("v_add_f32 v36, v36, v%d" % (28 + m))
        self.rows_allreduce("v_add_f32", 36, 3)
        a("v_rcp_f32 v36, v36")
        self.rows_scatter_sum([40])
        a("v_mul_f32 v4, v36, v40")
        a("s_branch L_im")
        a("L_H:")
        a("s_lshl_b32 s%d, s%d, 1\ns_add_u32 s%d, s%d, s%d\ns_mul_i32 s%d, s%d, 224" % (sF, sRB, sF, sF, sW, sF, sF))
        a("s_add_u32 s%d, s%d, 0x%x\ns_add_u32 s%d, s%d, 28672" % (sF, sF, HX - 448, sG, sF))
        a("v_and_b32 v3, 15, v1\nv_min_u32 v3, 13, v3\nv_lshrrev_b32 v5, 4, v1")
        a("v_mul_u32_u24 v26, 57344, v5\nv_lshl_add_u32 v26, v3, 4, v26")
        a("v_and_b32 v4, 1, v3\nv_and_b32 v6, 1, v5\nv_lshl_add_u32 v4, v4, 1, v6\nv_and_b32 v3, 14, v3")
        a("v_lshl_add_u32 v27, v4, 5, v3\nv_lshrrev_b32 v5, 1, v5\nv_lshl_add_u32 v27, v5, 4, v27")
        a("s_lshl_b32 s%d, s%d, 7\nv_add_u32 v27, s%d, v27" % (sA, sW, sA))
        self.flag_wait("L_th", 22, F_T)
        self.stamp(6)
        a("L_hg:")
        self.guard()
        self.count(1024)
        if "h" not in o["cut"]:
            self.load(QB, 26, "ws", "s%d" % sF, 0, o["rpol"])
            self.load(QB + 4, 26, "ws", "s%d" % sG, 0, o["rpol"])
        a("s_waitcnt vmcnt(0)")
        self.untag(QB, 2, 3)
        if not o["cut"]:
            self.again("L_hg")
        self.rows_scatter_sum([QB, QB + 4])
        self.rnd(4, QB)
        self.rnd(5, QB + 4)
        self.sigmoid(4, 4)
        a("v_mul_f32 v4, v4, v5")
        a("L_im:")
        self.rnd(4, 4)
        a("ds_write_b16_d16_hi v27, v4 offset:%d\nds_write_b8 v22, v8 offset:%d" % (IM, F_IM))
        self.stamp(7)
        a("s_waitcnt lgkmcnt(0)")
        a("s_branch L_end" if o["stamps"] or o["hold"] else "s_endpgm")

    def prewrite(self):
        a, pre = self.a, self.o["pre"]
        if not pre:
            return
        a("v_not_b32 v40, s%d\nv_mov_b32 v41, 0\nv_mov_b32 v42, 0\nv_mov_b32 v43, 0" % sT0)
        if "o" in pre:
            a("v_lshrrev_b32 v3, 3, v1\nv_and_b32 v4, 7, v1\nv_lshlrev_b32 v4, 4, v4\nv_lshl_add_u32 v3, v3, 13, v4")
            a("s_and_b32 s%d, s%d, 3\ns_lshl_b32 s%d, s%d, 2\ns_add_u32 s%d, s%d, s%d\ns_lshl_b32 s%d, s%d, 16" % (sA, sX, sA, sA, sA, sA, sW, sA, sA))
            a("s_lshr_b32 s%d, s%d, 2\ns_lshl1_add_u32 s%d, s%d, s%d\ns_lshl_b32 s%d, s%d, 7" % (sR, sX, sR, sS, sR, sR, sR))
            a("s_add_u32 s%d, s%d, s%d\ns_add_u32 s%d, s%d, 0x%x" % (sA, sA, sR, sA, sA, OX))
            a("buffer_store_dwordx4 v[40:43], v3, %s, s%d offen sc1" % (srd("ws"), sA))
        a("s_cmp_ge_u32 s%d, 2\ns_cbranch_scc1 L_pw2" % sW)
        if "h" in pre or "q" in pre:
            a("s_cmp_eq_u32 s%d, 0\ns_cbranch_scc1 L_pw0" % sW)
            if "h" in pre:
                a("buffer_store_dwordx4 v[40:43], v240, %s, s%d offen sc1" % (srd("ws"), sG))
            a("s_branch L_pw3\nL_pw0:")
            if "q" in pre:
                assert self.o["prepos"] == 0
                a("s_mov_b32 exec_hi, 0\nbuffer_store_dwordx4 v[40:43], v239, %s, s%d offen sc1\ns_mov_b32 exec_hi, -1" % (srd("ws"), sF))
        a("s_branch L_pw3\nL_pw2:")
        if "f" in pre:
            a("buffer_store_dwordx4 v[40:43], v241, %s, s%d offen sc1" % (srd("ws"), sP))
        a("L_pw3:")

    def f_waves(self):
        a, o = self.a, self.o
        W, pol = o["wf"], o["pol"]
        SEL, GU, WO, WD, Y, AO, DA, DB, VG = 56, 64, 128, 160, 188, 192, 224, 228, 232
        a("L_F:")
        for n in ("gw", "wg", "wu", "wo", "wd", "out"):
            self.ptr(n)
        self.desc("gw")
        if o["pf"] == 1:
            a("s_getpc_b64 s[%d:%d]\nL_pc:" % (sP, sP + 1))
            a("s_sub_u32 s%d, s%d, L_pc-%s_kernel\ns_subb_u32 s%d, s%d, 0" % (sP, sP, NAME, sP + 1, sP + 1))
            a("s_lshl_b32 s%d, s%d, 9\nv_lshl_add_u32 v250, v7, 2, s%d\nv_min_u32 v250, L_exit-%s_kernel, v250" % (sC, sS, sC, NAME))
            a("v_mov_b32 v251, s%d\nv_add_co_u32 v250, vcc, s%d, v250\ns_nop 1\nv_addc_co_u32 v251, vcc, 0, v251, vcc" % (sP + 1, sP))
            a("s_cmp_lg_u32 s%d, 0\ns_cbranch_scc1 L_nopf\nglobal_load_dword v252, v[250:251], off\nL_nopf:" % sW)
        a("v_and_b32 v3, 31, v1\nv_lshlrev_b32 v253, 4, v3\nv_lshrrev_b32 v4, 5, v1\nv_lshl_add_u32 v254, v4, 11, v253")
        a("v_mov_b32 v8, 1\nv_mov_b32 v9, 0\nv_mov_b32 v2, 0xff")
        a("s_waitcnt lgkmcnt(0)")
        a("s_load_dword s%d, s[%d:%d], 0" % (sT, SRD["ws"], SRD["ws"] + 1))
        self.stamp(1)
        for n in ("ws", "wg", "wu", "wo", "wd", "out"):
            self.desc(n)
        a("v_lshlrev_b32 v3, 2, v1\nv_and_b32 v3, 31, v3\nds_write_b32 v3, v9")
        a("s_mov_b32 s%d, %d" % (sCNT, o["spin"]))
        a("s_lshl_b32 s%d, s%d, 2\nv_lshlrev_b32 v234, 4, v4\nv_add_u32 v235, s%d, v234" % (sA, sW, sA))
        a("s_and_b32 s%d, s%d, 1\ns_lshl_b32 s%d, s%d, 5\ns_add_u32 s%d, s%d, s%d" % (sA, sX, sA, sA, sA, sA, sS))
        a("s_lshr_b32 s%d, s%d, 2\ns_and_b32 s%d, s%d, 3" % (sC, sA, sD, sA))
        a("s_max_u32 s%d, s%d, 1\ns_mul_i32 s%d, s%d, 3\ns_add_u32 s%d, s%d, s%d" % (sE, sD, sG, sC, sG, sG, sE))
        a("s_add_u32 s%d, s%d, 3\ns_mul_i32 s%d, s%d, 37\ns_lshr_b32 s%d, s%d, 8" % (sE, sG, sE, sE, sE, sE))
        a("s_add_u32 s%d, s%d, s%d\ns_sub_u32 s%d, s%d, 1" % (sG, sG, sE, sG, sG))
        a("s_lshr_b32 s%d, s%d, 1\ns_lshl_b32 s%d, s%d, 3\ns_add_u32 s%d, s%d, 3\ns_min_u32 s%d, s%d, 55" % (sE, sC, sE, sE, sE, sE, sE, sE))
        a("s_cmp_eq_u32 s%d, 1\ns_cselect_b32 s%d, s%d, s%d\ns_cselect_b32 s%d, 8, 0" % (sD, sG, sE, sG, sE))
        a("s_lshr_b32 s%d, s%d, 1\nv_mov_b32 v244, s%d\ns_add_u32 s%d, s%d, s%d\nv_mov_b32 v247, s%d" % (sC, sW, sC, sE, sE, sC, sE))
        a("s_and_b32 s%d, s%d, 7\ns_cmp_eq_u32 s%d, 5\ns_cselect_b32 s%d, 0x%x, 0" % (sC, sA, sC, sH, OOB))
        a("s_cmp_eq_u32 s%d, 1\ns_cselect_b32 s%d, 0x%x, 0" % (sC, sOK, OOB))
        a("v_mul_u32_u24 v11, 7168, v6\nv_add_u32 v11, v11, v7")
        a("v_add_u32 v246, s%d, v11\nv_add_u32 v11, s%d, v11" % (sOK, sH))
        a("v_mov_b32 v248, s%d\nv_mov_b32 v249, s%d\nv_cmp_gt_u32 vcc, 32, v1\nv_cndmask_b32 v248, v249, v248, vcc" % (sH, sOK))
        a("s_mul_i32 s%d, s%d, %d\ns_lshl_b32 s%d, s%d, 7\ns_add_u32 s%d, s%d, s%d" % (sB, sB, 64 * 7168, sC, sG, sB, sB, sC))
        a("s_lshl_b32 s%d, s%d, 9\ns_mul_i32 s%d, s%d, 57344\ns_add_u32 s%d, s%d, s%d\ns_add_u32 s%d, s%d, 0x%x" % (
            sG, sG, sC, sKS, sG, sG, sC, sG, sG, HX))
        a("s_xor_b32 s%d, s%d, 2" % (sA, sA))
        a("s_lshr_b32 s%d, s%d, 2\ns_lshl_b32 s%d, s%d, 12\ns_and_b32 s%d, s%d, 3\ns_lshl_b32 s%d, s%d, 8" % (sF, sA, sF, sF, sA, sA, sA, sA))
        a("s_add_u32 s%d, s%d, s%d\ns_lshl_b32 s%d, s%d, 10\ns_add_u32 s%d, s%d, s%d\ns_add_u32 s%d, s%d, 0x%x" % (
            sF, sF, sA, sA, sKS, sF, sF, sA, sF, sF, QX))
        a("s_lshl_b32 s%d, s%d, 3\ns_lshr_b32 s%d, s%d, 2\ns_add_u32 s%d, s%d, s%d" % (sRB, sX, sA, sS, sRB, sRB, sA))
        if o["colmap"]:
            a("s_and_b32 s%d, s%d, 3\ns_and_b32 s%d, s%d, 1" % (sH, sS, sOK, sW))
            a("s_lshl_b32 s%d, s%d, 1\ns_add_u32 s%d, s%d, s%d\ns_lshl_b32 s%d, s%d, 8" % (sC, sH, sC, sC, sOK, sC, sC))
        else:
            a("s_and_b32 s%d, s%d, 3\ns_xor_b32 s%d, s%d, 2\ns_and_b32 s%d, s%d, 1" % (sH, sS, sH, sH, sOK, sW))
            a("s_lshl_b32 s%d, s%d, 3\ns_add_u32 s%d, s%d, s%d\ns_lshl_b32 s%d, s%d, 7" % (sC, sOK, sC, sC, sH, sC, sC))
        a("s_lshl_b32 s%d, s%d, 1\ns_lshr_b32 s%d, s%d, 1\ns_add_u32 s%d, s%d, s%d" % (sE, sRB, sA, sW, sE, sE, sA))
        a("s_lshr_b32 s%d, s%d, 2\ns_lshl_b32 s%d, s%d, 18\ns_and_b32 s%d, s%d, 3\ns_lshl_b32 s%d, s%d, 12" % (sD, sE, sD, sD, sA, sE, sA, sA))
        a("s_add_u32 s%d, s%d, s%d\ns_add_u32 s%d, s%d, s%d" % (sD, sD, sA, sD, sD, sC))
        a("s_mul_i32 s%d, s%d, %d\ns_add_u32 s%d, s%d, s%d" % (sE, sE, 28 * 2048, sE, sE, sC))
        a("v_lshrrev_b32 v3, 4, v1\nv_lshl_add_u32 v6, v5, %d, v7" % (7 if o["colmap"] else 9))
        a("v_lshl_add_u32 v12, v3, 14, v6\nv_lshl_add_u32 v13, v3, 11, v6")
        a("s_lshl_b32 s%d, s%d, 10\nv_lshlrev_b32 v236, 4, v1\nv_add_u32 v236, s%d, v236" % (sA, sW, sA))
        a("v_mul_u32_u24 v240, 28672, v4\nv_add3_u32 v240, v240, v253, v248")
        a("v_and_b32 v5, 15, v1\nv_lshlrev_b32 v6, 4, v5\nv_lshl_add_u32 v239, v3, 16, v6")
        a("v_and_b32 v6, 1, v1\nv_lshl_add_u32 v237, v3, 1, v6\nv_lshlrev_b32 v237, 8, v237")
        a("v_lshrrev_b32 v5, 1, v5\nv_lshl_add_u32 v237, v5, 4, v237")
        a("v_lshlrev_b32 v238, 3, v6\nv_lshl_add_u32 v238, v4, 7, v238\nv_bfe_u32 v5, v1, 1, 1\nv_lshl_add_u32 v238, v5, 8, v238")
        a("v_bfe_u32 v5, v1, 2, 3\nv_lshl_add_u32 v238, v5, 4, v238")
        a("v_lshlrev_b32 v255, 8, v6\nv_lshl_add_u32 v255, v4, 9, v255\nv_bfe_u32 v5, v1, 1, 4\nv_lshl_add_u32 v255, v5, 4, v255")
        a("s_lshl_b32 s%d, s%d, 10\nv_add_u32 v255, s%d, v255" % (sA, sOK, sA))
        a("v_lshrrev_b32 v4, 2, v1\nv_and_b32 v5, 3, v1\nv_lshlrev_b32 v241, 4, v5\nv_lshl_add_u32 v241, v4, 12, v241")
        a("v_lshrrev_b32 v4, 3, v1\nv_lshlrev_b32 v243, 7, v244\nv_lshl_add_u32 v243, v4, 4, v243")
        a("v_lshlrev_b32 v242, 4, v1\nv_lshlrev_b32 v245, 3, v5\nv_lshl_add_u32 v245, v3, 1, v245")
        a("s_lshl_b32 s%d, s%d, 2\nv_mov_b32 v10, s%d" % (sA, sOK, sA))
        a("s_lshl_b32 s%d, s%d, 1\ns_add_u32 s%d, s%d, s%d\ns_lshl_b32 s%d, s%d, 16" % (sA, sH, sA, sA, sOK, sA, sA))
        a("s_lshl_b32 s%d, s%d, 6\ns_add_u32 s%d, s%d, s%d\ns_add_u32 s%d, s%d, 0x%x" % (sC, sRB, sA, sA, sC, sP, sA, FX))
        a("s_and_b32 s%d, s%d, 1\ns_or_b32 s%d, s%d, s%d" % (sA, sS, sOK, sOK, sA))
        a("s_lshl_b32 s%d, s%d, 16\ns_lshl_b32 s%d, s%d, 11\ns_add_u32 s%d, s%d, s%d\ns_add_u32 s%d, s%d, 0x%x" % (sA, sX, sC, sS, sA, sA, sC, sP + 1, sA, FX))
        a("s_bfe_u32 s%d, s%d, 0x10003" % (sC, sS))
        if o["colmap"]:
            a("s_lshl_b32 s%d, s%d, 1\ns_add_u32 s%d, s%d, s%d" % (sA, sX, sA, sA, sC))
        else:
            a("s_lshl_b32 s%d, s%d, 2\ns_lshr_b32 s%d, s%d, 1\ns_add_u32 s%d, s%d, s%d" % (sC, sC, sA, sX, sA, sA, sC))
            a("s_and_b32 s%d, s%d, 1\ns_lshl_b32 s%d, s%d, 3\ns_add_u32 s%d, s%d, s%d" % (sC, sX, sC, sC, sA, sA, sC))
        a("s_and_b32 s%d, s%d, 16\ns_add_u32 s%d, s%d, s%d\ns_lshl_b32 s%d, s%d, 7" % (sC, sS, sA, sA, sC, sA, sA))
        a("s_and_b32 s%d, s%d, 6\ns_lshl_b32 s%d, s%d, 4\ns_add_u32 s%d, s%d, s%d" % (sC, sS, sC, sC, sKS, sA, sC))
        self.sel_x()
        a("v_lshlrev_b32 v4, 4, v1\nv_mov_b32 v3, 0x0c0c0100\nv_alignbit_b32 v5, v3, v3, v4")
        a("v_mov_b32 v3, 0x0c0c0302\nv_alignbit_b32 v6, v3, v3, v4\nv_bfe_u32 v7, v1, 1, 2\nv_mov_b32 v4, 0x0c0c0c0c")
        for j in range(4):
            a("v_cmp_eq_u32 vcc, %d, v7\nv_cndmask_b32 v%d, v4, v5, vcc\nv_cndmask_b32 v%d, v4, v6, vcc" % (j, SEL + j, SEL + 4 + j))
        a("s_lshl_b32 s%d, s%d, 9\ns_waitcnt lgkmcnt(0)" % (sC, sW))
        self.tags()
        if o["prepos"] == 0:
            self.prewrite()
        a("s_barrier")
        a("s_cmp_lg_u32 s%d, 0\ns_cbranch_scc1 L_noq" % sW)
        for k in range(4):
            a("ds_read_b128 %s, v237 offset:%d" % (vr(GU + 4 * k), RQ + 1024 * k))
        a("s_waitcnt lgkmcnt(0)")
        self.sum4(GU)
        self.tag4(248, [GU, GU + 1, GU + 2, GU + 3])
        a("s_mov_b32 exec_hi, 0")
        if "q" in o["pre"]:
            a("s_waitcnt vmcnt(0)")
        if "Q" not in o["cut"]:
            a("buffer_store_dwordx4 v[248:251], v239, %s, s%d offen sc1" % (srd("ws"), sF))
        a("s_mov_b32 exec_hi, -1")
        a("L_noq:")
        self.stamp(2)
        if "g" not in o["cut"]:
            self.load(GU, 254, "x", "s%d" % sC)
            self.load(GU + 4, 253, "gw", "s%d" % sC)
        if o["prepos"] == 1:
            self.prewrite()
        a("ds_read_b128 v[16:19], v236 offset:%d\nds_read_b128 v[20:23], v236 offset:%d\ns_waitcnt lgkmcnt(0)" % (XS, XS + 4096))
        self.x_operands()
        a("s_waitcnt vmcnt(0)")
        self.ack(1)
        self.stamp(1, True)
        t = GU + 8
        for j in range(4):
            a("v_lshlrev_b32 v%d, 16, v%d\nv_lshlrev_b32 v%d, 16, v%d" % (t + j, GU + j, t + 4 + j, GU + 4 + j))
            a("v_and_b32 v%d, 0xffff0000, v%d\nv_and_b32 v%d, 0xffff0000, v%d" % (GU + j, GU + j, GU + 4 + j, GU + 4 + j))
        for j in range(4):
            a("v_mul_f32 v%d, v%d, v%d\nv_mul_f32 v%d, v%d, v%d" % (t + j, t + j, t + 4 + j, GU + j, GU + j, GU + 4 + j))
        for j in range(4):
            self.rnd(t + j, t + j); self.rnd(GU + j, GU + j)
        for j in range(4):
            a("v_add_f32 v%d, v%d, v%d" % (t + j, t + j, GU + j))
        a("v_add_f32 v%d, v%d, v%d\nv_add_f32 v%d, v%d, v%d\nv_add_f32 v4, v%d, v%d" % (t, t, t + 1, t + 2, t + 2, t + 3, t, t + 2))
        for n in (8, 4, 2, 1):
            self.dpp("v_add_f32", 4, 4, 4, "row_ror:%d" % n)
        self.rows_allreduce("v_add_f32", 4, 3, (16,))
        a("ds_write_b32 v235, v4 offset:%d" % GP)
        a("s_waitcnt lgkmcnt(0)")
        a("s_barrier")
        self.stamp(3)

        def issue(i):
            if i < 16 and o["ilv"]:
                self.load(GU + 4 * i, 246 if i & 1 else 11, "wu" if i & 1 else "wg", "s%d" % sB, 0, pol)
                if i & 1 and i < 15:
                    a("s_add_u32 s%d, s%d, 14336" % (sB, sB))
            elif i < 16:
                self.load(GU + 4 * i, 246 if i >= 8 else 11, "wu" if i >= 8 else "wg", "s%d" % sB, 0, pol)
                if i == 7:
                    a("s_sub_u32 s%d, s%d, %d" % (sB, sB, 7 * 14336))
                elif i < 15:
                    a("s_add_u32 s%d, s%d, 14336" % (sB, sB))
            elif i < 24:
                k = i - 16
                m = (k >> 1) + 4 * (k & 1)
                self.load(WO + 4 * m, 12, "wo", "s%d" % sD, 2048 * (k & 1), pol)
                if k & 1 and k < 7:
                    a("s_add_u32 s%d, s%d, 0x10000" % (sD, sD))
            else:
                m = i - 24
                self.load(WD + 4 * m, 13, "wd", "s%d" % sE, 0, pol)
                if m < 6:
                    a("s_add_u32 s%d, s%d, 0x2000" % (sE, sE))

        for i in range(W):
            issue(i)
        a("ds_read_b128 v[4:7], v234 offset:%d\ns_waitcnt lgkmcnt(0)" % GP)
        a("v_add_f32 v4, v4, v5\nv_add_f32 v6, v6, v7\nv_add_f32 v4, v4, v6")
        self.rnd(4, 4)
        self.sigmoid(VG, 4)
        a("v_sub_f32 v%d, 1.0, v%d" % (VG + 1, VG))
        self.rnd(VG + 1, VG + 1)
        for i in range(max(31 - W, 16)):
            if i + W < 31:
                a("s_waitcnt vmcnt(%d)" % (W - 1))
                if i in (0, 4, 8, 12, 20):
                    self.stamp({0: 6, 4: 7, 8: 8, 12: 9, 20: 10}[i], True)
                issue(i + W)
            else:
                a("s_waitcnt vmcnt(%d)" % (30 - i))
            if i < 16:
                gu, m = (i & 1, i >> 1) if o["ilv"] else (i >> 3, i & 7)
                self.mf16(40 + 8 * gu, 24 + 2 * m, GU + 4 * i, m == 0)
                self.mf16(44 + 8 * gu, 24 + 2 * m, GU + 4 * i + 2, m == 0)
            last = max(31 - W, 16) - 1
            for flag, step, dl in ((F_T, o["to"], o["tol"]), (F_T + 2, o["th"], o["thl"])):
                if i == min(step + (0 if o["ilv"] else dl), last):
                    a("ds_write_b8 v244, v8 offset:%d" % flag)
                elif i == step:
                    a("ds_write_b8 v247, v8 offset:%d" % flag)
            if i == 15:
                for r in range(4):
                    a("v_permlane16_swap_b32 v%d, v%d" % (40 + r, 44 + r))
                for r in range(4):
                    a("v_permlane16_swap_b32 v%d, v%d" % (48 + r, 52 + r))
                for r in range(4):
                    self.dpp("v_add_f32", 40 + r, 44 + r, 40 + r, "row_ror:8", 0x3)
                for r in range(4):
                    self.dpp("v_add_f32", 40 + r, 48 + r, 52 + r, "row_ror:8", 0xc)
                a("ds_write_b128 v236, v[40:43] offset:%d" % RH)
                self.last_arriver(C_H, "L_noh")
                for k in range(4):
                    a("ds_read2st64_b64 %s, v238 offset0:%d offset1:%d" % (vr(GU + 4 * k), RH // 512 + 2 * k, RH // 512 + 2 * k + 1))
                a("s_waitcnt lgkmcnt(0)")
                self.sum4(GU)
                self.tag4(GU, [GU, GU + 1, GU + 2, GU + 3])
                if "H" not in o["cut"]:
                    a("buffer_store_dwordx4 %s, v240, %s, s%d offen sc1" % (vr(GU), srd("ws"), sG))
                a("L_noh:")
                self.stamp(4)
        self.stamp(5)

        def image(lbl, flag, img):
            a("%s:" % lbl)
            self.guard()
            a("ds_read_u8 v3, v244 offset:%d\nds_read_b128 %s, v243 offset:%d" % (flag, vr(Y), img))
            a("s_waitcnt lgkmcnt(0)\nv_cmp_ne_u32 vcc, 1, v3\ns_cbranch_vccnz %s" % lbl)

        def operands(m):
            for j in range(4):
                a("v_perm_b32 v%d, v%d, v%d, v%d" % (AO + 4 * m + j, Y + (m >> 1), Y + (m >> 1), SEL + 4 * (m & 1) + j))

        image("L_oi", F_IM, IM)
        self.stamp(6)
        operands(0)
        a("s_waitcnt vmcnt(7)")
        for m in range(8):
            if m < 7:
                operands(m + 1)
            self.mf32(DA, AO + 4 * m, WO + 4 * m, m == 0)
        image("L_hi", F_IM + 2, IM + 256)
        self.stamp(7)
        operands(0)
        for m in range(7):
            if m < 6:
                operands(m + 1)
            else:
                for r in range(4):
                    a("v_mul_f32 v%d, v%d, v%d" % (DA + r, VG, DA + r))
            a("s_waitcnt vmcnt(%d)" % (6 - m))
            self.mf32(DB, AO + 4 * m, WD + 4 * m, m == 0)
        for r in range(4):
            a("v_fmac_f32 v%d, v%d, v%d" % (DA + r, VG + 1, DB + r))
        a("ds_write_b128 v236, %s offset:%d" % (vr(DA), RF))
        self.stamp(8)
        a("s_mov_b64 exec, 1\nds_add_rtn_u32 v3, v10, v8 offset:%d\ns_mov_b64 exec, -1" % C_F)
        a("ds_read_b128 %s, v255 offset:%d\nds_read_b128 %s, v255 offset:%d" % (vr(DA), RF, vr(DB), RF + 2048))
        a("s_waitcnt lgkmcnt(0)\nv_readfirstlane_b32 s%d, v3" % sA)
        for r in range(4):
            a("v_add_f32 v%d, v%d, v%d" % (DA + r, DA + r, DB + r))
        a("s_cmp_lg_u32 s%d, 1\ns_cbranch_scc1 L_end" % sA)
        self.tag4(DA, [DA + r for r in range(4)])
        a("buffer_store_dwordx4 %s, v241, %s, s%d offen sc1" % (vr(DA), srd("ws"), sP))
        self.stamp(9)
        a("s_cmp_lg_u32 s%d, 0\ns_cbranch_scc1 L_end" % sOK)
        if o["lag"]:
            a("s_waitcnt vmcnt(0)")
        a("L_fin:")
        self.guard()
        for m in range(4):
            self.load(40 + 4 * m, 242, "ws", "s%d" % (sP + 1), 1024 * m, o["rpol"])
        a("s_waitcnt vmcnt(0)")
        self.untag(40, 4, 3)
        self.again("L_fin")
        self.stamp(10)
        self.sum4(40)
        self.rows_scatter_sum([40])
        for n in (8, 4):
            self.dpp("v_add_f32", 40, 40, 40, "row_ror:%d" % n)
        self.rnd(40, 40)
        a("s_mov_b32 exec_lo, 0x000f000f\ns_mov_b32 exec_hi, 0x000f000f")
        a("buffer_store_short_d16_hi v40, v245, %s, s%d offen %s" % (srd("out"), sKS, o["outpol"]))
        a("s_cmp_lg_u32 s2, 0\ns_cbranch_scc1 L_end")
        a("s_mov_b64 exec, 1\nv_mov_b32 v3, s%d\nbuffer_store_dword v3, v9, %s, 0 offen sc1" % (sT, srd("ws")))

    def epilogue(self):
        a = self.a
        a("L_end:")
        if self.o["stamps"]:
            a("s_mov_b64 exec, 1\ns_waitcnt vmcnt(0)")
            self.stamp(NST - 1)
            a("s_waitcnt lgkmcnt(0)")
            a("s_lshl_b32 s%d, s3, 8\ns_add_u32 s%d, s%d, s2\ns_mul_i32 s%d, s%d, %d\ns_add_u32 s%d, s%d, 0x%x" % (
                sA, sA, sA, sA, sA, NST * 8, sA, sA, STAMP_OFF))
            a("v_mov_b32 v1, s%d" % sA)
            for i in range(NST):
                a("v_mov_b32 v4, s%d\nv_mov_b32 v5, s%d" % (sST + 2 * i, sST + 2 * i + 1))
                a("buffer_store_dwordx2 v[4:5], v1, %s, 0 offen offset:%d\ns_nop 1" % (srd("ws"), 8 * i))
        if self.o["hold"]:
            a("s_cmp_lg_u32 s3, %d\ns_cbranch_scc1 L_exit" % self.o["ampwave"])
            if self.o["ampwg"] is not None:
                a("s_cmp_lg_u32 s2, %d\ns_cbranch_scc1 L_exit" % self.o["ampwg"])
            a("s_waitcnt lgkmcnt(0)\ns_mov_b32 s%d, %d" % (sA, self.o["hold"]))
            if self.o["amp"]:
                a("s_sub_u32 s%d, s%d, s%d\ns_lshl_b32 s%d, s%d, 2\ns_and_b32 s%d, s%d, 0x3fff\ns_add_u32 s%d, s%d, s%d" % (
                    sB, sST + 2 * self.o["amp"], sST, sB, sB, sB, sB, sA, sA, sB))
            a("L_hold:\ns_memrealtime s[%d:%d]\ns_waitcnt lgkmcnt(0)\ns_sub_u32 s%d, s%d, s%d\ns_cmp_lt_u32 s%d, s%d\ns_cbranch_scc1 L_hold" % (
                sD, sD + 1, sD, sD, sST, sD, sA))
        a("L_exit:\ns_endpgm")

    def build(self):
        if self.o["stamps"]:
            for i in range(1, NST):
                self.a("s_mov_b64 s[%d:%d], 0" % (sST + 2 * i, sST + 2 * i + 1))
        self.prologue()
        self.a_waves()
        self.f_waves()
        self.epilogue()
        lab = NAME + "_kernel"
        lines = [l[:-3] + self.o["spol"] if "buffer_store_dwordx4" in l and l.endswith("sc1") and "v241" not in l else l for l in self.a.lines]
        body = "\n".join(hazard.pad(lines)) + "\n"
        return (header(["; @launch grid=(256,1,1) block=(512,1,1) lds=%d" % LDS_BYTES]) + kernel_open(lab) + body
                + RODATA + descriptor(lab, 256))


def main():
    out = sys.argv[1]
    kw = {}
    for s in sys.argv[2:]:
        k, v = s.split("=")
        try:
            v = v if k == "stag" else int(v, 0)
        except ValueError:
            pass
        kw[k] = v.replace("+", " ") if isinstance(v, str) else v
    open(out, "w").write(Gen(**kw).build())


if __name__ == "__main__":
    main()
```

```python
import sys
from asmlib import *
import hazard

DEFAULTS = dict(wa=5, wf=5, pol="nt", stamps=False, spin=100000, outpol="", wa0=8, qpos=7, to=10, th=22, loc=1, umap=1, dpol="sc1", qloc=0, o2loc=1, pf=2, tearly=1, ilv=0, colmap=0, mask=1, fine=0, sync=None, stag="102", stx=0, tol=3, thl=8, cut="", lag=3, gpol="sc1", pre="", ppol="nt", prepos=0, lpol="sc1 nt", fcut=0, npol="", osrc="", kil=0, wil=0, gil=0, oil=0, qch=0, och=0, hch=0, fch=0, sb=2, sh=18, opol="sc1 nt", hpol="sc1 nt", rpol="sc1", spol="sc1", diag=0, hold=0, amp=None, ampwave=0, ampwg=None)

DX, QX, O2, HX, FX, OX = 0x8000, 0x10000, 0x30000, 0x40000, 0x80000, 0x100000
STAMP_OFF = 128 << 20
F_Q, F_O, C_H, F_IM, C_F, F_T = 0, 4, 8, 12, 16, 24
GP, MLL, IM = 64, 256, 512
RQ, RH, RF, QI, OL = 2048, 6144, 10240, 14336, 16640
XS = OL + 4 * 4224
LDS_BYTES = XS + 8192
SRD = dict(x=4, wq=8, k=12, v=16, wg=20, wu=24, wo=28, wd=32, gw=36, ws=40, out=44)
sX, sS, sW, sT, sT0, sCNT = 48, 49, 50, 51, 52, 56
sA, sB, sC, sD, sE, sF, sG, sH, sRB, sKS = 57, 58, 59, 60, 61, 62, 63, 64, 65, 66
sOK, sP, sR, sL, sU = 67, 68, 94, 95, 96
sST = 70
NST = 12
OOB = 0x7f000000
LOG2E = 0x3fb8aa3b
SCALE = 0x3db504f3
KVBASE = (32768 - 4096) * 256


def srd(n):
    return "s[%d:%d]" % (SRD[n], SRD[n] + 3)


def vr(b, n=4):
    return "v[%d:%d]" % (b, b + n - 1)


def krow(i, L):
    return ((i >> (3 - L)) << (10 - L)) + ((i & ((8 >> L) - 1)) << 1)


class VM:
    def __init__(self, a):
        self.a, self.q = a, []

    def note(self, name):
        self.q.append(name)

    def wait(self, name):
        self.a("s_waitcnt vmcnt(%d)" % (len(self.q) - 1 - self.q.index(name)))


class Gen:
    def __init__(self, **kw):
        self.o = dict(DEFAULTS)
        self.o.update(kw)
        self.a = Asm()

    def spread(self, d, idx, n, t):
        if n:
            self.a("s_and_b32 s%d, s%d, %d\ns_lshl_b32 s%d, s%d, %d\ns_add_u32 s%d, s%d, s%d\ns_add_u32 s%d, s%d, 0x%x" % (
                t, idx, n - 1, t, t, self.o["sh"], d, d, t, d, d, self.o["sb"] << 20))

    def stamp(self, i, fine=False):
        if self.o["fine"] and i in (1, 6, 7, 8, 9, 10) and not fine or fine and not self.o["fine"]:
            return
        if self.o["stamps"] or (self.o["hold"] and i in (0, self.o["amp"])):
            self.a("s_memrealtime s[%d:%d]" % (sST + 2 * i, sST + 2 * i + 1))

    def count(self, unit):
        if self.o["diag"]:
            self.a("s_add_u32 s%d, s%d, %d" % (sST + 2, sST + 2, 100 * unit))

    def ack(self, i):
        if self.o["diag"]:
            self.a("s_waitcnt vmcnt(0)")
            self.stamp(i)

    def ptr(self, n):
        self.a("s_load_dwordx2 s[%d:%d], s[0:1], %d" % (SRD[n], SRD[n] + 1, KARG[n]))

    def desc(self, n):
        self.a("s_mov_b32 s%d, 0x%x\ns_mov_b32 s%d, 0x20000" % (SRD[n] + 2, SIZE[n], SRD[n] + 3))

    def guard(self):
        self.a("s_sub_u32 s%d, s%d, 1\ns_cbranch_scc1 L_end" % (sCNT, sCNT))

    def load(self, dst, voff, buf, soff, imm=0, pol=""):
        self.a("buffer_load_dwordx4 %s, v%d, %s, %s offen%s%s" % (
            vr(dst), voff, srd(buf), soff, " offset:%d" % imm if imm else "", " " + pol if pol else ""))

    def flag_wait(self, lbl, vaddr, flag):
        self.a("%s:" % lbl)
        self.guard()
        self.a("ds_read_u8 v3, v%d offset:%d\ns_waitcnt lgkmcnt(0)\nv_cmp_ne_u32 vcc, 1, v3\ns_cbranch_vccnz %s" % (vaddr, flag, lbl))

    def tags(self):
        a = self.a
        a("s_add_u32 s%d, s%d, 0x01010101" % (sT, sT))
        a("s_and_b32 s%d, s%d, 0xff" % (sT0, sT))
        a("s_bfe_u32 s%d, s%d, 0x80008" % (sT0 + 1, sT))
        a("s_bfe_u32 s%d, s%d, 0x80010" % (sT0 + 2, sT))
        a("s_lshr_b32 s%d, s%d, 24" % (sT0 + 3, sT))

    def tag4(self, dst, src):
        for j in range(4):
            self.a("v_bfi_b32 v%d, v2, s%d, v%d" % (dst + j, sT0 + j, src[j]))

    def untag(self, base, n, acc, cmp=True, also=None):
        a = self.a
        regs = list(range(base, base + 4 * n))
        for r in regs:
            a("v_xor_b32 v%d, s%d, v%d" % (r, sT0 + (r - base) % 4, r))
        a("v_or_b32 v%d, v%d, v%d" % (acc, regs[0], regs[1]))
        for i in range(2, len(regs), 2):
            a("v_or3_b32 v%d, v%d, v%d, v%d" % (acc, acc, regs[i], regs[i + 1]))
        if also is not None:
            a("v_or_b32 v%d, v%d, v%d" % (acc, acc, also))
        if cmp:
            a("v_and_b32 v%d, v2, v%d" % (acc, acc))
            a("v_cmp_ne_u32 vcc, 0, v%d" % acc)

    def narrow(self):
        if self.o["mask"]:
            self.a("s_wqm_b64 exec, vcc")

    def widen(self):
        if self.o["mask"]:
            self.a("s_mov_b64 exec, -1")

    def again(self, lbl):
        self.narrow()
        self.a("s_cbranch_vccnz %s" % lbl)
        self.widen()

    def dpp(self, op, d, s0, s1, ctl, bank=0xf):
        self.a("%s_dpp v%d, v%d, %s%s row_mask:0xf bank_mask:0x%x" % (
            op, d, s0, "v%d " % s1 if s1 is not None else "", ctl, bank) if s1 is not None else
            "%s_dpp v%d, v%d %s row_mask:0xf bank_mask:0x%x" % (op, d, s0, ctl, bank))

    def rows_allreduce(self, op, x, t, which=(16, 32)):
        for n in which:
            self.a("v_mov_b32 v%d, v%d\nv_permlane%d_swap_b32 v%d, v%d\n%s v%d, v%d, v%d" % (t, x, n, x, t, op, x, x, t))

    def rows_scatter_sum(self, sets):
        a = self.a
        for b in sets:
            a("v_permlane32_swap_b32 v%d, v%d\nv_permlane32_swap_b32 v%d, v%d" % (b, b + 2, b + 1, b + 3))
        for b in sets:
            a("v_add_f32 v%d, v%d, v%d\nv_add_f32 v%d, v%d, v%d" % (b, b, b + 2, b + 1, b + 1, b + 3))
        for b in sets:
            a("v_permlane16_swap_b32 v%d, v%d" % (b, b + 1))
        for b in sets:
            a("v_add_f32 v%d, v%d, v%d" % (b, b, b + 1))

    def rnd(self, d, s):
        self.a("v_cvt_pk_bf16_f32 v%d, 0, v%d" % (d, s))

    def sigmoid(self, d, z):
        a = self.a
        a("v_mul_f32 v%d, 0x%x, v%d" % (d, LOG2E ^ 0x80000000, z))
        a("v_exp_f32 v%d, v%d\nv_add_f32 v%d, 1.0, v%d\nv_rcp_f32 v%d, v%d" % (d, d, d, d, d, d))
        self.rnd(d, d)

    def sel_x(self):
        a = self.a
        a("v_bfe_u32 v3, v1, 2, 1\nv_mul_u32_u24 v3, 0x202, v3\nv_add_u32 v3, 0x0c0c0100, v3")
        a("v_lshlrev_b32 v4, 4, v1\nv_alignbit_b32 v3, v3, v3, v4")
        a("v_and_b32 v4, 2, v1\nv_cmp_eq_u32 vcc, 0, v4\nv_mov_b32 v4, 0x0c0c0c0c")
        a("v_cndmask_b32 v14, v4, v3, vcc\nv_cndmask_b32 v15, v3, v4, vcc")

    def x_operands(self):
        for m in range(8):
            self.a("v_perm_b32 v%d, v%d, v%d, v14\nv_perm_b32 v%d, v%d, v%d, v15" % (
                24 + 2 * m, 16 + m, 16 + m, 25 + 2 * m, 16 + m, 16 + m))

    def mf16(self, d, av, bv, first):
        self.a("v_mfma_f32_16x16x16_bf16 %s, %s, %s, %s" % (vr(d), vr(av, 2), vr(bv, 2), "0" if first else vr(d)))

    def mf32(self, d, av, bv, first):
        self.a("v_mfma_f32_16x16x32_bf16 %s, %s, %s, %s" % (vr(d), vr(av), vr(bv), "0" if first else vr(d)))

    def sum4(self, b):
        for r in range(4):
            self.a("v_add_f32 v%d, v%d, v%d\nv_add_f32 v%d, v%d, v%d" % (b + r, b + r, b + 4 + r, b + 8 + r, b + 8 + r, b + 12 + r))
        for r in range(4):
            self.a("v_add_f32 v%d, v%d, v%d" % (b + r, b + r, b + 8 + r))

    def prologue(self):
        a = self.a
        self.stamp(0)
        if self.o["sync"] is not None:
            a("s_waitcnt lgkmcnt(0)\ns_add_u32 s4, s%d, 300\ns_or_b32 s4, s4, 0x7ff\ns_and_b32 s5, s2, 6\ns_cselect_b32 s5, %d, 0\ns_add_u32 s4, s4, s5" % (sST, self.o["sync"]))
            a("L_sync:\ns_memrealtime s[%d:%d]\ns_waitcnt lgkmcnt(0)\ns_sub_u32 s5, s%d, s4\ns_cmp_lt_i32 s5, 0\ns_cbranch_scc1 L_sync" % (sST, sST + 1, sST))
        a("s_cmp_ge_u32 s2, 256\ns_cbranch_scc1 L_exit")
        for n in ("x", "wq", "ws"):
            self.ptr(n)
        a("s_lshr_b32 s%d, s2, 3" % sS)
        if self.o["pf"] == 2:
            a("s_getpc_b64 s[%d:%d]\nL_pc:" % (sP, sP + 1))
            a("s_lshl_b32 s%d, s%d, 9\ns_min_u32 s%d, s%d, L_exit-L_pc-512" % (sA, sS, sA, sA))
            a("s_add_u32 s%d, s%d, s%d\ns_addc_u32 s%d, s%d, 0" % (sP, sP, sA, sP + 1, sP + 1))
            a("v_add_co_u32 v250, vcc, s%d, v0\nv_mov_b32 v251, s%d\nv_lshrrev_b32 v3, 6, v0\nv_addc_co_u32 v251, vcc, 0, v251, vcc" % (sP, sP + 1))
            a("global_load_ubyte v252, v[250:251], off")
        else:
            a("v_lshrrev_b32 v3, 6, v0")
        a("v_and_b32 v1, 63, v0\ns_and_b32 s%d, s2, 7" % sX)
        a("v_readfirstlane_b32 s3, v3")
        a("s_lshr_b32 s%d, s%d, 3" % (sKS, sS))
        self.desc("x")
        a("v_bfe_u32 v5, v1, 3, 1\nv_and_b32 v6, 0x30, v1\nv_and_b32 v7, 7, v1")
        a("s_and_b32 s%d, s3, 3" % sW)
        a("v_lshlrev_b32 v10, 11, v5\nv_lshl_add_u32 v10, v6, 1, v10")
        a("v_or_b32 v6, v6, v5\nv_lshlrev_b32 v7, 4, v7")
        a("s_lshl_b32 s%d, s%d, 2\ns_add_u32 s%d, s%d, s%d" % (sB, sKS, sB, sB, sW))
        a("s_lshl_b32 s%d, s%d, 7" % (sA, sB))
        a("s_getreg_b32 s%d, hwreg(HW_REG_XCC_ID, 0, 4)" % sL)
        a("s_cmp_ge_u32 s3, 4\ns_cbranch_scc1 L_F")

    def die_read(self, v):
        self.a("s_lshl_b32 s%d, s%d, 7\ns_add_u32 s%d, s%d, 0x%x\nv_and_b32 v%d, 31, v1\nv_lshlrev_b32 v%d, 2, v%d" % (sA, sX, sA, sA, DX, v, v, v))
        self.a("buffer_load_dword v%d, v%d, %s, s%d offen %s" % (v, v, srd("ws"), sA, self.o["dpol"]))

    def die_test(self, v):
        self.a("s_xor_b32 s%d, s%d, s%d\nv_cmp_ne_u32 vcc, s%d, v%d\ns_mov_b32 s%d, vcc_lo" % (sL, sL, sT, sL, v, sL))
        if not self.o["loc"]:
            self.a("s_mov_b32 s%d, 1" % sL)

    def q_block(self, d, t):
        self.a("s_and_b32 s%d, s%d, 7\ns_lshl3_add_u32 s%d, s%d, s%d\ns_xor_b32 s%d, s%d, 2" % (t, sS, d, sX, t, d, d))

    def gu_tile(self):
        a = self.a
        a("s_and_b32 s%d, s%d, 7\ns_add_u32 s%d, s%d, 3\ns_and_b32 s%d, s%d, 7\ns_min_u32 s%d, s%d, 6" % (sC, sS, sE, sX, sE, sE, sE, sE))
        a("s_add_u32 s%d, s%d, 2\ns_lshr_b32 s%d, s%d, 2\ns_sub_u32 s%d, s%d, s%d" % (sG, sC, sG, sG, sG, sC, sG))
        a("s_cmp_ge_u32 s%d, s%d\ns_addc_u32 s%d, s%d, 0" % (sG, sE, sG, sG))
        a("s_and_b32 s%d, s%d, 3\ns_cmp_eq_u32 s%d, 1\ns_cselect_b32 s%d, s%d, s%d\ns_cselect_b32 s%d, 8, 0" % (sD, sS, sD, sG, sE, sG, sE))
        a("s_mul_i32 s%d, s%d, 7\ns_add_u32 s%d, s%d, s%d" % (sD, sX, sG, sG, sD))
        a("s_cmp_eq_u32 s%d, 5\ns_cselect_b32 s%d, 0x%x, 0" % (sC, sH, OOB))
        a("s_cmp_eq_u32 s%d, 1\ns_cselect_b32 s%d, 0x%x, 0" % (sC, sOK, OOB))

    def publish(self, lbl, data, voff, soff, far=sL):
        st = "buffer_store_dwordx4 %s, v%d, %s, s%d offen" % (vr(data), voff, srd("ws"), soff)
        self.a("s_cmp_eq_u32 s%d, 0\ns_cbranch_scc1 %s_near\n%s sc1\ns_branch %s_out\n%s_near:\n%s\n%s_out:" % (far, lbl, st, lbl, lbl, st + " " + self.o["npol"], lbl))

    def a_waves(self):
        a, o = self.a, self.o
        W, pol = o["wa"], o["pol"]
        WQ, KD, VD, VT, PV, QG, QB, SD = 48, 80, 112, 144, 176, 208, 224, 232
        kil = min(o["kil"], 1)
        HI = 0x80000 if kil else 0x1000
        self.ptr("k"); self.ptr("v")
        self.desc("wq")
        L = o["wil"]
        if L:
            a("v_lshrrev_b32 v3, %d, v6\nv_or_b32 v6, v3, v5" % L)
        a("v_lshl_add_u32 v11, v6, 13, v7")
        self.q_block(sC, sD)
        a("s_lshl_b32 s%d, s%d, 7\ns_lshl_b32 s%d, s%d, %d\ns_add_u32 s%d, s%d, s%d" % (sC, sC, sB, sB, 19 - L, sB, sB, sC))
        a("s_waitcnt lgkmcnt(0)")
        vm = VM(a)
        if o["tearly"]:
            a("s_load_dword s%d, s[%d:%d], 0" % (sT, SRD["ws"], SRD["ws"] + 1))
        self.load(16, 10, "x", "s%d" % sA)
        self.load(20, 10, "x", "s%d" % sA, 16)
        vm.note("x0"); vm.note("x1")

        def q_loads(v, p=o["gpol"], lbl="L_q0"):
            if o["qloc"]:
                a("s_lshr_b32 s%d, s%d, 1\ns_xor_b32 s%d, s%d, s%d\ns_bitcmp1_b32 s%d, 0\ns_cbranch_scc1 %s_far" % (sA, sW, sA, sA, sX, sA, lbl))
                for ks in range(4):
                    self.load(QG + 4 * ks, v, "ws", "s%d" % sF, ks * 1024, o["lpol"])
                a("s_branch %s_out\n%s_far:" % (lbl, lbl))
            for ks in range(4):
                self.load(QG + 4 * ks, v, "ws", "s%d" % sF, ks * 1024, p)
            a("%s_out:" % lbl)

        def issue(i):
            if i < 8:
                self.load(WQ + 4 * i, 11, "wq", "s%d" % sB, 0, pol)
                if i < 7:
                    a("s_add_u32 s%d, s%d, 0x%x" % (sB, sB, 8192 * (krow(i + 1, L) - krow(i, L))))
            elif i < 16:
                oc, hh = (i - 8) >> 1, (i - 8) & 1
                a("s_xor_b32 s%d, s%d, 0x%x" % (sC, sD, (oc >> 1) * HI + (oc & 1) * 512 + hh * 128))
                self.load(KD + 4 * (i - 8), 12, "k", "s%d" % sC, 0, pol)
            else:
                a("s_xor_b32 s%d, s%d, 0x%x" % (sC, sE, (i & 3) * 1024 + ((i - 16) >> 2) * HI))
                self.load(VD + 4 * (i - 16), 10, "v", "s%d" % sC, 0, pol)
            vm.note(i)
            if i == 16 + o["qpos"]:
                self.die_read(25)
            if i == 16 + o["qpos"] and "q" not in o["cut"]:
                q_loads(13)
                for ks in range(4):
                    vm.note("q%d" % ks)

        W0 = o["wa0"]
        assert W0 <= 8
        for i in range(W0):
            issue(i)
        if o["diag"]:
            a("s_mov_b64 s[%d:%d], s[%d:%d]" % (sST + 2, sST + 3, sST, sST + 1))
        else:
            self.stamp(1)
        if not o["tearly"]:
            a("s_load_dword s%d, s[%d:%d], 0" % (sT, SRD["ws"], SRD["ws"] + 1))
        self.desc("k"); self.desc("v"); self.desc("ws")
        a("s_and_b32 s%d, s%d, 1\ns_lshr_b32 s%d, s%d, 1\ns_lshl2_add_u32 s%d, s%d, s%d" % (sU, sX, sD, sX, sU, sU, sD))
        if not o["umap"]:
            a("s_mov_b32 s%d, s%d" % (sU, sX))
        a("s_lshl_b32 s%d, s%d, 23\ns_lshl_b32 s%d, s%d, %d\ns_add_u32 s%d, s%d, s%d" % (sD, sU, sE, sS, 15 - kil, sD, sD, sE))
        a("s_lshl_b32 s%d, s%d, %d\ns_add_u32 s%d, s%d, s%d\ns_add_u32 s%d, s%d, 0x%x" % (sE, sW, 13 - kil, sD, sD, sE, sD, sD, KVBASE))
        a("s_lshl2_add_u32 s%d, s%d, s%d" % (sA, sS, sW))
        if o["stx"]:
            a("s_add_u32 s%d, s%d, s%d" % (sA, sA, sX))
        a("s_mov_b32 s%d, 0" % sR)
        for c, bits in zip(o["stag"], (HI, 0x880, 0x600)):
            if c != "-":
                a("s_bitcmp1_b32 s%d, %s\ns_cselect_b32 s%d, 0x%x, 0\ns_or_b32 s%d, s%d, s%d" % (sA, c, sE, bits, sR, sR, sE))
        a("s_and_b32 s%d, s%d, 0x%x\ns_or_b32 s%d, s%d, s%d" % (sE, sR, HI + 0xc00, sE, sE, sD))
        a("s_and_b32 s%d, s%d, 0x%x\ns_or_b32 s%d, s%d, s%d" % (sA, sR, HI + 0x280, sD, sD, sA))
        a("v_and_b32 v3, 3, v1\nv_bfe_u32 v4, v1, 2, 1\nv_lshl_add_u32 v3, v3, 2, v4")
        a("v_lshrrev_b32 v4, 3, v1\nv_lshlrev_b32 v4, 4, v4\nv_lshl_add_u32 v12, v3, 8, v4")
        a("s_and_b32 s%d, s%d, 0xc00\nv_xor_b32 v12, s%d, v12" % (sA, sR, sA))
        a("v_lshlrev_b32 v13, 4, v1\ns_and_b32 s%d, s%d, 0x200\nv_xor_b32 v10, s%d, v13" % (sA, sR, sA))
        a("v_mov_b32 v2, 0xff\nv_mov_b32 v8, 1\nv_mov_b32 v9, 0\ns_mov_b32 s%d, %d" % (sCNT, o["spin"]))
        self.sel_x()
        a("s_lshl_b32 s%d, s%d, 3\ns_lshr_b32 s%d, s%d, 2\ns_add_u32 s%d, s%d, s%d" % (sRB, sX, sA, sS, sRB, sRB, sA))
        a("s_lshl_b32 s%d, s%d, 10\nv_add_u32 v5, s%d, v13" % (sA, sW, sA))
        a("s_lshl_b32 s%d, s%d, 14\ns_lshl_b32 s%d, s%d, 12\ns_add_u32 s%d, s%d, s%d\ns_add_u32 s%d, s%d, 0x%x" % (
            sF, sU, sA, sW, sF, sF, sA, sF, sF, QX))
        a("s_lshl2_add_u32 s%d, s%d, s%d" % (sA, sU, sW))
        self.spread(sF, sA, min(o["qch"], 16), sA)
        if o["qch"] == 32:
            a("s_lshr_b32 s%d, s%d, 2\ns_lshl_b32 s%d, s%d, %d\ns_add_u32 s%d, s%d, s%d" % (sA, sU, sA, sA, o["sh"] + 4, sF, sF, sA))
        a("s_mov_b32 s%d, 0x05040100\ns_mov_b32 s%d, 0x07060302" % (sG, sH))
        vm.wait("x1")
        a("ds_write_b128 v5, v[16:19] offset:%d\nds_write_b128 v5, v[20:23] offset:%d" % (XS, XS + 4096))
        self.x_operands()
        n = W0
        for i in range(24 - W):
            if i < 8 or n < i + 1 + W:
                vm.wait(i)
                if i in (0, 8, 10, 12, 15, 18):
                    self.stamp({0: 1, 8: 6, 10: 7, 12: 8, 15: 9, 18: 10}[i], True)
            while n < i + 1 + W:
                issue(n)
                n += 1
            if i < 8:
                self.mf16(40, 24 + 2 * i, WQ + 4 * i, i == 0)
                self.mf16(44, 24 + 2 * i, WQ + 4 * i + 2, i == 0)
            if i == 7:
                for r in range(4):
                    a("v_permlane16_swap_b32 v%d, v%d" % (40 + r, 44 + r))
                for r in range(4):
                    self.dpp("v_add_f32", 40 + r, 44 + r, 40 + r, "row_ror:8")
                a("ds_write_b128 v5, v[40:43] offset:%d" % RQ)
                a("s_waitcnt lgkmcnt(0)\ns_barrier")
                self.stamp(2)
                self.tags()
        a("s_barrier")
        self.stamp(3)
        a("v_lshrrev_b32 v3, 5, v1\ns_lshl_b32 s%d, s%d, 1\nv_add_u32 v3, s%d, v3" % (sA, sW, sA))
        a("v_and_b32 v4, 31, v1\nv_mul_u32_u24 v16, 272, v3\nv_lshl_add_u32 v16, v4, 3, v16")
        a("v_mul_u32_u24 v20, 528, v3\nv_lshl_add_u32 v20, v4, 4, v20\nv_lshlrev_b32 v21, 5, v3")
        a("v_lshrrev_b32 v4, 3, v4\nv_lshl_add_u32 v23, v3, 2, v4\nv_lshl_add_u32 v23, v23, 12, v7")
        a("v_and_b32 v3, 7, v1\nv_lshrrev_b32 v4, 3, v1\nv_mul_u32_u24 v17, 272, v3\nv_lshl_add_u32 v17, v4, 4, v17")
        a("v_mul_u32_u24 v18, 528, v3\nv_and_b32 v5, 0x30, v1\ns_mul_i32 s%d, s%d, 4224\nv_add3_u32 v18, v18, v5, s%d" % (sA, sW, sA))
        a("s_lshl_b32 s%d, s%d, 3\nv_lshlrev_b32 v19, 5, v3\nv_add_u32 v19, s%d, v19" % (sA, sW, sA))
        a("v_mov_b32 v22, s%d" % sW)
        a("s_andn2_b32 s%d, 0x80, s%d\nv_add_u32 v24, s%d, v17\ns_and_b32 s%d, s%d, 0x80\nv_add_u32 v17, s%d, v17" % (sA, sR, sA, sA, sR, sA))
        def transpose(j):
            vm.wait(16 + 2 * j + 1)
            for e in range(8):
                a("v_perm_b32 v%d, v%d, v%d, s%d" % (VT + 4 * e + j, VD + 8 * j + 4 + (e >> 1), VD + 8 * j + (e >> 1), sH if e & 1 else sG))
        early = (o["qpos"] + 1) // 2
        for j in range(early):
            transpose(j)
        vm.wait("die" if "q" in o["cut"] else "q3")
        self.die_test(25)
        if o["diag"]:
            a("s_cmp_lg_u32 s%d, 0\ns_cselect_b32 s%d, 1600, 0\ns_add_u32 s%d, s%d, s%d" % (sL, sA, sST + 2, sST + 2, sA))
        a("L_qchk:")
        self.untag(QG, 4, 3)
        a("s_branch L_qok" if o["cut"] else "s_cbranch_vccz L_qok")
        self.narrow()
        self.guard()
        q_loads(13, o["rpol"], "L_q1")
        self.count(1)
        a("s_waitcnt vmcnt(0)\ns_branch L_qchk\nL_qok:")
        self.widen()
        self.stamp(4)
        self.sum4(QG)
        a("v_cvt_pk_bf16_f32 v4, v%d, v%d\nv_cvt_pk_bf16_f32 v5, v%d, v%d" % (QG, QG + 1, QG + 2, QG + 3))
        a("ds_write_b64 v16, v[4:5] offset:%d\nds_write_b8 v22, v8 offset:%d" % (QI, F_Q))
        a("s_mov_b32 s%d, 0x01010101" % sA)
        a("L_qi:")
        self.guard()
        a("ds_read_b32 v3, v9 offset:%d" % F_Q)
        a("ds_read_b128 %s, v17 offset:%d\nds_read_b128 %s, v24 offset:%d" % (vr(QB), QI, vr(QB + 4), QI))
        a("s_waitcnt lgkmcnt(0)\nv_cmp_ne_u32 vcc, s%d, v3\ns_cbranch_vccnz L_qi" % sA)
        for hh in range(2):
            for oc in range(4):
                self.mf32(SD + 4 * oc, KD + 8 * oc + 4 * hh, QB + 4 * hh, hh == 0)
        for p in range(2):
            for r in range(4):
                a("v_permlane32_swap_b32 v%d, v%d" % (SD + 8 * p + r, SD + 8 * p + 4 + r))
        for r in range(4):
            self.dpp("v_add_f32", 28 + r, SD + 4 + r, SD + r, "row_ror:8", 0x3)
        for r in range(4):
            self.dpp("v_add_f32", 28 + r, SD + 8 + r, SD + 12 + r, "row_ror:8", 0xc)
        for r in range(4):
            self.rnd(28 + r, 28 + r)
        for r in range(4):
            a("v_mul_f32 v%d, 0x%x, v%d" % (28 + r, SCALE, 28 + r))
        for r in range(4):
            self.rnd(28 + r, 28 + r)
        a("v_max3_f32 v32, v28, v29, v30\nv_max_f32 v32, v32, v31")
        self.dpp("v_max_f32", 32, 32, 32, "row_ror:8")
        self.rows_allreduce("v_max_f32", 32, 3)
        a("s_mov_b32 s%d, 0x%x" % (sB, LOG2E))
        for r in range(4):
            a("v_sub_f32 v%d, v%d, v32" % (28 + r, 28 + r))
        for r in range(4):
            a("v_mul_f32 v%d, s%d, v%d" % (28 + r, sB, 28 + r))
        for r in range(4):
            a("v_exp_f32 v%d, v%d" % (28 + r, 28 + r))
        a("v_cvt_pk_bf16_f32 v36, v28, v29\nv_cvt_pk_bf16_f32 v37, v30, v31")
        a("v_add_f32 v33, v28, v29\nv_add_f32 v30, v30, v31")
        self.dpp("v_mov_b32", 38, 36, None, "row_ror:8")
        self.dpp("v_mov_b32", 39, 37, None, "row_ror:8")
        a("v_add_f32 v33, v33, v30")
        self.dpp("v_add_f32", 33, 33, 33, "row_ror:8")
        self.rows_allreduce("v_add_f32", 33, 3)
        for j in range(early, 4):
            transpose(j)
        for e in range(8):
            self.mf32(PV + 4 * e, VT + 4 * e, 36, True)
        a("s_mov_b32 exec_lo, 0x00ff00ff\ns_mov_b32 exec_hi, 0x00ff00ff")
        for e in range(8):
            a("ds_write_b128 v18, %s offset:%d" % (vr(PV + 4 * e), OL + 64 * e))
        a("ds_write_b64 v19, v[32:33] offset:%d" % MLL)
        a("ds_write_b8 v22, v8 offset:%d" % F_O)
        a("s_mov_b64 exec, -1")
        a("s_lshl_b32 s%d, s%d, 17\ns_lshl_b32 s%d, s%d, 7\ns_add_u32 s%d, s%d, 0x%x\ns_add_u32 s%d, s%d, s%d" % (sG, sX, sD, sS, sG, sG, OX, sC, sG, sD))
        a("s_mov_b32 s%d, 0x07060501\ns_mov_b32 s%d, 0x07060502\ns_mov_b32 s%d, 0x07060503" % (sD, sE, sF))
        a("L_ox:")
        self.guard()
        a("ds_read_b32 v3, v9 offset:%d" % F_O)
        a("ds_read_b128 v[28:31], v21 offset:%d\nds_read_b128 v[32:35], v21 offset:%d" % (MLL, MLL + 16))
        for k in range(4):
            a("ds_read_b128 %s, v20 offset:%d" % (vr(QG + 4 * k), OL + 4224 * k))
        a("s_waitcnt lgkmcnt(0)\nv_cmp_ne_u32 vcc, s%d, v3\ns_cbranch_vccnz L_ox" % sA)
        a("v_max3_f32 v36, v28, v30, v32\nv_max_f32 v36, v36, v34")
        for k in range(4):
            a("v_sub_f32 v%d, v%d, v36" % (28 + 2 * k, 28 + 2 * k))
        for k in range(4):
            a("v_mul_f32 v%d, s%d, v%d" % (28 + 2 * k, sB, 28 + 2 * k))
        for k in range(4):
            a("v_exp_f32 v%d, v%d" % (28 + 2 * k, 28 + 2 * k))
        a("v_mul_f32 v37, v28, v29")
        for k in range(1, 4):
            a("v_fmac_f32 v37, v%d, v%d" % (28 + 2 * k, 29 + 2 * k))
        a("v_log_f32 v38, v37\nv_rcp_f32 v37, v37")
        for r in range(4):
            a("v_mul_f32 v%d, v28, v%d" % (QG + r, QG + r))
        a("v_fmac_f32 v38, s%d, v36" % sB)
        for k in range(1, 4):
            for r in range(4):
                a("v_fmac_f32 v%d, v%d, v%d" % (QG + r, 28 + 2 * k, QG + 4 * k + r))
        for r in range(4):
            a("v_mul_f32 v%d, v37, v%d" % (QG + r, QG + r))
        a("v_bfi_b32 v%d, v2, s%d, v%d" % (QG, sT0, QG))
        for r in range(1, 4):
            a("v_perm_b32 v%d, v%d, v38, s%d" % (QG + r, QG + r, sD + r - 1))
        if "O" not in o["cut"]:
            self.publish("L_po", QG, 23, sC)
        self.stamp(5)
        self.ack(10)
        a("s_cmp_ge_u32 s%d, 2\ns_cbranch_scc1 L_H\ns_cmp_eq_u32 s%d, 1\ns_cbranch_scc1 L_HP" % (sW, sW))
        a("s_lshl_b32 s%d, s%d, 12\ns_add_u32 s%d, s%d, s%d\ns_mov_b32 s%d, 0x0c04000c" % (sC, sS, sC, sC, sG, sE))
        a("s_and_b32 s%d, s%d, 3\ns_lshl_b32 s%d, s%d, 5\ns_add_u32 s%d, s%d, s%d" % (sD, sU, sD, sD, sD, sD, sS))
        a("s_lshr_b32 s%d, s%d, 2\ns_lshl1_add_u32 s%d, s%d, s%d\ns_lshl_b32 s%d, s%d, 7\ns_add_u32 s%d, s%d, 0x%x" % (sA, sU, sD, sD, sA, sD, sD, sD, sD, O2))
        a("s_lshr_b32 s%d, s%d, 4\ns_xor_b32 s%d, s%d, s%d\ns_or_b32 s%d, s%d, s%d" % (sB, sS, sA, sA, sB, sL, sL, sA) if o["o2loc"] else "s_mov_b32 s%d, 1" % sL)
        a("s_lshl_b32 s%d, s%d, 9\ns_add_u32 s%d, s%d, 0x%x\ns_and_b32 s%d, s%d, 0xffff\ns_mov_b32 s%d, 0xffff" % (sF, sRB, sF, sF, O2, sG, sT, sH))
        a("s_lshr_b32 s%d, s%d, 9" % (sA, sD))
        self.spread(sD, sA, o["och"], sA)
        self.spread(sF, sRB, o["och"], sA)
        a("v_and_b32 v3, 15, v1\nv_lshrrev_b32 v4, 4, v1\nv_lshlrev_b32 v27, 1, v3\nv_lshl_add_u32 v27, v4, 7, v27\nv_mov_b32 v26, 0x101")
        if o["osrc"] == "x":
            a("s_mov_b32 s%d, 0" % sC)
        self.flag_wait("L_to", 9, F_T)
        self.stamp(6)
        def o_loads(p):
            self.count(32)
            for m in range(0 if "o" in o["cut"] else 4):
                self.load(WQ + 4 * m, 13, o["osrc"][:1] or "ws", "s%d" % sC, m * 1024, p)
        if o["opol"] != o["lpol"]:
            o_loads(o["opol"])
            a("s_branch L_ogc")
        a("L_og:")
        self.guard()
        o_loads(o["lpol"])
        a("L_ogc:")
        a("s_waitcnt vmcnt(0)")
        for m in range(4):
            d = WQ + 4 * m
            a("v_xor_b32 v%d, s%d, v%d\nv_perm_b32 v%d, v%d, v%d, s%d" % (d, sT0, d, 28 + m, d + 2, d + 1, sE))
            a("v_lshl_or_b32 v%d, v%d, 24, v%d" % (28 + m, d + 3, 28 + m))
        a("v_or3_b32 v3, v%d, v%d, v%d\nv_or_b32 v3, v3, v%d\nv_and_b32 v3, v2, v3\nv_cmp_ne_u32 vcc, 0, v3" % tuple(WQ + 4 * m for m in range(4)))
        a("v_max3_f32 v36, v28, v29, v30\nv_max_f32 v36, v36, v31")
        if not o["cut"]:
            self.again("L_og")
        self.dpp("v_max_f32", 36, 36, 36, "row_ror:8")
        self.rows_allreduce("v_max_f32", 36, 3)
        for m in range(4):
            a("v_sub_f32 v%d, v%d, v36" % (28 + m, 28 + m))
        for m in range(4):
            a("v_exp_f32 v%d, v%d" % (28 + m, 28 + m))
        for r in range(4):
            a("v_mul_f32 v%d, v28, v%d" % (40 + r, WQ + r))
        a("v_add_f32 v36, v28, v29\nv_add_f32 v37, v30, v31")
        for m in range(1, 4):
            for r in range(4):
                a("v_fmac_f32 v%d, v%d, v%d" % (40 + r, 28 + m, WQ + 4 * m + r))
            if m == 1:
                a("v_add_f32 v36, v36, v37")
            if m == 2:
                self.dpp("v_add_f32", 36, 36, 36, "row_ror:8")
        self.rows_allreduce("v_add_f32", 36, 3)
        a("v_rcp_f32 v36, v36")
        self.rows_scatter_sum([40])
        self.dpp("v_add_f32", 40, 40, 40, "row_ror:8")
        a("v_mul_f32 v40, v36, v40")
        self.rnd(40, 40)
        a("v_or_b32 v40, s%d, v40\nv_mov_b32 v41, v40\nv_permlane16_swap_b32 v40, v41" % sG)
        a("v_mov_b32 v42, v40\nv_mov_b32 v43, v41\nv_permlane32_swap_b32 v40, v42\nv_permlane32_swap_b32 v41, v43")
        a("s_mov_b64 exec, 0xff")
        if "2" not in o["cut"]:
            self.publish("L_p2", 40, 13, sD)
        self.stamp(8)
        a("s_mov_b32 exec_lo, -1\ns_and_b32 s%d, s%d, 1\ns_lshl_b32 s%d, s%d, 3\ns_lshr_b32 s%d, 0xff00ff00, s%d" % (sE, sX, sE, sE, sE, sE))
        if o["lag"] & 2:
            a("s_waitcnt vmcnt(0)")
        self.stamp(9)
        a("L_o2:")
        self.guard()
        self.count(32 * 8)
        if "2" not in o["cut"] and o["o2loc"]:
            a("s_mov_b32 exec_lo, s%d" % sE)
            self.load(44, 13, "ws", "s%d" % sF, 0, o["rpol"])
            a("s_not_b32 exec_lo, s%d" % sE)
            self.load(44, 13, "ws", "s%d" % sF, 0, o["lpol"])
            a("s_mov_b32 exec_lo, -1")
        elif "2" not in o["cut"]:
            self.load(44, 13, "ws", "s%d" % sF, 0, o["rpol"])
        a("s_waitcnt vmcnt(0)")
        for r in range(4):
            a("v_xor_b32 v%d, s%d, v%d" % (44 + r, sG, 44 + r))
        a("v_or3_b32 v3, v44, v45, v46\nv_or_b32 v3, v3, v47\nv_and_b32 v3, s%d, v3\nv_cmp_ne_u32 vcc, 0, v3" % sH)
        if not o["cut"]:
            a("s_cbranch_vccnz L_o2")
        for r in range(4):
            a("ds_write_b16_d16_hi v27, v%d offset:%d" % (44 + r, IM + 32 * r))
        a("ds_write_b16 v9, v26 offset:%d" % F_IM)
        self.stamp(7)
        self.finish()
        a("L_HP:")
        self.gu_tile()
        a("s_lshl_b32 s%d, s%d, 9\ns_mul_i32 s%d, s%d, 57344\ns_add_u32 s%d, s%d, s%d\ns_add_u32 s%d, s%d, 0x%x" % (
            sG, sG, sC, sKS, sG, sG, sC, sG, sG, HX))
        a("v_mov_b32 v5, s%d\nv_mov_b32 v6, s%d\nv_cmp_gt_u32 vcc, 32, v1\nv_lshrrev_b32 v4, 5, v1\nv_cndmask_b32 v5, v6, v5, vcc" % (sH, sOK))
        a("v_mul_u32_u24 v26, %d, v4\nv_add3_u32 v26, v26, v13, v5" % (28672 - 512))
        a("v_and_b32 v6, 1, v1\nv_lshlrev_b32 v27, 3, v6\nv_lshl_add_u32 v27, v4, 7, v27\nv_bfe_u32 v5, v1, 1, 1\nv_lshl_add_u32 v27, v5, 8, v27")
        a("v_bfe_u32 v5, v1, 2, 3\nv_lshl_add_u32 v27, v5, 4, v27\ns_mov_b32 s%d, 0x01010101" % sA)
        a("L_hp:")
        self.guard()
        a("ds_read_b32 v3, v9 offset:%d" % C_H)
        for k in range(4):
            a("ds_read2st64_b64 %s, v27 offset0:%d offset1:%d" % (vr(WQ + 4 * k), RH // 512 + 2 * k, RH // 512 + 2 * k + 1))
        a("s_waitcnt lgkmcnt(0)\nv_cmp_ne_u32 vcc, s%d, v3\ns_cbranch_vccnz L_hp" % sA)
        self.sum4(WQ)
        self.tag4(WQ, [WQ, WQ + 1, WQ + 2, WQ + 3])
        if "H" not in o["cut"]:
            self.publish("L_ph", WQ, 26, sG)
        self.stamp(7)
        self.finish()
        a("L_H:")
        a("s_lshl_b32 s%d, s%d, 1\ns_add_u32 s%d, s%d, s%d\ns_mul_i32 s%d, s%d, 224" % (sF, sRB, sF, sF, sW, sF, sF))
        a("s_add_u32 s%d, s%d, 0x%x\ns_add_u32 s%d, s%d, 28672" % (sF, sF, HX - 448, sG, sF))
        a("v_and_b32 v3, 15, v1\nv_min_u32 v3, 13, v3\nv_lshrrev_b32 v5, 4, v1")
        a("v_mul_u32_u24 v26, 57344, v5\nv_lshl_add_u32 v26, v3, 4, v26")
        a("v_and_b32 v4, 1, v3\nv_and_b32 v6, 1, v5\nv_lshl_add_u32 v4, v4, 1, v6\nv_and_b32 v3, 14, v3")
        a("v_lshl_add_u32 v27, v4, 5, v3\nv_lshrrev_b32 v5, 1, v5\nv_lshl_add_u32 v27, v5, 4, v27")
        a("s_lshl_b32 s%d, s%d, 7\nv_add_u32 v27, s%d, v27" % (sA, sW, sA))
        self.flag_wait("L_th", 22, F_T)
        self.stamp(6)
        def h_loads(p):
            self.count(1024)
            if "h" not in o["cut"]:
                self.load(QB, 26, "ws", "s%d" % sF, 0, p)
                self.load(QB + 4, 26, "ws", "s%d" % sG, 0, p)
        if o["hpol"] != o["lpol"]:
            h_loads(o["hpol"])
            a("s_branch L_hgc")
        a("L_hg:")
        self.guard()
        h_loads(o["lpol"])
        a("L_hgc:")
        a("s_waitcnt vmcnt(0)")
        self.untag(QB, 2, 3)
        if not o["cut"]:
            self.again("L_hg")
        self.rows_scatter_sum([QB, QB + 4])
        self.rnd(4, QB)
        self.rnd(5, QB + 4)
        self.sigmoid(4, 4)
        a("v_mul_f32 v4, v4, v5")
        self.rnd(4, 4)
        a("ds_write_b16_d16_hi v27, v4 offset:%d\nds_write_b8 v22, v8 offset:%d" % (IM, F_IM))
        self.stamp(7)
        self.finish()

    def preread(self):
        a, o = self.a, self.o
        if o["pre"]:
            a("s_lshl_b32 s%d, s%d, 5\ns_add_u32 s%d, s%d, s%d\nv_lshlrev_b32 v40, 4, v1" % (sU, sX, sU, sU, sS))
        if "o" in o["pre"]:
            a("s_lshl2_add_u32 s%d, s%d, s%d\ns_lshl_b32 s%d, s%d, 10\ns_add_u32 s%d, s%d, 0x%x" % (sR, sU, sW, sR, sR, sR, sR, OX))
            self.load(44, 40, "ws", "s%d" % sR, 0, o["ppol"])
        if "h" in o["pre"]:
            a("s_cmp_lg_u32 s%d, 1\ns_cbranch_scc1 L_npre" % sW)
            a("s_lshr_b32 s%d, s%d, 2\ns_mul_i32 s%d, s%d, 28672\ns_mul_i32 s%d, s%d, 3584\ns_add_u32 s%d, s%d, s%d" % (sR, sS, sR, sR, sU, sX, sR, sR, sU))
            a("s_and_b32 s%d, s%d, 3\ns_mul_i32 s%d, s%d, 896\ns_add_u32 s%d, s%d, s%d\ns_add_u32 s%d, s%d, 0x%x" % (sU, sS, sU, sU, sR, sR, sU, sR, sR, HX))
            a("s_mov_b32 exec_hi, 0xffffff")
            self.load(48, 40, "ws", "s%d" % sR, 0, o["ppol"])
            a("s_mov_b32 exec_hi, -1\nL_npre:")

    def finish(self):
        self.a("s_waitcnt lgkmcnt(0)")
        self.a("s_branch L_end" if self.o["stamps"] or self.o["hold"] else "s_endpgm")

    def f_waves(self):
        a, o = self.a, self.o
        W, pol = o["wf"], o["pol"]
        SEL, GU, WO, WD, Y, AO, DA, DB, VG = 56, 64, 128, 160, 188, 192, 224, 228, 232
        a("L_F:")
        for n in ("gw", "wg", "wu", "wo", "wd", "out"):
            self.ptr(n)
        self.desc("gw")
        if o["pf"] == 1:
            a("s_getpc_b64 s[%d:%d]\nL_pc:" % (sP, sP + 1))
            a("s_sub_u32 s%d, s%d, L_pc-%s_kernel\ns_subb_u32 s%d, s%d, 0" % (sP, sP, NAME, sP + 1, sP + 1))
            a("s_lshl_b32 s%d, s%d, 9\nv_lshl_add_u32 v250, v7, 2, s%d\nv_min_u32 v250, L_exit-%s_kernel, v250" % (sC, sS, sC, NAME))
            a("v_mov_b32 v251, s%d\nv_add_co_u32 v250, vcc, s%d, v250\ns_nop 1\nv_addc_co_u32 v251, vcc, 0, v251, vcc" % (sP + 1, sP))
            a("s_cmp_lg_u32 s%d, 0\ns_cbranch_scc1 L_nopf\nglobal_load_dword v252, v[250:251], off\nL_nopf:" % sW)
        a("v_and_b32 v3, 31, v1\nv_lshlrev_b32 v253, 4, v3\nv_lshrrev_b32 v4, 5, v1\nv_lshl_add_u32 v254, v4, 11, v253")
        a("v_mov_b32 v8, 1\nv_mov_b32 v9, 0\nv_mov_b32 v2, 0xff")
        a("s_waitcnt lgkmcnt(0)")
        a("s_load_dword s%d, s[%d:%d], 0" % (sT, SRD["ws"], SRD["ws"] + 1))
        self.stamp(1)
        self.desc("ws")
        if o["prepos"] == 0:
            self.preread()
        for n in ("wg", "wu", "wo", "wd", "out"):
            self.desc(n)
        a("v_lshlrev_b32 v3, 2, v1\nv_and_b32 v3, 31, v3\nds_write_b32 v3, v9")
        a("s_mov_b32 s%d, %d" % (sCNT, o["spin"]))
        a("s_lshl_b32 s%d, s%d, 2\nv_lshlrev_b32 v234, 4, v4\nv_add_u32 v235, s%d, v234" % (sA, sW, sA))
        self.gu_tile()
        a("s_lshr_b32 s%d, s%d, 1\nv_mov_b32 v244, s%d\ns_add_u32 s%d, s%d, s%d\nv_mov_b32 v247, s%d" % (sC, sW, sC, sE, sE, sC, sE))
        L = o["gil"]
        if L:
            a("v_lshrrev_b32 v3, %d, v6\nv_or_b32 v6, v3, v5" % L)
        a("v_mul_u32_u24 v11, 7168, v6\nv_add_u32 v11, v11, v7")
        a("v_add_u32 v246, s%d, v11\nv_add_u32 v11, s%d, v11" % (sOK, sH))
        a("s_mul_i32 s%d, s%d, %d\ns_lshl_b32 s%d, s%d, 7\ns_add_u32 s%d, s%d, s%d" % (sB, sB, (64 >> L) * 7168, sC, sG, sB, sB, sC))
        self.q_block(sA, sC)
        a("s_lshr_b32 s%d, s%d, 2\ns_lshl_b32 s%d, s%d, 12\ns_and_b32 s%d, s%d, 3\ns_lshl_b32 s%d, s%d, 8" % (sF, sA, sF, sF, sA, sA, sA, sA))
        a("s_add_u32 s%d, s%d, s%d\ns_lshl_b32 s%d, s%d, 10\ns_add_u32 s%d, s%d, s%d\ns_add_u32 s%d, s%d, 0x%x" % (
            sF, sF, sA, sA, sKS, sF, sF, sA, sF, sF, QX))
        a("s_lshr_b32 s%d, s%d, 12" % (sA, sF))
        self.spread(sF, sA, min(o["qch"], 16), sA)
        a("s_lshl_b32 s%d, s%d, 3\ns_lshr_b32 s%d, s%d, 2\ns_add_u32 s%d, s%d, s%d" % (sRB, sX, sA, sS, sRB, sRB, sA))
        if o["colmap"]:
            a("s_and_b32 s%d, s%d, 3\ns_and_b32 s%d, s%d, 1" % (sH, sS, sOK, sW))
            a("s_lshl_b32 s%d, s%d, 1\ns_add_u32 s%d, s%d, s%d\ns_lshl_b32 s%d, s%d, 8" % (sC, sH, sC, sC, sOK, sC, sC))
        else:
            a("s_and_b32 s%d, s%d, 3\ns_xor_b32 s%d, s%d, 2\ns_and_b32 s%d, s%d, 1" % (sH, sS, sH, sH, sOK, sW))
            a("s_lshl_b32 s%d, s%d, 3\ns_add_u32 s%d, s%d, s%d\ns_lshl_b32 s%d, s%d, 7" % (sC, sOK, sC, sC, sH, sC, sC))
        a("s_lshl_b32 s%d, s%d, 1\ns_lshr_b32 s%d, s%d, 1\ns_add_u32 s%d, s%d, s%d" % (sE, sRB, sA, sW, sE, sE, sA))
        a("s_lshr_b32 s%d, s%d, 2\ns_lshl_b32 s%d, s%d, 18\ns_and_b32 s%d, s%d, 3\ns_lshl_b32 s%d, s%d, 12" % (sD, sE, sD, sD, sA, sE, sA, sA))
        a("s_add_u32 s%d, s%d, s%d\ns_add_u32 s%d, s%d, s%d" % (sD, sD, sA, sD, sD, sC))
        a("s_mul_i32 s%d, s%d, %d\ns_add_u32 s%d, s%d, s%d" % (sE, sE, 28 * 2048, sE, sE, sC))
        a("v_lshrrev_b32 v3, 4, v1\nv_lshl_add_u32 v6, v5, %d, v7" % (7 if o["colmap"] else 9))
        a("v_lshl_add_u32 v12, v3, 14, v6\nv_lshl_add_u32 v13, v3, 11, v6")
        if o["oil"]:
            a("s_lshr_b32 s%d, s%d, 2\ns_lshr_b32 s%d, s%d, 1\ns_lshl1_add_u32 s%d, s%d, s%d\ns_lshl_b32 s%d, s%d, 13" % (sD, sS, sA, sW, sD, sD, sA, sD, sD))
            a("s_add_u32 s%d, s%d, s%d\ns_mul_i32 s%d, s%d, %d\ns_add_u32 s%d, s%d, s%d" % (sD, sD, sC, sE, sX, 448 * 2048, sE, sE, sD))
            a("s_lshl_b32 s%d, s%d, 20\ns_add_u32 s%d, s%d, s%d\nv_mov_b32 v12, v13" % (sA, sX, sD, sD, sA))
        a("s_lshl_b32 s%d, s%d, 10\nv_lshlrev_b32 v236, 4, v1\nv_add_u32 v236, s%d, v236" % (sA, sW, sA))
        a("v_mov_b32 v240, s%d" % sW)
        a("v_and_b32 v5, 15, v1\nv_lshlrev_b32 v6, 4, v5\nv_lshl_add_u32 v239, v3, 16, v6")
        if o["qch"] == 32:
            a("v_lshl_add_u32 v239, v3, %d, v239" % (o["sh"] + 4))
        a("v_and_b32 v6, 1, v1\nv_lshl_add_u32 v237, v3, 1, v6\nv_lshlrev_b32 v237, 8, v237")
        a("v_lshrrev_b32 v5, 1, v5\nv_lshl_add_u32 v237, v5, 4, v237")
        a("v_lshlrev_b32 v255, 8, v6\nv_lshl_add_u32 v255, v4, 9, v255\nv_bfe_u32 v5, v1, 1, 4\nv_lshl_add_u32 v255, v5, 4, v255")
        a("s_lshl_b32 s%d, s%d, 10\nv_add_u32 v255, s%d, v255" % (sA, sOK, sA))
        a("v_lshrrev_b32 v4, 2, v1\nv_and_b32 v5, 3, v1\nv_lshlrev_b32 v241, 4, v5\nv_lshl_add_u32 v241, v4, 12, v241")
        a("v_lshrrev_b32 v4, 3, v1\nv_lshlrev_b32 v243, 7, v244\nv_lshl_add_u32 v243, v4, 4, v243")
        a("v_lshlrev_b32 v242, 4, v1\nv_lshlrev_b32 v245, 3, v5\nv_lshl_add_u32 v245, v3, 1, v245")
        a("s_lshl_b32 s%d, s%d, 2\nv_mov_b32 v10, s%d" % (sA, sOK, sA))
        a("s_lshl_b32 s%d, s%d, 1\ns_add_u32 s%d, s%d, s%d\ns_lshl_b32 s%d, s%d, 16" % (sA, sH, sA, sA, sOK, sA, sA))
        a("s_lshl_b32 s%d, s%d, 6\ns_add_u32 s%d, s%d, s%d\ns_add_u32 s%d, s%d, 0x%x" % (sC, sRB, sA, sA, sC, sP, sA, FX))
        a("s_and_b32 s%d, s%d, 1\ns_or_b32 s%d, s%d, s%d" % (sA, sS, sOK, sOK, sA))
        a("s_lshl_b32 s%d, s%d, 16\ns_lshl_b32 s%d, s%d, 11\ns_add_u32 s%d, s%d, s%d\ns_add_u32 s%d, s%d, 0x%x" % (sA, sX, sC, sS, sA, sA, sC, sP + 1, sA, FX))
        a("s_bfe_u32 s%d, s%d, 0x10003" % (sC, sS))
        if o["colmap"]:
            a("s_lshl_b32 s%d, s%d, 1\ns_add_u32 s%d, s%d, s%d" % (sA, sX, sA, sA, sC))
        else:
            a("s_lshl_b32 s%d, s%d, 2\ns_lshr_b32 s%d, s%d, 1\ns_add_u32 s%d, s%d, s%d" % (sC, sC, sA, sX, sA, sA, sC))
            a("s_and_b32 s%d, s%d, 1\ns_lshl_b32 s%d, s%d, 3\ns_add_u32 s%d, s%d, s%d" % (sC, sX, sC, sC, sA, sA, sC))
        a("s_and_b32 s%d, s%d, 16\ns_add_u32 s%d, s%d, s%d\ns_lshl_b32 s%d, s%d, 7" % (sC, sS, sA, sA, sC, sA, sA))
        a("s_and_b32 s%d, s%d, 6\ns_lshl_b32 s%d, s%d, 4\ns_add_u32 s%d, s%d, s%d" % (sC, sS, sC, sC, sKS, sA, sC))
        self.sel_x()
        a("v_lshlrev_b32 v4, 4, v1\nv_mov_b32 v3, 0x0c0c0100\nv_alignbit_b32 v5, v3, v3, v4")
        a("v_mov_b32 v3, 0x0c0c0302\nv_alignbit_b32 v6, v3, v3, v4\nv_bfe_u32 v7, v1, 1, 2\nv_mov_b32 v4, 0x0c0c0c0c")
        for j in range(4):
            a("v_cmp_eq_u32 vcc, %d, v7\nv_cndmask_b32 v%d, v4, v5, vcc\nv_cndmask_b32 v%d, v4, v6, vcc" % (j, SEL + j, SEL + 4 + j))
        a("s_lshl_b32 s%d, s%d, 9\ns_waitcnt lgkmcnt(0)" % (sC, sW))
        self.tags()
        a("s_cmp_lg_u32 s%d, 0\ns_cbranch_scc1 L_nodie" % sW)
        a("s_lshl_b32 s%d, s%d, 5\ns_add_u32 s%d, s%d, s%d\ns_lshl_b32 s%d, s%d, 2\ns_add_u32 s%d, s%d, 0x%x" % (sA, sX, sA, sA, sS, sA, sA, sA, sA, DX))
        a("s_xor_b32 s%d, s%d, s%d\nv_mov_b32 v3, s%d\ns_mov_b64 exec, 1" % (sU, sL, sT, sU))
        a("buffer_store_dword v3, v9, %s, s%d offen\ns_mov_b64 exec, -1" % (srd("ws"), sA))
        if o["qloc"]:
            a("s_waitcnt vmcnt(0)")
            self.die_read(25)
        a("L_nodie:\ns_barrier")
        a("s_cmp_lg_u32 s%d, 0\ns_cbranch_scc1 L_noq" % sW)
        for k in range(4):
            a("ds_read_b128 %s, v237 offset:%d" % (vr(GU + 4 * k), RQ + 1024 * k))
        a("s_waitcnt lgkmcnt(0)")
        self.sum4(GU)
        self.tag4(248, [GU, GU + 1, GU + 2, GU + 3])
        if o["qloc"]:
            a("s_mov_b32 s%d, 0xffff\ns_not_b32 s%d, s%d\ns_bitcmp1_b32 s%d, 0\ns_cselect_b32 s%d, s%d, s%d\ns_mov_b32 exec_lo, s%d\ns_mov_b32 exec_hi, 0" % (
                  sA, sU, sA, sX, sU, sA, sU, sU))
            if "Q" not in o["cut"]:
                a("buffer_store_dwordx4 v[248:251], v239, %s, s%d offen sc1" % (srd("ws"), sF))
            a("s_mov_b32 exec_lo, -1\ns_waitcnt vmcnt(%d)" % ("Q" not in o["cut"]))
            self.die_test(25)
            a("s_not_b32 exec_lo, s%d" % sU)
            if "Q" not in o["cut"]:
                self.publish("L_pq", 248, 239, sF)
            a("s_mov_b64 exec, -1")
        else:
            a("s_mov_b32 exec_hi, 0")
            if "Q" not in o["cut"]:
                a("buffer_store_dwordx4 v[248:251], v239, %s, s%d offen sc1" % (srd("ws"), sF))
            a("s_mov_b32 exec_hi, -1")
        a("L_noq:")
        self.stamp(2)
        if o["prepos"] == 1:
            self.preread()
        if "g" not in o["cut"]:
            self.load(GU, 254, "x", "s%d" % sC)
            self.load(GU + 4, 253, "gw", "s%d" % sC)
        a("ds_read_b128 v[16:19], v236 offset:%d\nds_read_b128 v[20:23], v236 offset:%d\ns_waitcnt lgkmcnt(0)" % (XS, XS + 4096))
        self.x_operands()
        a("s_waitcnt vmcnt(0)")
        self.ack(1)
        self.stamp(1, True)
        t = GU + 8
        for j in range(4):
            a("v_lshlrev_b32 v%d, 16, v%d\nv_lshlrev_b32 v%d, 16, v%d" % (t + j, GU + j, t + 4 + j, GU + 4 + j))
            a("v_and_b32 v%d, 0xffff0000, v%d\nv_and_b32 v%d, 0xffff0000, v%d" % (GU + j, GU + j, GU + 4 + j, GU + 4 + j))
        for j in range(4):
            a("v_mul_f32 v%d, v%d, v%d\nv_mul_f32 v%d, v%d, v%d" % (t + j, t + j, t + 4 + j, GU + j, GU + j, GU + 4 + j))
        for j in range(4):
            self.rnd(t + j, t + j); self.rnd(GU + j, GU + j)
        for j in range(4):
            a("v_add_f32 v%d, v%d, v%d" % (t + j, t + j, GU + j))
        a("v_add_f32 v%d, v%d, v%d\nv_add_f32 v%d, v%d, v%d\nv_add_f32 v4, v%d, v%d" % (t, t, t + 1, t + 2, t + 2, t + 3, t, t + 2))
        for n in (8, 4, 2, 1):
            self.dpp("v_add_f32", 4, 4, 4, "row_ror:%d" % n)
        self.rows_allreduce("v_add_f32", 4, 3, (16,))
        a("ds_write_b32 v235, v4 offset:%d" % GP)
        a("s_waitcnt lgkmcnt(0)")
        a("s_barrier")
        self.stamp(3)

        def issue(i):
            if i < 16 and o["ilv"]:
                self.load(GU + 4 * i, 246 if i & 1 else 11, "wu" if i & 1 else "wg", "s%d" % sB, 0, pol)
                if i & 1 and i < 15:
                    a("s_add_u32 s%d, s%d, %d" % (sB, sB, 7168 * (krow(i // 2 + 1, L) - krow(i // 2, L))))
            elif i < 16:
                self.load(GU + 4 * i, 246 if i >= 8 else 11, "wu" if i >= 8 else "wg", "s%d" % sB, 0, pol)
                if i == 7:
                    a("s_sub_u32 s%d, s%d, %d" % (sB, sB, 7168 * krow(7, L)))
                elif i < 15:
                    a("s_add_u32 s%d, s%d, %d" % (sB, sB, 7168 * (krow((i & 7) + 1, L) - krow(i & 7, L))))
            elif i < 24:
                k = i - 16
                m = (k >> 1) + 4 * (k & 1)
                self.load(WO + 4 * m, 12, "wo", "s%d" % sD, 0 if o["oil"] else 2048 * (k & 1), pol)
                if o["oil"]:
                    a("s_add_u32 s%d, s%d, 0x20000" % (sD, sD))
                elif k & 1 and k < 7:
                    a("s_add_u32 s%d, s%d, 0x10000" % (sD, sD))
            else:
                m = i - 24
                self.load(WD + 4 * m, 13, "wd", "s%d" % sE, 0, pol)
                if m < 6:
                    a("s_add_u32 s%d, s%d, 0x%x" % (sE, sE, 0x20000 if o["oil"] else 0x2000))

        for i in range(W):
            issue(i)
        a("ds_read_b128 v[4:7], v234 offset:%d\ns_waitcnt lgkmcnt(0)" % GP)
        a("v_add_f32 v4, v4, v5\nv_add_f32 v6, v6, v7\nv_add_f32 v4, v4, v6")
        self.rnd(4, 4)
        self.sigmoid(VG, 4)
        a("v_sub_f32 v%d, 1.0, v%d" % (VG + 1, VG))
        self.rnd(VG + 1, VG + 1)
        for i in range(max(31 - W, 16)):
            if i + W < 31:
                a("s_waitcnt vmcnt(%d)" % (W - 1))
                if i in (0, 4, 8, 12, 20):
                    self.stamp({0: 6, 4: 7, 8: 8, 12: 9, 20: 10}[i], True)
                issue(i + W)
            else:
                a("s_waitcnt vmcnt(%d)" % (30 - i))
            if i < 16:
                gu, m = (i & 1, i >> 1) if o["ilv"] else (i >> 3, i & 7)
                self.mf16(40 + 8 * gu, 24 + 2 * m, GU + 4 * i, m == 0)
                self.mf16(44 + 8 * gu, 24 + 2 * m, GU + 4 * i + 2, m == 0)
            last = max(31 - W, 16) - 1
            for flag, step, dl in ((F_T, o["to"], o["tol"]), (F_T + 2, o["th"], o["thl"])):
                if i == min(step + (0 if o["ilv"] else dl), last):
                    a("ds_write_b8 v244, v8 offset:%d" % flag)
                elif i == step:
                    a("ds_write_b8 v247, v8 offset:%d" % flag)
            if i == 15:
                for r in range(4):
                    a("v_permlane16_swap_b32 v%d, v%d" % (40 + r, 44 + r))
                for r in range(4):
                    a("v_permlane16_swap_b32 v%d, v%d" % (48 + r, 52 + r))
                for r in range(4):
                    self.dpp("v_add_f32", 40 + r, 44 + r, 40 + r, "row_ror:8", 0x3)
                for r in range(4):
                    self.dpp("v_add_f32", 40 + r, 48 + r, 52 + r, "row_ror:8", 0xc)
                a("ds_write_b128 v236, v[40:43] offset:%d" % RH)
                a("ds_write_b8 v240, v8 offset:%d" % C_H)
                self.stamp(4)
        self.stamp(5)

        def image(lbl, flag, img):
            a("%s:" % lbl)
            self.guard()
            a("ds_read_u8 v3, v244 offset:%d\nds_read_b128 %s, v243 offset:%d" % (flag, vr(Y), img))
            a("s_waitcnt lgkmcnt(0)\nv_cmp_ne_u32 vcc, 1, v3\ns_cbranch_vccnz %s" % lbl)

        def operands(m):
            for j in range(4):
                a("v_perm_b32 v%d, v%d, v%d, v%d" % (AO + 4 * m + j, Y + (m >> 1), Y + (m >> 1), SEL + 4 * (m & 1) + j))

        image("L_oi", F_IM, IM)
        self.stamp(6)
        operands(0)
        a("s_waitcnt vmcnt(7)")
        for m in range(8):
            if m < 7:
                operands(m + 1)
            self.mf32(DA, AO + 4 * m, WO + 4 * m, m == 0)
        image("L_hi", F_IM + 2, IM + 256)
        self.stamp(7)
        operands(0)
        for m in range(7):
            if m < 6:
                operands(m + 1)
            else:
                for r in range(4):
                    a("v_mul_f32 v%d, v%d, v%d" % (DA + r, VG, DA + r))
            a("s_waitcnt vmcnt(%d)" % (6 - m))
            self.mf32(DB, AO + 4 * m, WD + 4 * m, m == 0)
        for r in range(4):
            a("v_fmac_f32 v%d, v%d, v%d" % (DA + r, VG + 1, DB + r))
        a("ds_write_b128 v236, %s offset:%d" % (vr(DA), RF))
        self.stamp(8)
        a("s_mov_b64 exec, 1\nds_add_rtn_u32 v3, v10, v8 offset:%d\ns_mov_b64 exec, -1" % C_F)
        a("ds_read_b128 %s, v255 offset:%d\nds_read_b128 %s, v255 offset:%d" % (vr(DA), RF, vr(DB), RF + 2048))
        a("s_waitcnt lgkmcnt(0)\nv_readfirstlane_b32 s%d, v3" % sA)
        for r in range(4):
            a("v_add_f32 v%d, v%d, v%d" % (DA + r, DA + r, DB + r))
        a("s_cmp_lg_u32 s%d, 1\ns_cbranch_scc1 L_end" % sA)
        self.tag4(DA, [DA + r for r in range(4)])
        if o["fcut"]:
            a("s_mov_b64 exec, 0x%x" % ((1 << (32 >> (o["fcut"] - 1))) - 1) if o["fcut"] > 1 else "s_mov_b32 exec_hi, 0")
        a("buffer_store_dwordx4 %s, v241, %s, s%d offen sc1" % (vr(DA), srd("ws"), sP))
        if o["fcut"]:
            a("s_mov_b64 exec, -1\ns_cmp_ge_u32 s%d, %d\ns_cselect_b32 s%d, 1, s%d" % (sS, 32 >> o["fcut"], sOK, sOK))
        self.stamp(9)
        a("s_cmp_lg_u32 s%d, 0\ns_cbranch_scc1 L_end" % sOK)
        if o["lag"] & 1:
            a("s_waitcnt vmcnt(0)")
        a("L_fin:")
        self.guard()
        for m in range(4):
            self.load(40 + 4 * m, 242, "ws", "s%d" % (sP + 1), 1024 * m, o["rpol"])
        a("s_waitcnt vmcnt(0)")
        self.untag(40, 4, 3)
        self.again("L_fin")
        self.stamp(10)
        self.sum4(40)
        self.rows_scatter_sum([40])
        for n in (8, 4):
            self.dpp("v_add_f32", 40, 40, 40, "row_ror:%d" % n)
        self.rnd(40, 40)
        a("s_mov_b32 exec_lo, 0x000f000f\ns_mov_b32 exec_hi, 0x000f000f")
        a("buffer_store_short_d16_hi v40, v245, %s, s%d offen %s" % (srd("out"), sKS, o["outpol"]))
        a("s_cmp_lg_u32 s2, 0\ns_cbranch_scc1 L_end")
        a("s_mov_b64 exec, 1\nv_mov_b32 v3, s%d\nbuffer_store_dword v3, v9, %s, 0 offen sc1" % (sT, srd("ws")))

    def epilogue(self):
        a = self.a
        a("L_end:")
        if self.o["stamps"]:
            a("s_mov_b64 exec, 1\ns_waitcnt vmcnt(0)")
            self.stamp(NST - 1)
            a("s_waitcnt lgkmcnt(0)")
            a("s_lshl_b32 s%d, s3, 8\ns_add_u32 s%d, s%d, s2\ns_mul_i32 s%d, s%d, %d\ns_add_u32 s%d, s%d, 0x%x" % (
                sA, sA, sA, sA, sA, NST * 8, sA, sA, STAMP_OFF))
            a("v_mov_b32 v1, s%d" % sA)
            for i in range(NST):
                a("v_mov_b32 v4, s%d\nv_mov_b32 v5, s%d" % (sST + 2 * i, sST + 2 * i + 1))
                a("buffer_store_dwordx2 v[4:5], v1, %s, 0 offen offset:%d\ns_nop 1" % (srd("ws"), 8 * i))
        if self.o["hold"]:
            a("s_cmp_lg_u32 s3, %d\ns_cbranch_scc1 L_exit" % self.o["ampwave"])
            if self.o["ampwg"] is not None:
                a("s_cmp_lg_u32 s2, %d\ns_cbranch_scc1 L_exit" % self.o["ampwg"])
            a("s_waitcnt lgkmcnt(0)\ns_mov_b32 s%d, %d" % (sA, self.o["hold"]))
            if self.o["amp"]:
                a("s_sub_u32 s%d, s%d, s%d\ns_lshl_b32 s%d, s%d, 2\ns_and_b32 s%d, s%d, 0x3fff\ns_add_u32 s%d, s%d, s%d" % (
                    sB, sST + 2 * self.o["amp"], sST, sB, sB, sB, sB, sA, sA, sB))
            a("L_hold:\ns_memrealtime s[%d:%d]\ns_waitcnt lgkmcnt(0)\ns_sub_u32 s%d, s%d, s%d\ns_cmp_lt_u32 s%d, s%d\ns_cbranch_scc1 L_hold" % (
                sD, sD + 1, sD, sD, sST, sD, sA))
        a("L_exit:\ns_endpgm")

    def build(self):
        if self.o["stamps"]:
            for i in range(1, NST):
                self.a("s_mov_b64 s[%d:%d], 0" % (sST + 2 * i, sST + 2 * i + 1))
        self.prologue()
        self.a_waves()
        self.f_waves()
        self.epilogue()
        lab = NAME + "_kernel"
        lines = [l[:-3] + self.o["spol"] if "buffer_store_dwordx4" in l and l.endswith("sc1") and "v241" not in l else l for l in self.a.lines]
        body = "\n".join(hazard.pad(lines)) + "\n"
        return (header(["; @launch grid=(256,1,1) block=(512,1,1) lds=%d" % LDS_BYTES]) + kernel_open(lab) + body
                + RODATA + descriptor(lab, 256))


def main():
    out = sys.argv[1]
    kw = {}
    for s in sys.argv[2:]:
        k, v = s.split("=")
        try:
            v = v if k == "stag" else int(v, 0)
        except ValueError:
            pass
        kw[k] = v.replace("+", " ") if isinstance(v, str) else v
    open(out, "w").write(Gen(**kw).build())


if __name__ == "__main__":
    main()
```

```python
import sys
from asmlib import *
import hazard

DEFAULTS = dict(wa=5, wf=5, pol="nt", stamps=False, spin=100000, outpol="", wa0=8, qpos=7, to=18, th=24, wsoff=0, pf=2, tearly=1, ilv=0, colmap=0, mask=1, fine=0, sync=None, stag="102", stx=0, tol=3, thl=8, cut="", pre="", prepos=1, lag=1, gpol="sc1", fst="sc1", fld="sc1", xpol="", qch=0, och=0, hch=0, fch=0, sb=2, sh=18, opol="sc1", hpol="sc1", rpol="sc1", spol="sc1", diag=0, hold=0, ampend=0, amp=None, ampwave=0, ampwg=None)

QX, HX, FX, OX = 0x10000, 0x40000, 0x80000, 0x100000
STAMP_OFF = 128 << 20
F_Q, F_O, C_H, F_IM, C_F, F_T = 0, 4, 8, 12, 16, 24
GP, MLL, IM = 64, 256, 512
RQ, RH, RF, QI, OL = 2048, 6144, 10240, 14336, 16640
XS = OL + 4 * 4224
LDS_BYTES = XS + 8192
SRD = dict(x=4, wq=8, k=12, v=16, wg=20, wu=24, wo=28, wd=32, gw=36, ws=40, out=44)
sX, sS, sW, sT, sT0, sCNT = 48, 49, 50, 51, 52, 56
sA, sB, sC, sD, sE, sF, sG, sH, sRB, sKS = 57, 58, 59, 60, 61, 62, 63, 64, 65, 66
sOK, sP, sR = 67, 68, 94
sST = 70
NST = 12
OOB = 0x7f000000
LOG2E = 0x3fb8aa3b
SCALE = 0x3db504f3
KVBASE = (32768 - 4096) * 256


def srd(n):
    return "s[%d:%d]" % (SRD[n], SRD[n] + 3)


def vr(b, n=4):
    return "v[%d:%d]" % (b, b + n - 1)


class VM:
    def __init__(self, a):
        self.a, self.q = a, []

    def note(self, name):
        self.q.append(name)

    def wait(self, name):
        self.a("s_waitcnt vmcnt(%d)" % (len(self.q) - 1 - self.q.index(name)))


class Gen:
    def __init__(self, **kw):
        self.o = dict(DEFAULTS)
        self.o.update(kw)
        self.a = Asm()
        global QX, HX, FX, OX
        QX, HX, FX, OX = (v + (self.o["wsoff"] << 20) for v in (QX, HX, FX, OX))

    def spread(self, d, idx, n, t):
        if n:
            self.a("s_and_b32 s%d, s%d, %d\ns_lshl_b32 s%d, s%d, %d\ns_add_u32 s%d, s%d, s%d\ns_add_u32 s%d, s%d, 0x%x" % (
                t, idx, n - 1, t, t, self.o["sh"], d, d, t, d, d, self.o["sb"] << 20))

    def stamp(self, i, fine=False):
        if self.o["fine"] and i in (1, 6, 7, 8, 9, 10) and not fine or fine and not self.o["fine"]:
            return
        if self.o["stamps"] or (self.o["hold"] and i in (0, self.o["amp"])) or (self.o["ampend"] and i == 0):
            self.a("s_memrealtime s[%d:%d]" % (sST + 2 * i, sST + 2 * i + 1))

    def count(self, unit):
        if self.o["diag"]:
            self.a("s_add_u32 s%d, s%d, %d" % (sST + 2, sST + 2, 100 * unit))

    def ack(self, i):
        if self.o["diag"]:
            self.a("s_waitcnt vmcnt(0)")
            self.stamp(i)

    def ptr(self, n):
        self.a("s_load_dwordx2 s[%d:%d], s[0:1], %d" % (SRD[n], SRD[n] + 1, KARG[n]))

    def desc(self, n):
        self.a("s_mov_b32 s%d, 0x%x\ns_mov_b32 s%d, 0x20000" % (SRD[n] + 2, SIZE[n], SRD[n] + 3))

    def guard(self):
        self.a("s_sub_u32 s%d, s%d, 1\ns_cbranch_scc1 L_end" % (sCNT, sCNT))

    def load(self, dst, voff, buf, soff, imm=0, pol=""):
        self.a("buffer_load_dwordx4 %s, v%d, %s, %s offen%s%s" % (
            vr(dst), voff, srd(buf), soff, " offset:%d" % imm if imm else "", " " + pol if pol else ""))

    def flag_wait(self, lbl, vaddr, flag):
        self.a("%s:" % lbl)
        self.guard()
        self.a("ds_read_u8 v3, v%d offset:%d\ns_waitcnt lgkmcnt(0)\nv_cmp_ne_u32 vcc, 1, v3\ns_cbranch_vccnz %s" % (vaddr, flag, lbl))

    def tags(self):
        a = self.a
        a("s_add_u32 s%d, s%d, 0x01010101" % (sT, sT))
        a("s_and_b32 s%d, s%d, 0xff" % (sT0, sT))
        a("s_bfe_u32 s%d, s%d, 0x80008" % (sT0 + 1, sT))
        a("s_bfe_u32 s%d, s%d, 0x80010" % (sT0 + 2, sT))
        a("s_lshr_b32 s%d, s%d, 24" % (sT0 + 3, sT))

    def tag4(self, dst, src):
        for j in range(4):
            self.a("v_bfi_b32 v%d, v2, s%d, v%d" % (dst + j, sT0 + j, src[j]))

    def untag(self, base, n, acc, cmp=True, also=None):
        a = self.a
        regs = list(range(base, base + 4 * n))
        for r in regs:
            a("v_xor_b32 v%d, s%d, v%d" % (r, sT0 + (r - base) % 4, r))
        a("v_or_b32 v%d, v%d, v%d" % (acc, regs[0], regs[1]))
        for i in range(2, len(regs), 2):
            a("v_or3_b32 v%d, v%d, v%d, v%d" % (acc, acc, regs[i], regs[i + 1]))
        if also is not None:
            a("v_or_b32 v%d, v%d, v%d" % (acc, acc, also))
        if cmp:
            a("v_and_b32 v%d, v2, v%d" % (acc, acc))
            a("v_cmp_ne_u32 vcc, 0, v%d" % acc)

    def narrow(self):
        if self.o["mask"]:
            self.a("s_wqm_b64 exec, vcc")

    def widen(self):
        if self.o["mask"]:
            self.a("s_mov_b64 exec, -1")

    def again(self, lbl):
        self.narrow()
        self.a("s_cbranch_vccnz %s" % lbl)
        self.widen()

    def dpp(self, op, d, s0, s1, ctl, bank=0xf):
        self.a("%s_dpp v%d, v%d, %s%s row_mask:0xf bank_mask:0x%x" % (
            op, d, s0, "v%d " % s1 if s1 is not None else "", ctl, bank) if s1 is not None else
            "%s_dpp v%d, v%d %s row_mask:0xf bank_mask:0x%x" % (op, d, s0, ctl, bank))

    def rows_allreduce(self, op, x, t, which=(16, 32)):
        for n in which:
            self.a("v_mov_b32 v%d, v%d\nv_permlane%d_swap_b32 v%d, v%d\n%s v%d, v%d, v%d" % (t, x, n, x, t, op, x, x, t))

    def rows_scatter_sum(self, sets):
        a = self.a
        for b in sets:
            a("v_permlane32_swap_b32 v%d, v%d\nv_permlane32_swap_b32 v%d, v%d" % (b, b + 2, b + 1, b + 3))
        for b in sets:
            a("v_add_f32 v%d, v%d, v%d\nv_add_f32 v%d, v%d, v%d" % (b, b, b + 2, b + 1, b + 1, b + 3))
        for b in sets:
            a("v_permlane16_swap_b32 v%d, v%d" % (b, b + 1))
        for b in sets:
            a("v_add_f32 v%d, v%d, v%d" % (b, b, b + 1))

    def rnd(self, d, s):
        self.a("v_cvt_pk_bf16_f32 v%d, 0, v%d" % (d, s))

    def sigmoid(self, d, z):
        a = self.a
        a("v_mul_f32 v%d, 0x%x, v%d" % (d, LOG2E ^ 0x80000000, z))
        a("v_exp_f32 v%d, v%d\nv_add_f32 v%d, 1.0, v%d\nv_rcp_f32 v%d, v%d" % (d, d, d, d, d, d))
        self.rnd(d, d)

    def sel_x(self):
        a = self.a
        a("v_bfe_u32 v3, v1, 2, 1\nv_mul_u32_u24 v3, 0x202, v3\nv_add_u32 v3, 0x0c0c0100, v3")
        a("v_lshlrev_b32 v4, 4, v1\nv_alignbit_b32 v3, v3, v3, v4")
        a("v_and_b32 v4, 2, v1\nv_cmp_eq_u32 vcc, 0, v4\nv_mov_b32 v4, 0x0c0c0c0c")
        a("v_cndmask_b32 v14, v4, v3, vcc\nv_cndmask_b32 v15, v3, v4, vcc")

    def x_operands(self):
        for m in range(8):
            self.a("v_perm_b32 v%d, v%d, v%d, v14\nv_perm_b32 v%d, v%d, v%d, v15" % (
                24 + 2 * m, 16 + m, 16 + m, 25 + 2 * m, 16 + m, 16 + m))

    def mf16(self, d, av, bv, first):
        self.a("v_mfma_f32_16x16x16_bf16 %s, %s, %s, %s" % (vr(d), vr(av, 2), vr(bv, 2), "0" if first else vr(d)))

    def mf32(self, d, av, bv, first):
        self.a("v_mfma_f32_16x16x32_bf16 %s, %s, %s, %s" % (vr(d), vr(av), vr(bv), "0" if first else vr(d)))

    def sum4(self, b):
        for r in range(4):
            self.a("v_add_f32 v%d, v%d, v%d\nv_add_f32 v%d, v%d, v%d" % (b + r, b + r, b + 4 + r, b + 8 + r, b + 8 + r, b + 12 + r))
        for r in range(4):
            self.a("v_add_f32 v%d, v%d, v%d" % (b + r, b + r, b + 8 + r))

    def last_arriver(self, cnt, skip):
        a = self.a
        a("s_mov_b64 exec, 1\nds_add_rtn_u32 v3, v9, v8 offset:%d\ns_mov_b64 exec, -1" % cnt)
        a("s_waitcnt lgkmcnt(0)\nv_readfirstlane_b32 s%d, v3\ns_cmp_lg_u32 s%d, 3\ns_cbranch_scc1 %s" % (sA, sA, skip))

    def prologue(self):
        a = self.a
        self.stamp(0)
        if self.o["sync"] is not None:
            a("s_waitcnt lgkmcnt(0)\ns_add_u32 s4, s%d, 300\ns_or_b32 s4, s4, 0x7ff\ns_and_b32 s5, s2, 6\ns_cselect_b32 s5, %d, 0\ns_add_u32 s4, s4, s5" % (sST, self.o["sync"]))
            a("L_sync:\ns_memrealtime s[%d:%d]\ns_waitcnt lgkmcnt(0)\ns_sub_u32 s5, s%d, s4\ns_cmp_lt_i32 s5, 0\ns_cbranch_scc1 L_sync" % (sST, sST + 1, sST))
        a("s_cmp_ge_u32 s2, 256\ns_cbranch_scc1 L_exit")
        for n in ("x", "wq", "ws"):
            self.ptr(n)
        a("s_lshr_b32 s%d, s2, 3" % sS)
        if self.o["pf"] == 2:
            a("s_getpc_b64 s[%d:%d]\nL_pc:" % (sP, sP + 1))
            a("s_lshl_b32 s%d, s%d, 9\ns_min_u32 s%d, s%d, L_exit-L_pc-512" % (sA, sS, sA, sA))
            a("s_add_u32 s%d, s%d, s%d\ns_addc_u32 s%d, s%d, 0" % (sP, sP, sA, sP + 1, sP + 1))
            a("v_add_co_u32 v250, vcc, s%d, v0\nv_mov_b32 v251, s%d\nv_lshrrev_b32 v3, 6, v0\nv_addc_co_u32 v251, vcc, 0, v251, vcc" % (sP, sP + 1))
            a("global_load_ubyte v252, v[250:251], off " + self.o["xpol"])
        else:
            a("v_lshrrev_b32 v3, 6, v0")
        a("v_and_b32 v1, 63, v0\ns_and_b32 s%d, s2, 7" % sX)
        a("v_readfirstlane_b32 s3, v3")
        a("s_lshr_b32 s%d, s%d, 1" % (sKS, sX))
        self.desc("x")
        a("v_bfe_u32 v5, v1, 3, 1\nv_and_b32 v6, 0x30, v1\nv_and_b32 v7, 7, v1")
        a("s_and_b32 s%d, s3, 3" % sW)
        a("v_lshlrev_b32 v10, 11, v5\nv_lshl_add_u32 v10, v6, 1, v10")
        a("v_or_b32 v6, v6, v5\nv_lshlrev_b32 v7, 4, v7")
        a("s_lshl_b32 s%d, s%d, 2\ns_add_u32 s%d, s%d, s%d" % (sB, sKS, sB, sB, sW))
        a("s_lshl_b32 s%d, s%d, 7" % (sA, sB))
        a("s_cmp_ge_u32 s3, 4\ns_cbranch_scc1 L_F")

    def a_waves(self):
        a, o = self.a, self.o
        W, pol = o["wa"], o["pol"]
        WQ, KD, VD, VT, PV, QG, QB, SD = 48, 80, 112, 144, 176, 208, 224, 232
        self.ptr("k"); self.ptr("v")
        self.desc("wq")
        a("v_lshl_add_u32 v11, v6, 13, v7")
        a("s_and_b32 s%d, s%d, 1\ns_lshl_b32 s%d, s%d, 5\ns_add_u32 s%d, s%d, s%d\ns_xor_b32 s%d, s%d, 2" % (sC, sX, sC, sC, sC, sC, sS, sC, sC))
        a("s_lshl_b32 s%d, s%d, 7\ns_lshl_b32 s%d, s%d, 19\ns_add_u32 s%d, s%d, s%d" % (sC, sC, sB, sB, sB, sB, sC))
        a("s_waitcnt lgkmcnt(0)")
        vm = VM(a)
        if o["tearly"]:
            a("s_load_dword s%d, s[%d:%d], 0" % (sT, SRD["ws"], SRD["ws"] + 1))
        self.load(16, 10, "x", "s%d" % sA, 0, o["xpol"])
        self.load(20, 10, "x", "s%d" % sA, 16, o["xpol"])
        vm.note("x0"); vm.note("x1")

        def q_loads(v, p=o["gpol"]):
            for ks in range(4):
                self.load(QG + 4 * ks, v, "ws", "s%d" % sF, ks * 1024, p)

        def issue(i):
            if i < 8:
                self.load(WQ + 4 * i, 11, "wq", "s%d" % sB, 0, pol)
                if i < 7:
                    a("s_add_u32 s%d, s%d, 0x4000" % (sB, sB))
            elif i < 16:
                oc, hh = (i - 8) >> 1, (i - 8) & 1
                a("s_xor_b32 s%d, s%d, 0x%x" % (sC, sD, (oc >> 1) * 4096 + (oc & 1) * 512 + hh * 128))
                self.load(KD + 4 * (i - 8), 12, "k", "s%d" % sC, 0, pol)
            else:
                a("s_xor_b32 s%d, s%d, 0x%x" % (sC, sE, (i - 16) * 1024))
                self.load(VD + 4 * (i - 16), 10, "v", "s%d" % sC, 0, pol)
            vm.note(i)
            if i == 16 + o["qpos"] and "q" not in o["cut"]:
                q_loads(13)
                for ks in range(4):
                    vm.note("q%d" % ks)

        W0 = o["wa0"]
        assert W0 <= 8
        for i in range(W0):
            issue(i)
        if o["diag"]:
            a("s_mov_b64 s[%d:%d], s[%d:%d]" % (sST + 2, sST + 3, sST, sST + 1))
        else:
            self.stamp(1)
        if not o["tearly"]:
            a("s_load_dword s%d, s[%d:%d], 0" % (sT, SRD["ws"], SRD["ws"] + 1))
        self.desc("k"); self.desc("v"); self.desc("ws")
        a("s_lshl_b32 s%d, s%d, 23\ns_lshl_b32 s%d, s%d, 15\ns_add_u32 s%d, s%d, s%d" % (sD, sX, sE, sS, sD, sD, sE))
        a("s_lshl_b32 s%d, s%d, 13\ns_add_u32 s%d, s%d, s%d\ns_add_u32 s%d, s%d, 0x%x" % (sE, sW, sD, sD, sE, sD, sD, KVBASE))
        a("s_lshl2_add_u32 s%d, s%d, s%d" % (sA, sS, sW))
        if o["stx"]:
            a("s_add_u32 s%d, s%d, s%d" % (sA, sA, sX))
        a("s_mov_b32 s%d, 0" % sR)
        for c, bits in zip(o["stag"], (0x1000, 0x880, 0x600)):
            if c != "-":
                a("s_bitcmp1_b32 s%d, %s\ns_cselect_b32 s%d, 0x%x, 0\ns_or_b32 s%d, s%d, s%d" % (sA, c, sE, bits, sR, sR, sE))
        a("s_and_b32 s%d, s%d, 0x1c00\ns_or_b32 s%d, s%d, s%d" % (sE, sR, sE, sE, sD))
        a("s_and_b32 s%d, s%d, 0x1280\ns_or_b32 s%d, s%d, s%d" % (sA, sR, sD, sD, sA))
        a("v_and_b32 v3, 3, v1\nv_bfe_u32 v4, v1, 2, 1\nv_lshl_add_u32 v3, v3, 2, v4")
        a("v_lshrrev_b32 v4, 3, v1\nv_lshlrev_b32 v4, 4, v4\nv_lshl_add_u32 v12, v3, 8, v4")
        a("s_and_b32 s%d, s%d, 0xc00\nv_xor_b32 v12, s%d, v12" % (sA, sR, sA))
        a("v_lshlrev_b32 v13, 4, v1\ns_and_b32 s%d, s%d, 0x200\nv_xor_b32 v10, s%d, v13" % (sA, sR, sA))
        a("v_mov_b32 v2, 0xff\nv_mov_b32 v8, 1\nv_mov_b32 v9, 0\ns_mov_b32 s%d, %d" % (sCNT, o["spin"]))
        self.sel_x()
        a("s_lshl_b32 s%d, s%d, 3\ns_lshr_b32 s%d, s%d, 2\ns_add_u32 s%d, s%d, s%d" % (sRB, sX, sA, sS, sRB, sRB, sA))
        a("s_lshl_b32 s%d, s%d, 10\nv_add_u32 v5, s%d, v13" % (sA, sW, sA))
        a("s_lshl_b32 s%d, s%d, 14\ns_lshl_b32 s%d, s%d, 12\ns_add_u32 s%d, s%d, s%d\ns_add_u32 s%d, s%d, 0x%x" % (
            sF, sX, sA, sW, sF, sF, sA, sF, sF, QX))
        a("s_lshl2_add_u32 s%d, s%d, s%d" % (sA, sX, sW))
        self.spread(sF, sA, min(o["qch"], 16), sA)
        if o["qch"] == 32:
            a("s_lshr_b32 s%d, s%d, 2\ns_lshl_b32 s%d, s%d, %d\ns_add_u32 s%d, s%d, s%d" % (sA, sX, sA, sA, o["sh"] + 4, sF, sF, sA))
        a("s_mov_b32 s%d, 0x05040100\ns_mov_b32 s%d, 0x07060302" % (sG, sH))
        vm.wait("x1")
        a("ds_write_b128 v5, v[16:19] offset:%d\nds_write_b128 v5, v[20:23] offset:%d" % (XS, XS + 4096))
        self.x_operands()
        n = W0
        for i in range(24 - W):
            if i < 8 or n < i + 1 + W:
                vm.wait(i)
                if i in (0, 8, 10, 12, 15, 18):
                    self.stamp({0: 1, 8: 6, 10: 7, 12: 8, 15: 9, 18: 10}[i], True)
            while n < i + 1 + W:
                issue(n)
                n += 1
            if i < 8:
                self.mf16(40, 24 + 2 * i, WQ + 4 * i, i == 0)
                self.mf16(44, 24 + 2 * i, WQ + 4 * i + 2, i == 0)
            if i == 7:
                for r in range(4):
                    a("v_permlane16_swap_b32 v%d, v%d" % (40 + r, 44 + r))
                for r in range(4):
                    self.dpp("v_add_f32", 40 + r, 44 + r, 40 + r, "row_ror:8")
                a("ds_write_b128 v5, v[40:43] offset:%d" % RQ)
                a("s_waitcnt lgkmcnt(0)\ns_barrier")
                self.stamp(2)
                self.tags()
        a("s_barrier")
        self.stamp(3)
        a("v_lshrrev_b32 v3, 5, v1\ns_lshl_b32 s%d, s%d, 1\nv_add_u32 v3, s%d, v3" % (sA, sW, sA))
        a("v_and_b32 v4, 31, v1\nv_mul_u32_u24 v16, 272, v3\nv_lshl_add_u32 v16, v4, 3, v16")
        a("v_mul_u32_u24 v20, 528, v3\nv_lshl_add_u32 v20, v4, 4, v20\nv_lshlrev_b32 v21, 5, v3")
        a("v_lshrrev_b32 v4, 3, v4\nv_lshl_add_u32 v23, v3, 2, v4\nv_lshl_add_u32 v23, v23, 13, v7")
        a("v_and_b32 v3, 7, v1\nv_lshrrev_b32 v4, 3, v1\nv_mul_u32_u24 v17, 272, v3\nv_lshl_add_u32 v17, v4, 4, v17")
        a("v_mul_u32_u24 v18, 528, v3\nv_and_b32 v5, 0x30, v1\ns_mul_i32 s%d, s%d, 4224\nv_add3_u32 v18, v18, v5, s%d" % (sA, sW, sA))
        a("s_lshl_b32 s%d, s%d, 3\nv_lshlrev_b32 v19, 5, v3\nv_add_u32 v19, s%d, v19" % (sA, sW, sA))
        a("v_mov_b32 v22, s%d" % sW)
        a("s_andn2_b32 s%d, 0x80, s%d\nv_add_u32 v24, s%d, v17\ns_and_b32 s%d, s%d, 0x80\nv_add_u32 v17, s%d, v17" % (sA, sR, sA, sA, sR, sA))
        vm.wait(23 if "q" in o["cut"] else "q3")
        a("L_qchk:")
        self.untag(QG, 4, 3)
        a("s_branch L_qok" if o["cut"] else "s_cbranch_vccz L_qok")
        self.narrow()
        self.guard()
        q_loads(13, o["rpol"])
        self.count(1)
        a("s_waitcnt vmcnt(0)\ns_branch L_qchk\nL_qok:")
        self.widen()
        self.stamp(4)
        self.sum4(QG)
        a("v_cvt_pk_bf16_f32 v4, v%d, v%d\nv_cvt_pk_bf16_f32 v5, v%d, v%d" % (QG, QG + 1, QG + 2, QG + 3))
        a("ds_write_b64 v16, v[4:5] offset:%d\nds_write_b8 v22, v8 offset:%d" % (QI, F_Q))
        a("s_mov_b32 s%d, 0x01010101" % sA)
        a("L_qi:")
        self.guard()
        a("ds_read_b32 v3, v9 offset:%d" % F_Q)
        a("ds_read_b128 %s, v17 offset:%d\nds_read_b128 %s, v24 offset:%d" % (vr(QB), QI, vr(QB + 4), QI))
        a("s_waitcnt lgkmcnt(0)\nv_cmp_ne_u32 vcc, s%d, v3\ns_cbranch_vccnz L_qi" % sA)
        for hh in range(2):
            for oc in range(4):
                self.mf32(SD + 4 * oc, KD + 8 * oc + 4 * hh, QB + 4 * hh, hh == 0)
        for p in range(2):
            for r in range(4):
                a("v_permlane32_swap_b32 v%d, v%d" % (SD + 8 * p + r, SD + 8 * p + 4 + r))
        for r in range(4):
            self.dpp("v_add_f32", 28 + r, SD + 4 + r, SD + r, "row_ror:8", 0x3)
        for r in range(4):
            self.dpp("v_add_f32", 28 + r, SD + 8 + r, SD + 12 + r, "row_ror:8", 0xc)
        for r in range(4):
            self.rnd(28 + r, 28 + r)
        for r in range(4):
            a("v_mul_f32 v%d, 0x%x, v%d" % (28 + r, SCALE, 28 + r))
        for r in range(4):
            self.rnd(28 + r, 28 + r)
        a("v_max3_f32 v32, v28, v29, v30\nv_max_f32 v32, v32, v31")
        self.dpp("v_max_f32", 32, 32, 32, "row_ror:8")
        self.rows_allreduce("v_max_f32", 32, 3)
        a("s_mov_b32 s%d, 0x%x" % (sB, LOG2E))
        for r in range(4):
            a("v_sub_f32 v%d, v%d, v32" % (28 + r, 28 + r))
        for r in range(4):
            a("v_mul_f32 v%d, s%d, v%d" % (28 + r, sB, 28 + r))
        for r in range(4):
            a("v_exp_f32 v%d, v%d" % (28 + r, 28 + r))
        a("v_cvt_pk_bf16_f32 v36, v28, v29\nv_cvt_pk_bf16_f32 v37, v30, v31")
        a("v_add_f32 v33, v28, v29\nv_add_f32 v30, v30, v31")
        self.dpp("v_mov_b32", 38, 36, None, "row_ror:8")
        self.dpp("v_mov_b32", 39, 37, None, "row_ror:8")
        a("v_add_f32 v33, v33, v30")
        self.dpp("v_add_f32", 33, 33, 33, "row_ror:8")
        self.rows_allreduce("v_add_f32", 33, 3)
        for j in range(4):
            vm.wait(16 + 2 * j + 1)
            for e in range(8):
                a("v_perm_b32 v%d, v%d, v%d, s%d" % (VT + 4 * e + j, VD + 8 * j + 4 + (e >> 1), VD + 8 * j + (e >> 1), sH if e & 1 else sG))
        for e in range(8):
            self.mf32(PV + 4 * e, VT + 4 * e, 36, True)
        a("s_mov_b32 exec_lo, 0x00ff00ff\ns_mov_b32 exec_hi, 0x00ff00ff")
        for e in range(8):
            a("ds_write_b128 v18, %s offset:%d" % (vr(PV + 4 * e), OL + 64 * e))
        a("ds_write_b64 v19, v[32:33] offset:%d" % MLL)
        a("ds_write_b8 v22, v8 offset:%d" % F_O)
        a("s_mov_b64 exec, -1")
        a("s_and_b32 s%d, s%d, 3\ns_lshl_b32 s%d, s%d, 18" % (sC, sX, sC, sC))
        a("s_lshr_b32 s%d, s%d, 2\ns_lshl_b32 s%d, s%d, 1\ns_add_u32 s%d, s%d, s%d" % (sD, sX, sE, sS, sD, sD, sE))
        a("s_lshl_b32 s%d, s%d, 7\ns_add_u32 s%d, s%d, s%d\ns_add_u32 s%d, s%d, 0x%x" % (sD, sD, sC, sC, sD, sC, sC, OX))
        a("s_mov_b32 s%d, 0x07060501\ns_mov_b32 s%d, 0x07060502\ns_mov_b32 s%d, 0x07060503" % (sD, sE, sF))
        a("L_ox:")
        self.guard()
        a("ds_read_b32 v3, v9 offset:%d" % F_O)
        a("ds_read_b128 v[28:31], v21 offset:%d\nds_read_b128 v[32:35], v21 offset:%d" % (MLL, MLL + 16))
        for k in range(4):
            a("ds_read_b128 %s, v20 offset:%d" % (vr(QG + 4 * k), OL + 4224 * k))
        a("s_waitcnt lgkmcnt(0)\nv_cmp_ne_u32 vcc, s%d, v3\ns_cbranch_vccnz L_ox" % sA)
        a("v_max3_f32 v36, v28, v30, v32\nv_max_f32 v36, v36, v34")
        for k in range(4):
            a("v_sub_f32 v%d, v%d, v36" % (28 + 2 * k, 28 + 2 * k))
        for k in range(4):
            a("v_mul_f32 v%d, s%d, v%d" % (28 + 2 * k, sB, 28 + 2 * k))
        for k in range(4):
            a("v_exp_f32 v%d, v%d" % (28 + 2 * k, 28 + 2 * k))
        a("v_mul_f32 v37, v28, v29")
        for k in range(1, 4):
            a("v_fmac_f32 v37, v%d, v%d" % (28 + 2 * k, 29 + 2 * k))
        a("v_log_f32 v38, v37\nv_rcp_f32 v37, v37")
        for r in range(4):
            a("v_mul_f32 v%d, v28, v%d" % (QG + r, QG + r))
        a("v_fmac_f32 v38, s%d, v36" % sB)
        for k in range(1, 4):
            for r in range(4):
                a("v_fmac_f32 v%d, v%d, v%d" % (QG + r, 28 + 2 * k, QG + 4 * k + r))
        for r in range(4):
            a("v_mul_f32 v%d, v37, v%d" % (QG + r, QG + r))
        a("v_bfi_b32 v%d, v2, s%d, v%d" % (QG, sT0, QG))
        for r in range(1, 4):
            a("v_perm_b32 v%d, v%d, v38, s%d" % (QG + r, QG + r, sD + r - 1))
        if "P" in o["cut"] or "X" in o["cut"]:
            a("s_bitcmp1_b32 s%d, %d\ns_cbranch_scc0 L_noO" % ((sS, 2) if "P" in o["cut"] else (sX, 0)))
        if "C" in o["cut"]:
            a("s_lshl_b32 s%d, s2, 12\ns_lshl_b32 s%d, s%d, 10\ns_add_u32 s%d, s%d, s%d\ns_add_u32 s%d, s%d, 0x%x\nv_mov_b32 v23, v13" % (sC, sD, sW, sC, sC, sD, sC, sC, OX))
        if "2" in o["cut"]:
            a("s_mov_b32 exec_hi, 0")
        if "4" in o["cut"]:
            a("s_mov_b64 exec, 0xffff")
        if "O" not in o["cut"]:
            a("buffer_store_dwordx4 %s, v23, %s, s%d offen sc1" % (vr(QG), srd("ws"), sC))
        if o["cut"]:
            a("L_noO:\ns_mov_b64 exec, -1")
        self.stamp(5)
        self.ack(10)
        a("s_cmp_ge_u32 s%d, 2\ns_cbranch_scc1 L_H" % sW)
        a("s_lshl_b32 s%d, s%d, 1\ns_add_u32 s%d, s%d, s%d\ns_lshl_b32 s%d, s%d, 13" % (sC, sRB, sC, sC, sW, sC, sC))
        a("s_add_u32 s%d, s%d, 0x%x\ns_add_u32 s%d, s%d, 0x1000\ns_mov_b32 s%d, 0x0c04000c" % (sC, sC, OX, sD, sC, sE))
        a("s_lshl_b32 s%d, s%d, 7\nv_lshlrev_b32 v27, 1, v1\nv_add_u32 v27, s%d, v27" % (sA, sW, sA))
        self.flag_wait("L_to", 22, F_T)
        self.stamp(6)
        def o_loads(p):
            self.count(32)
            for m in range(0 if "o" in o["cut"] else 8):
                self.load(WQ + 4 * m, 13, "ws", "s%d" % (sC if m < 4 else sD), (m & 3) * 1024, p)
        if o["opol"] != o["rpol"]:
            o_loads(o["opol"])
            a("s_branch L_ogc")
        a("L_og:")
        self.guard()
        o_loads(o["rpol"])
        a("L_ogc:")
        for m in range(8):
            if m % 4 == 0:
                a("s_waitcnt vmcnt(%d)" % (4 - m))
            d = WQ + 4 * m
            a("v_xor_b32 v%d, s%d, v%d\nv_perm_b32 v%d, v%d, v%d, s%d" % (d, sT0, d, 28 + m, d + 2, d + 1, sE))
            a("v_lshl_or_b32 v%d, v%d, 24, v%d" % (28 + m, d + 3, 28 + m))
        a("v_or3_b32 v3, v%d, v%d, v%d\nv_or3_b32 v4, v%d, v%d, v%d" % tuple(WQ + 4 * m for m in range(6)))
        a("v_or3_b32 v3, v3, v%d, v%d\nv_or_b32 v3, v3, v4\nv_and_b32 v3, v2, v3\nv_cmp_ne_u32 vcc, 0, v3" % (WQ + 24, WQ + 28))
        a("v_max3_f32 v36, v28, v29, v30\nv_max3_f32 v37, v31, v32, v33\nv_max3_f32 v36, v36, v34, v35\nv_max_f32 v36, v36, v37")
        if not o["cut"]:
            self.again("L_og")
        self.rows_allreduce("v_max_f32", 36, 3)
        for m in range(8):
            a("v_sub_f32 v%d, v%d, v36" % (28 + m, 28 + m))
        for m in range(8):
            a("v_exp_f32 v%d, v%d" % (28 + m, 28 + m))
        for r in range(4):
            a("v_mul_f32 v%d, v28, v%d" % (40 + r, WQ + r))
        a("v_add_f32 v36, v28, v29")
        for m in range(1, 8):
            for r in range(4):
                a("v_fmac_f32 v%d, v%d, v%d" % (40 + r, 28 + m, WQ + 4 * m + r))
            if m > 1:
                a("v_add_f32 v36, v36, v%d" % (28 + m))
        self.rows_allreduce("v_add_f32", 36, 3)
        a("v_rcp_f32 v36, v36")
        self.rows_scatter_sum([40])
        a("v_mul_f32 v4, v36, v40")
        a("s_branch L_im")
        a("L_H:")
        a("s_lshl_b32 s%d, s%d, 1\ns_add_u32 s%d, s%d, s%d\ns_mul_i32 s%d, s%d, 224" % (sF, sRB, sF, sF, sW, sF, sF))
        a("s_add_u32 s%d, s%d, 0x%x\ns_add_u32 s%d, s%d, 28672" % (sF, sF, HX - 448, sG, sF))
        a("v_and_b32 v3, 15, v1\nv_min_u32 v3, 13, v3\nv_lshrrev_b32 v5, 4, v1")
        a("v_mul_u32_u24 v26, 57344, v5\nv_lshl_add_u32 v26, v3, 4, v26")
        a("v_and_b32 v4, 1, v3\nv_and_b32 v6, 1, v5\nv_lshl_add_u32 v4, v4, 1, v6\nv_and_b32 v3, 14, v3")
        a("v_lshl_add_u32 v27, v4, 5, v3\nv_lshrrev_b32 v5, 1, v5\nv_lshl_add_u32 v27, v5, 4, v27")
        a("s_lshl_b32 s%d, s%d, 7\nv_add_u32 v27, s%d, v27" % (sA, sW, sA))
        self.flag_wait("L_th", 22, F_T)
        self.stamp(6)
        def h_loads(p):
            self.count(1024)
            if "h" not in o["cut"]:
                self.load(QB, 26, "ws", "s%d" % sF, 0, p)
                self.load(QB + 4, 26, "ws", "s%d" % sG, 0, p)
        if o["hpol"] != o["rpol"]:
            h_loads(o["hpol"])
            a("s_branch L_hgc")
        a("L_hg:")
        self.guard()
        h_loads(o["rpol"])
        a("L_hgc:")
        a("s_waitcnt vmcnt(0)")
        self.untag(QB, 2, 3)
        if not o["cut"]:
            self.again("L_hg")
        self.rows_scatter_sum([QB, QB + 4])
        self.rnd(4, QB)
        self.rnd(5, QB + 4)
        self.sigmoid(4, 4)
        a("v_mul_f32 v4, v4, v5")
        a("L_im:")
        self.rnd(4, 4)
        a("ds_write_b16_d16_hi v27, v4 offset:%d\nds_write_b8 v22, v8 offset:%d" % (IM, F_IM))
        self.stamp(7)
        a("s_waitcnt lgkmcnt(0)")
        a("s_branch L_end" if o["stamps"] or o["hold"] else "s_endpgm")

    def prewrite(self):
        a, pre = self.a, self.o["pre"]
        if not pre:
            return
        a("v_not_b32 v40, s%d\nv_mov_b32 v41, 0\nv_mov_b32 v42, 0\nv_mov_b32 v43, 0" % sT0)
        if "o" in pre:
            a("v_lshrrev_b32 v3, 3, v1\nv_and_b32 v4, 7, v1\nv_lshlrev_b32 v4, 4, v4\nv_lshl_add_u32 v3, v3, 13, v4")
            a("s_and_b32 s%d, s%d, 3\ns_lshl_b32 s%d, s%d, 2\ns_add_u32 s%d, s%d, s%d\ns_lshl_b32 s%d, s%d, 16" % (sA, sX, sA, sA, sA, sA, sW, sA, sA))
            a("s_lshr_b32 s%d, s%d, 2\ns_lshl1_add_u32 s%d, s%d, s%d\ns_lshl_b32 s%d, s%d, 7" % (sR, sX, sR, sS, sR, sR, sR))
            a("s_add_u32 s%d, s%d, s%d\ns_add_u32 s%d, s%d, 0x%x" % (sA, sA, sR, sA, sA, OX))
            a("buffer_store_dwordx4 v[40:43], v3, %s, s%d offen sc1" % (srd("ws"), sA))
        a("s_cmp_ge_u32 s%d, 2\ns_cbranch_scc1 L_pw2" % sW)
        if "h" in pre or "q" in pre:
            a("s_cmp_eq_u32 s%d, 0\ns_cbranch_scc1 L_pw0" % sW)
            if "h" in pre:
                a("buffer_store_dwordx4 v[40:43], v240, %s, s%d offen sc1" % (srd("ws"), sG))
            a("s_branch L_pw3\nL_pw0:")
            if "q" in pre:
                assert self.o["prepos"] == 0
                a("s_mov_b32 exec_hi, 0\nbuffer_store_dwordx4 v[40:43], v239, %s, s%d offen sc1\ns_mov_b32 exec_hi, -1" % (srd("ws"), sF))
        a("s_branch L_pw3\nL_pw2:")
        if "f" in pre:
            a("buffer_store_dwordx4 v[40:43], v241, %s, s%d offen sc1" % (srd("ws"), sP))
        a("L_pw3:")

    def f_waves(self):
        a, o = self.a, self.o
        W, pol = o["wf"], o["pol"]
        SEL, GU, WO, WD, Y, AO, DA, DB, VG = 56, 64, 128, 160, 188, 192, 224, 228, 232
        a("L_F:")
        for n in ("gw", "wg", "wu", "wo", "wd", "out"):
            self.ptr(n)
        self.desc("gw")
        if o["pf"] == 1:
            a("s_getpc_b64 s[%d:%d]\nL_pc:" % (sP, sP + 1))
            a("s_sub_u32 s%d, s%d, L_pc-%s_kernel\ns_subb_u32 s%d, s%d, 0" % (sP, sP, NAME, sP + 1, sP + 1))
            a("s_lshl_b32 s%d, s%d, 9\nv_lshl_add_u32 v250, v7, 2, s%d\nv_min_u32 v250, L_exit-%s_kernel, v250" % (sC, sS, sC, NAME))
            a("v_mov_b32 v251, s%d\nv_add_co_u32 v250, vcc, s%d, v250\ns_nop 1\nv_addc_co_u32 v251, vcc, 0, v251, vcc" % (sP + 1, sP))
            a("s_cmp_lg_u32 s%d, 0\ns_cbranch_scc1 L_nopf\nglobal_load_dword v252, v[250:251], off\nL_nopf:" % sW)
        a("v_and_b32 v3, 31, v1\nv_lshlrev_b32 v253, 4, v3\nv_lshrrev_b32 v4, 5, v1\nv_lshl_add_u32 v254, v4, 11, v253")
        a("v_mov_b32 v8, 1\nv_mov_b32 v9, 0\nv_mov_b32 v2, 0xff")
        a("s_waitcnt lgkmcnt(0)")
        a("s_load_dword s%d, s[%d:%d], 0" % (sT, SRD["ws"], SRD["ws"] + 1))
        self.stamp(1)
        for n in ("ws", "wg", "wu", "wo", "wd", "out"):
            self.desc(n)
        a("v_lshlrev_b32 v3, 2, v1\nv_and_b32 v3, 31, v3\nds_write_b32 v3, v9")
        a("s_mov_b32 s%d, %d" % (sCNT, o["spin"]))
        a("s_lshl_b32 s%d, s%d, 2\nv_lshlrev_b32 v234, 4, v4\nv_add_u32 v235, s%d, v234" % (sA, sW, sA))
        a("s_and_b32 s%d, s%d, 1\ns_lshl_b32 s%d, s%d, 5\ns_add_u32 s%d, s%d, s%d" % (sA, sX, sA, sA, sA, sA, sS))
        a("s_lshr_b32 s%d, s%d, 2\ns_and_b32 s%d, s%d, 3" % (sC, sA, sD, sA))
        a("s_max_u32 s%d, s%d, 1\ns_mul_i32 s%d, s%d, 3\ns_add_u32 s%d, s%d, s%d" % (sE, sD, sG, sC, sG, sG, sE))
        a("s_add_u32 s%d, s%d, 3\ns_mul_i32 s%d, s%d, 37\ns_lshr_b32 s%d, s%d, 8" % (sE, sG, sE, sE, sE, sE))
        a("s_add_u32 s%d, s%d, s%d\ns_sub_u32 s%d, s%d, 1" % (sG, sG, sE, sG, sG))
        a("s_lshr_b32 s%d, s%d, 1\ns_lshl_b32 s%d, s%d, 3\ns_add_u32 s%d, s%d, 3\ns_min_u32 s%d, s%d, 55" % (sE, sC, sE, sE, sE, sE, sE, sE))
        a("s_cmp_eq_u32 s%d, 1\ns_cselect_b32 s%d, s%d, s%d\ns_cselect_b32 s%d, 8, 0" % (sD, sG, sE, sG, sE))
        a("s_lshr_b32 s%d, s%d, 1\nv_mov_b32 v244, s%d\ns_add_u32 s%d, s%d, s%d\nv_mov_b32 v247, s%d" % (sC, sW, sC, sE, sE, sC, sE))
        a("s_and_b32 s%d, s%d, 7\ns_cmp_eq_u32 s%d, 5\ns_cselect_b32 s%d, 0x%x, 0" % (sC, sA, sC, sH, OOB))
        a("s_cmp_eq_u32 s%d, 1\ns_cselect_b32 s%d, 0x%x, 0" % (sC, sOK, OOB))
        a("v_mul_u32_u24 v11, 7168, v6\nv_add_u32 v11, v11, v7")
        a("v_add_u32 v246, s%d, v11\nv_add_u32 v11, s%d, v11" % (sOK, sH))
        a("v_mov_b32 v248, s%d\nv_mov_b32 v249, s%d\nv_cmp_gt_u32 vcc, 32, v1\nv_cndmask_b32 v248, v249, v248, vcc" % (sH, sOK))
        a("s_mul_i32 s%d, s%d, %d\ns_lshl_b32 s%d, s%d, 7\ns_add_u32 s%d, s%d, s%d" % (sB, sB, 64 * 7168, sC, sG, sB, sB, sC))
        a("s_lshl_b32 s%d, s%d, 9\ns_mul_i32 s%d, s%d, 57344\ns_add_u32 s%d, s%d, s%d\ns_add_u32 s%d, s%d, 0x%x" % (
            sG, sG, sC, sKS, sG, sG, sC, sG, sG, HX))
        a("s_xor_b32 s%d, s%d, 2" % (sA, sA))
        a("s_lshr_b32 s%d, s%d, 2\ns_lshl_b32 s%d, s%d, 12\ns_and_b32 s%d, s%d, 3\ns_lshl_b32 s%d, s%d, 8" % (sF, sA, sF, sF, sA, sA, sA, sA))
        a("s_add_u32 s%d, s%d, s%d\ns_lshl_b32 s%d, s%d, 10\ns_add_u32 s%d, s%d, s%d\ns_add_u32 s%d, s%d, 0x%x" % (
            sF, sF, sA, sA, sKS, sF, sF, sA, sF, sF, QX))
        a("s_lshr_b32 s%d, s%d, 12" % (sA, sF))
        self.spread(sF, sA, min(o["qch"], 16), sA)
        a("s_lshl_b32 s%d, s%d, 3\ns_lshr_b32 s%d, s%d, 2\ns_add_u32 s%d, s%d, s%d" % (sRB, sX, sA, sS, sRB, sRB, sA))
        if o["colmap"]:
            a("s_and_b32 s%d, s%d, 3\ns_and_b32 s%d, s%d, 1" % (sH, sS, sOK, sW))
            a("s_lshl_b32 s%d, s%d, 1\ns_add_u32 s%d, s%d, s%d\ns_lshl_b32 s%d, s%d, 8" % (sC, sH, sC, sC, sOK, sC, sC))
        else:
            a("s_and_b32 s%d, s%d, 3\ns_xor_b32 s%d, s%d, 2\ns_and_b32 s%d, s%d, 1" % (sH, sS, sH, sH, sOK, sW))
            a("s_lshl_b32 s%d, s%d, 3\ns_add_u32 s%d, s%d, s%d\ns_lshl_b32 s%d, s%d, 7" % (sC, sOK, sC, sC, sH, sC, sC))
        a("s_lshl_b32 s%d, s%d, 1\ns_lshr_b32 s%d, s%d, 1\ns_add_u32 s%d, s%d, s%d" % (sE, sRB, sA, sW, sE, sE, sA))
        a("s_lshr_b32 s%d, s%d, 2\ns_lshl_b32 s%d, s%d, 18\ns_and_b32 s%d, s%d, 3\ns_lshl_b32 s%d, s%d, 12" % (sD, sE, sD, sD, sA, sE, sA, sA))
        a("s_add_u32 s%d, s%d, s%d\ns_add_u32 s%d, s%d, s%d" % (sD, sD, sA, sD, sD, sC))
        a("s_mul_i32 s%d, s%d, %d\ns_add_u32 s%d, s%d, s%d" % (sE, sE, 28 * 2048, sE, sE, sC))
        a("v_lshrrev_b32 v3, 4, v1\nv_lshl_add_u32 v6, v5, %d, v7" % (7 if o["colmap"] else 9))
        a("v_lshl_add_u32 v12, v3, 14, v6\nv_lshl_add_u32 v13, v3, 11, v6")
        a("s_lshl_b32 s%d, s%d, 10\nv_lshlrev_b32 v236, 4, v1\nv_add_u32 v236, s%d, v236" % (sA, sW, sA))
        a("v_mul_u32_u24 v240, 28672, v4\nv_add3_u32 v240, v240, v253, v248")
        a("v_and_b32 v5, 15, v1\nv_lshlrev_b32 v6, 4, v5\nv_lshl_add_u32 v239, v3, 16, v6")
        if o["qch"] == 32:
            a("v_lshl_add_u32 v239, v3, %d, v239" % (o["sh"] + 4))
        a("v_and_b32 v6, 1, v1\nv_lshl_add_u32 v237, v3, 1, v6\nv_lshlrev_b32 v237, 8, v237")
        a("v_lshrrev_b32 v5, 1, v5\nv_lshl_add_u32 v237, v5, 4, v237")
        a("v_lshlrev_b32 v238, 3, v6\nv_lshl_add_u32 v238, v4, 7, v238\nv_bfe_u32 v5, v1, 1, 1\nv_lshl_add_u32 v238, v5, 8, v238")
        a("v_bfe_u32 v5, v1, 2, 3\nv_lshl_add_u32 v238, v5, 4, v238")
        a("v_lshlrev_b32 v255, 8, v6\nv_lshl_add_u32 v255, v4, 9, v255\nv_bfe_u32 v5, v1, 1, 4\nv_lshl_add_u32 v255, v5, 4, v255")
        a("s_lshl_b32 s%d, s%d, 10\nv_add_u32 v255, s%d, v255" % (sA, sOK, sA))
        a("v_lshrrev_b32 v4, 2, v1\nv_and_b32 v5, 3, v1\nv_lshlrev_b32 v241, 4, v5\nv_lshl_add_u32 v241, v4, 12, v241")
        a("v_lshrrev_b32 v4, 3, v1\nv_lshlrev_b32 v243, 7, v244\nv_lshl_add_u32 v243, v4, 4, v243")
        a("v_lshlrev_b32 v242, 4, v1\nv_lshlrev_b32 v245, 3, v5\nv_lshl_add_u32 v245, v3, 1, v245")
        a("s_lshl_b32 s%d, s%d, 2\nv_mov_b32 v10, s%d" % (sA, sOK, sA))
        a("s_lshl_b32 s%d, s%d, 1\ns_add_u32 s%d, s%d, s%d\ns_lshl_b32 s%d, s%d, 16" % (sA, sH, sA, sA, sOK, sA, sA))
        a("s_lshl_b32 s%d, s%d, 6\ns_add_u32 s%d, s%d, s%d\ns_add_u32 s%d, s%d, 0x%x" % (sC, sRB, sA, sA, sC, sP, sA, FX))
        a("s_and_b32 s%d, s%d, 1\ns_or_b32 s%d, s%d, s%d" % (sA, sS, sOK, sOK, sA))
        a("s_lshl_b32 s%d, s%d, 16\ns_lshl_b32 s%d, s%d, 11\ns_add_u32 s%d, s%d, s%d\ns_add_u32 s%d, s%d, 0x%x" % (sA, sX, sC, sS, sA, sA, sC, sP + 1, sA, FX))
        a("s_bfe_u32 s%d, s%d, 0x10003" % (sC, sS))
        if o["colmap"]:
            a("s_lshl_b32 s%d, s%d, 1\ns_add_u32 s%d, s%d, s%d" % (sA, sX, sA, sA, sC))
        else:
            a("s_lshl_b32 s%d, s%d, 2\ns_lshr_b32 s%d, s%d, 1\ns_add_u32 s%d, s%d, s%d" % (sC, sC, sA, sX, sA, sA, sC))
            a("s_and_b32 s%d, s%d, 1\ns_lshl_b32 s%d, s%d, 3\ns_add_u32 s%d, s%d, s%d" % (sC, sX, sC, sC, sA, sA, sC))
        a("s_and_b32 s%d, s%d, 16\ns_add_u32 s%d, s%d, s%d\ns_lshl_b32 s%d, s%d, 7" % (sC, sS, sA, sA, sC, sA, sA))
        a("s_and_b32 s%d, s%d, 6\ns_lshl_b32 s%d, s%d, 4\ns_add_u32 s%d, s%d, s%d" % (sC, sS, sC, sC, sKS, sA, sC))
        self.sel_x()
        a("v_lshlrev_b32 v4, 4, v1\nv_mov_b32 v3, 0x0c0c0100\nv_alignbit_b32 v5, v3, v3, v4")
        a("v_mov_b32 v3, 0x0c0c0302\nv_alignbit_b32 v6, v3, v3, v4\nv_bfe_u32 v7, v1, 1, 2\nv_mov_b32 v4, 0x0c0c0c0c")
        for j in range(4):
            a("v_cmp_eq_u32 vcc, %d, v7\nv_cndmask_b32 v%d, v4, v5, vcc\nv_cndmask_b32 v%d, v4, v6, vcc" % (j, SEL + j, SEL + 4 + j))
        a("s_lshl_b32 s%d, s%d, 9\ns_waitcnt lgkmcnt(0)" % (sC, sW))
        self.tags()
        if o["prepos"] == 0:
            self.prewrite()
        a("s_barrier")
        a("s_cmp_lg_u32 s%d, 0\ns_cbranch_scc1 L_noq" % sW)
        for k in range(4):
            a("ds_read_b128 %s, v237 offset:%d" % (vr(GU + 4 * k), RQ + 1024 * k))
        a("s_waitcnt lgkmcnt(0)")
        self.sum4(GU)
        self.tag4(248, [GU, GU + 1, GU + 2, GU + 3])
        a("s_mov_b32 exec_hi, 0")
        if "q" in o["pre"]:
            a("s_waitcnt vmcnt(0)")
        if "Q" not in o["cut"]:
            a("buffer_store_dwordx4 v[248:251], v239, %s, s%d offen sc1" % (srd("ws"), sF))
        a("s_mov_b32 exec_hi, -1")
        a("L_noq:")
        self.stamp(2)
        if "g" not in o["cut"]:
            self.load(GU, 254, "x", "s%d" % sC)
            self.load(GU + 4, 253, "gw", "s%d" % sC, 0, o["xpol"])
        if o["prepos"] == 1:
            self.prewrite()
        a("ds_read_b128 v[16:19], v236 offset:%d\nds_read_b128 v[20:23], v236 offset:%d\ns_waitcnt lgkmcnt(0)" % (XS, XS + 4096))
        self.x_operands()
        a("s_waitcnt vmcnt(0)")
        self.ack(1)
        self.stamp(1, True)
        t = GU + 8
        for j in range(4):
            a("v_lshlrev_b32 v%d, 16, v%d\nv_lshlrev_b32 v%d, 16, v%d" % (t + j, GU + j, t + 4 + j, GU + 4 + j))
            a("v_and_b32 v%d, 0xffff0000, v%d\nv_and_b32 v%d, 0xffff0000, v%d" % (GU + j, GU + j, GU + 4 + j, GU + 4 + j))
        for j in range(4):
            a("v_mul_f32 v%d, v%d, v%d\nv_mul_f32 v%d, v%d, v%d" % (t + j, t + j, t + 4 + j, GU + j, GU + j, GU + 4 + j))
        for j in range(4):
            self.rnd(t + j, t + j); self.rnd(GU + j, GU + j)
        for j in range(4):
            a("v_add_f32 v%d, v%d, v%d" % (t + j, t + j, GU + j))
        a("v_add_f32 v%d, v%d, v%d\nv_add_f32 v%d, v%d, v%d\nv_add_f32 v4, v%d, v%d" % (t, t, t + 1, t + 2, t + 2, t + 3, t, t + 2))
        for n in (8, 4, 2, 1):
            self.dpp("v_add_f32", 4, 4, 4, "row_ror:%d" % n)
        self.rows_allreduce("v_add_f32", 4, 3, (16,))
        a("ds_write_b32 v235, v4 offset:%d" % GP)
        a("s_waitcnt lgkmcnt(0)")
        a("s_barrier")
        self.stamp(3)

        def issue(i):
            if i < 16 and o["ilv"]:
                self.load(GU + 4 * i, 246 if i & 1 else 11, "wu" if i & 1 else "wg", "s%d" % sB, 0, pol)
                if i & 1 and i < 15:
                    a("s_add_u32 s%d, s%d, 14336" % (sB, sB))
            elif i < 16:
                self.load(GU + 4 * i, 246 if i >= 8 else 11, "wu" if i >= 8 else "wg", "s%d" % sB, 0, pol)
                if i == 7:
                    a("s_sub_u32 s%d, s%d, %d" % (sB, sB, 7 * 14336))
                elif i < 15:
                    a("s_add_u32 s%d, s%d, 14336" % (sB, sB))
            elif i < 24:
                k = i - 16
                m = (k >> 1) + 4 * (k & 1)
                self.load(WO + 4 * m, 12, "wo", "s%d" % sD, 2048 * (k & 1), pol)
                if k & 1 and k < 7:
                    a("s_add_u32 s%d, s%d, 0x10000" % (sD, sD))
            else:
                m = i - 24
                self.load(WD + 4 * m, 13, "wd", "s%d" % sE, 0, pol)
                if m < 6:
                    a("s_add_u32 s%d, s%d, 0x2000" % (sE, sE))

        for i in range(W):
            issue(i)
        a("ds_read_b128 v[4:7], v234 offset:%d\ns_waitcnt lgkmcnt(0)" % GP)
        a("v_add_f32 v4, v4, v5\nv_add_f32 v6, v6, v7\nv_add_f32 v4, v4, v6")
        self.rnd(4, 4)
        self.sigmoid(VG, 4)
        a("v_sub_f32 v%d, 1.0, v%d" % (VG + 1, VG))
        self.rnd(VG + 1, VG + 1)
        for i in range(max(31 - W, 16)):
            if i + W < 31:
                a("s_waitcnt vmcnt(%d)" % (W - 1))
                if i in (0, 4, 8, 12, 20):
                    self.stamp({0: 6, 4: 7, 8: 8, 12: 9, 20: 10}[i], True)
                issue(i + W)
            else:
                a("s_waitcnt vmcnt(%d)" % (30 - i))
            if i < 16:
                gu, m = (i & 1, i >> 1) if o["ilv"] else (i >> 3, i & 7)
                self.mf16(40 + 8 * gu, 24 + 2 * m, GU + 4 * i, m == 0)
                self.mf16(44 + 8 * gu, 24 + 2 * m, GU + 4 * i + 2, m == 0)
            last = max(31 - W, 16) - 1
            for flag, step, dl in ((F_T, o["to"], o["tol"]), (F_T + 2, o["th"], o["thl"])):
                if i == min(step + (0 if o["ilv"] else dl), last):
                    a("ds_write_b8 v244, v8 offset:%d" % flag)
                elif i == step:
                    a("ds_write_b8 v247, v8 offset:%d" % flag)
            if i == 15:
                for r in range(4):
                    a("v_permlane16_swap_b32 v%d, v%d" % (40 + r, 44 + r))
                for r in range(4):
                    a("v_permlane16_swap_b32 v%d, v%d" % (48 + r, 52 + r))
                for r in range(4):
                    self.dpp("v_add_f32", 40 + r, 44 + r, 40 + r, "row_ror:8", 0x3)
                for r in range(4):
                    self.dpp("v_add_f32", 40 + r, 48 + r, 52 + r, "row_ror:8", 0xc)
                a("ds_write_b128 v236, v[40:43] offset:%d" % RH)
                self.last_arriver(C_H, "L_noh")
                for k in range(4):
                    a("ds_read2st64_b64 %s, v238 offset0:%d offset1:%d" % (vr(GU + 4 * k), RH // 512 + 2 * k, RH // 512 + 2 * k + 1))
                a("s_waitcnt lgkmcnt(0)")
                self.sum4(GU)
                self.tag4(GU, [GU, GU + 1, GU + 2, GU + 3])
                if "H" not in o["cut"]:
                    a("buffer_store_dwordx4 %s, v240, %s, s%d offen sc1" % (vr(GU), srd("ws"), sG))
                a("L_noh:")
                self.stamp(4)
        self.stamp(5)

        def image(lbl, flag, img):
            a("%s:" % lbl)
            self.guard()
            a("ds_read_u8 v3, v244 offset:%d\nds_read_b128 %s, v243 offset:%d" % (flag, vr(Y), img))
            a("s_waitcnt lgkmcnt(0)\nv_cmp_ne_u32 vcc, 1, v3\ns_cbranch_vccnz %s" % lbl)

        def operands(m):
            for j in range(4):
                a("v_perm_b32 v%d, v%d, v%d, v%d" % (AO + 4 * m + j, Y + (m >> 1), Y + (m >> 1), SEL + 4 * (m & 1) + j))

        image("L_oi", F_IM, IM)
        self.stamp(6)
        operands(0)
        a("s_waitcnt vmcnt(7)")
        for m in range(8):
            if m < 7:
                operands(m + 1)
            self.mf32(DA, AO + 4 * m, WO + 4 * m, m == 0)
        image("L_hi", F_IM + 2, IM + 256)
        self.stamp(7)
        operands(0)
        for m in range(7):
            if m < 6:
                operands(m + 1)
            else:
                for r in range(4):
                    a("v_mul_f32 v%d, v%d, v%d" % (DA + r, VG, DA + r))
            a("s_waitcnt vmcnt(%d)" % (6 - m))
            self.mf32(DB, AO + 4 * m, WD + 4 * m, m == 0)
        for r in range(4):
            a("v_fmac_f32 v%d, v%d, v%d" % (DA + r, VG + 1, DB + r))
        a("ds_write_b128 v236, %s offset:%d" % (vr(DA), RF))
        self.stamp(8)
        a("s_mov_b64 exec, 1\nds_add_rtn_u32 v3, v10, v8 offset:%d\ns_mov_b64 exec, -1" % C_F)
        a("ds_read_b128 %s, v255 offset:%d\nds_read_b128 %s, v255 offset:%d" % (vr(DA), RF, vr(DB), RF + 2048))
        a("s_waitcnt lgkmcnt(0)\nv_readfirstlane_b32 s%d, v3" % sA)
        for r in range(4):
            a("v_add_f32 v%d, v%d, v%d" % (DA + r, DA + r, DB + r))
        a("s_cmp_lg_u32 s%d, 1\ns_cbranch_scc1 L_end" % sA)
        self.tag4(DA, [DA + r for r in range(4)])
        a("buffer_store_dwordx4 %s, v241, %s, s%d offen %s" % (vr(DA), srd("ws"), sP, o["fst"]))
        self.stamp(9)
        a("s_cmp_lg_u32 s%d, 0\ns_cbranch_scc1 L_end" % sOK)
        if o["lag"]:
            a("s_waitcnt vmcnt(0)")
        a("L_fin:")
        self.guard()
        for m in range(4):
            self.load(40 + 4 * m, 242, "ws", "s%d" % (sP + 1), 1024 * m, o["fld"])
        a("s_waitcnt vmcnt(0)")
        self.untag(40, 4, 3)
        self.again("L_fin")
        self.stamp(10)
        self.sum4(40)
        self.rows_scatter_sum([40])
        for n in (8, 4):
            self.dpp("v_add_f32", 40, 40, 40, "row_ror:%d" % n)
        self.rnd(40, 40)
        a("s_mov_b32 exec_lo, 0x000f000f\ns_mov_b32 exec_hi, 0x000f000f")
        a("buffer_store_short_d16_hi v40, v245, %s, s%d offen %s" % (srd("out"), sKS, o["outpol"]))
        a("s_cmp_lg_u32 s2, 0\ns_cbranch_scc1 %s" % ("L_amp" if o["ampend"] else "L_end"))
        a("s_mov_b64 exec, 1\nv_mov_b32 v3, s%d\nbuffer_store_dword v3, v9, %s, 0 offen sc1" % (sT, srd("ws")))
        if o["ampend"]:
            a("L_amp:\ns_waitcnt vmcnt(0)\ns_memrealtime s[%d:%d]\ns_waitcnt lgkmcnt(0)" % (sD, sD + 1))
            a("s_sub_u32 s%d, s%d, s%d\ns_lshl_b32 s%d, s%d, 2\ns_and_b32 s%d, s%d, 0x3fff" % (sA, sD, sST, sA, sA, sA, sA))
            a("L_amp2:\ns_memrealtime s[%d:%d]\ns_waitcnt lgkmcnt(0)\ns_sub_u32 s%d, s%d, s%d\ns_cmp_lt_u32 s%d, s%d\ns_cbranch_scc1 L_amp2" % (
                sD, sD + 1, sD, sD, sST, sD, sA))

    def epilogue(self):
        a = self.a
        a("L_end:")
        if self.o["stamps"]:
            a("s_mov_b64 exec, 1\ns_waitcnt vmcnt(0)")
            self.stamp(NST - 1)
            a("s_waitcnt lgkmcnt(0)")
            a("s_lshl_b32 s%d, s3, 8\ns_add_u32 s%d, s%d, s2\ns_mul_i32 s%d, s%d, %d\ns_add_u32 s%d, s%d, 0x%x" % (
                sA, sA, sA, sA, sA, NST * 8, sA, sA, STAMP_OFF))
            a("v_mov_b32 v1, s%d" % sA)
            for i in range(NST):
                a("v_mov_b32 v4, s%d\nv_mov_b32 v5, s%d" % (sST + 2 * i, sST + 2 * i + 1))
                a("buffer_store_dwordx2 v[4:5], v1, %s, 0 offen offset:%d\ns_nop 1" % (srd("ws"), 8 * i))
        if self.o["hold"]:
            a("s_cmp_lg_u32 s3, %d\ns_cbranch_scc1 L_exit" % self.o["ampwave"])
            if self.o["ampwg"] is not None:
                a("s_cmp_lg_u32 s2, %d\ns_cbranch_scc1 L_exit" % self.o["ampwg"])
            a("s_waitcnt lgkmcnt(0)\ns_mov_b32 s%d, %d" % (sA, self.o["hold"]))
            if self.o["amp"]:
                a("s_sub_u32 s%d, s%d, s%d\ns_lshl_b32 s%d, s%d, 2\ns_and_b32 s%d, s%d, 0x3fff\ns_add_u32 s%d, s%d, s%d" % (
                    sB, sST + 2 * self.o["amp"], sST, sB, sB, sB, sB, sA, sA, sB))
            a("L_hold:\ns_memrealtime s[%d:%d]\ns_waitcnt lgkmcnt(0)\ns_sub_u32 s%d, s%d, s%d\ns_cmp_lt_u32 s%d, s%d\ns_cbranch_scc1 L_hold" % (
                sD, sD + 1, sD, sD, sST, sD, sA))
        a("L_exit:\ns_endpgm")

    def build(self):
        if self.o["stamps"]:
            for i in range(1, NST):
                self.a("s_mov_b64 s[%d:%d], 0" % (sST + 2 * i, sST + 2 * i + 1))
        self.prologue()
        self.a_waves()
        self.f_waves()
        self.epilogue()
        lab = NAME + "_kernel"
        lines = [l[:-3] + self.o["spol"] if "buffer_store_dwordx4" in l and l.endswith("sc1") and "v241" not in l else l for l in self.a.lines]
        body = "\n".join(hazard.pad(lines)) + "\n"
        return (header(["; @launch grid=(256,1,1) block=(512,1,1) lds=%d" % LDS_BYTES]) + kernel_open(lab) + body
                + RODATA + descriptor(lab, 256))


def main():
    out = sys.argv[1]
    kw = {}
    for s in sys.argv[2:]:
        k, v = s.split("=")
        try:
            v = v if k == "stag" else int(v, 0)
        except ValueError:
            pass
        kw[k] = v.replace("+", " ") if isinstance(v, str) else v
    open(out, "w").write(Gen(**kw).build())


if __name__ == "__main__":
    main()
```

```python
import sys
from asmlib import *
import hazard

DEFAULTS = dict(wa=5, wf=5, pol="nt", stamps=False, spin=100000, outpol="", wa0=8, qpos=7, to=8, th=20, loc=1, umap=1, dpol="sc1 nt", qloc=0, o2loc=1, pf=2, tearly=1, ilv=0, colmap=0, mask=1, fine=0, sync=None, stag="102", stx=0, tol=3, thl=1, cut="", lag=1, gpol="sc1", twice=0, prio=0, wd=1, wea=0, wef=0, qst="sc1", fst="sc1", fld="sc1", xpol="", wb="", wbs=3, pre="", ppol="nt", prepos=0, lpol="sc1 nt", fcut=0, npol="", osrc="", kil=0, wil=0, gil=0, oil=0, qch=0, och=0, hch=0, fch=0, sb=2, sh=18, opol="sc1 nt", hpol="sc1 nt", rpol="sc1", spol="sc1", diag=0, hold=0, perm=0, ampend=0, amp=None, ampwave=0, ampwg=None)

DX, QX, O2, HX, FX, OX = 0x8000, 0x10000, 0x30000, 0x40000, 0x80000, 0x100000
STAMP_OFF = 128 << 20
F_Q, F_O, C_H, F_IM, C_F, F_T = 0, 4, 8, 12, 16, 24
GP, MLL, IM = 64, 256, 512
RQ, RH, RF, QI, OL = 2048, 6144, 10240, 14336, 16640
XS = OL + 4 * 4224
LDS_BYTES = XS + 8192
SRD = dict(x=4, wq=8, k=12, v=16, wg=20, wu=24, wo=28, wd=32, gw=36, ws=40, out=44)
sX, sS, sW, sT, sT0, sCNT = 48, 49, 50, 51, 52, 56
sA, sB, sC, sD, sE, sF, sG, sH, sRB, sKS = 57, 58, 59, 60, 61, 62, 63, 64, 65, 66
sOK, sP, sR, sL, sU = 67, 68, 94, 95, 96
sST = 70
NST = 12
OOB = 0x7f000000
LOG2E = 0x3fb8aa3b
SCALE = 0x3db504f3
KVBASE = (32768 - 4096) * 256


def srd(n):
    return "s[%d:%d]" % (SRD[n], SRD[n] + 3)


def vr(b, n=4):
    return "v[%d:%d]" % (b, b + n - 1)


def krow(i, L):
    return ((i >> (3 - L)) << (10 - L)) + ((i & ((8 >> L) - 1)) << 1)


class VM:
    def __init__(self, a):
        self.a, self.q = a, []

    def note(self, name):
        self.q.append(name)

    def wait(self, name):
        self.a("s_waitcnt vmcnt(%d)" % (len(self.q) - 1 - self.q.index(name)))


class Gen:
    def __init__(self, **kw):
        self.o = dict(DEFAULTS)
        self.o.update(kw)
        self.a = Asm()

    def spread(self, d, idx, n, t):
        if n:
            self.a("s_and_b32 s%d, s%d, %d\ns_lshl_b32 s%d, s%d, %d\ns_add_u32 s%d, s%d, s%d\ns_add_u32 s%d, s%d, 0x%x" % (
                t, idx, n - 1, t, t, self.o["sh"], d, d, t, d, d, self.o["sb"] << 20))

    def stamp(self, i, fine=False):
        if self.o["fine"] and i in (1, 6, 7, 8, 9, 10) and not fine or fine and not self.o["fine"]:
            return
        if self.o["stamps"] or (self.o["hold"] and i in (0, self.o["amp"])) or (self.o["ampend"] and i == 0):
            self.a("s_memrealtime s[%d:%d]" % (sST + 2 * i, sST + 2 * i + 1))

    def count(self, unit):
        if self.o["diag"]:
            self.a("s_add_u32 s%d, s%d, %d" % (sST + 2, sST + 2, 100 * unit))

    def ack(self, i):
        if self.o["diag"]:
            self.a("s_waitcnt vmcnt(0)")
            self.stamp(i)

    def ptr(self, n):
        self.a("s_load_dwordx2 s[%d:%d], s[0:1], %d" % (SRD[n], SRD[n] + 1, KARG[n]))

    def desc(self, n):
        self.a("s_mov_b32 s%d, 0x%x\ns_mov_b32 s%d, 0x20000" % (SRD[n] + 2, SIZE[n], SRD[n] + 3))

    def guard(self):
        self.a("s_sub_u32 s%d, s%d, 1\ns_cbranch_scc1 L_end" % (sCNT, sCNT))

    def load(self, dst, voff, buf, soff, imm=0, pol=""):
        self.a("buffer_load_dwordx4 %s, v%d, %s, %s offen%s%s" % (
            vr(dst), voff, srd(buf), soff, " offset:%d" % imm if imm else "", " " + pol if pol else ""))

    def flag_wait(self, lbl, vaddr, flag):
        self.a("%s:" % lbl)
        self.guard()
        self.a("ds_read_u8 v3, v%d offset:%d\ns_waitcnt lgkmcnt(0)\nv_cmp_ne_u32 vcc, 1, v3\ns_cbranch_vccnz %s" % (vaddr, flag, lbl))

    def tags(self):
        a = self.a
        a("s_add_u32 s%d, s%d, 0x01010101" % (sT, sT))
        a("s_and_b32 s%d, s%d, 0xff" % (sT0, sT))
        a("s_bfe_u32 s%d, s%d, 0x80008" % (sT0 + 1, sT))
        a("s_bfe_u32 s%d, s%d, 0x80010" % (sT0 + 2, sT))
        a("s_lshr_b32 s%d, s%d, 24" % (sT0 + 3, sT))

    def tag4(self, dst, src):
        for j in range(4):
            self.a("v_bfi_b32 v%d, v2, s%d, v%d" % (dst + j, sT0 + j, src[j]))

    def untag(self, base, n, acc, cmp=True, also=None):
        a = self.a
        regs = list(range(base, base + 4 * n))
        for r in regs:
            a("v_xor_b32 v%d, s%d, v%d" % (r, sT0 + (r - base) % 4, r))
        a("v_or_b32 v%d, v%d, v%d" % (acc, regs[0], regs[1]))
        for i in range(2, len(regs), 2):
            a("v_or3_b32 v%d, v%d, v%d, v%d" % (acc, acc, regs[i], regs[i + 1]))
        if also is not None:
            a("v_or_b32 v%d, v%d, v%d" % (acc, acc, also))
        if cmp:
            a("v_and_b32 v%d, v2, v%d" % (acc, acc))
            a("v_cmp_ne_u32 vcc, 0, v%d" % acc)

    def narrow(self):
        if self.o["mask"]:
            self.a("s_wqm_b64 exec, vcc")

    def widen(self):
        if self.o["mask"]:
            self.a("s_mov_b64 exec, -1")

    def again(self, lbl):
        self.narrow()
        self.a("s_cbranch_vccnz %s" % lbl)
        self.widen()

    def dpp(self, op, d, s0, s1, ctl, bank=0xf):
        self.a("%s_dpp v%d, v%d, %s%s row_mask:0xf bank_mask:0x%x" % (
            op, d, s0, "v%d " % s1 if s1 is not None else "", ctl, bank) if s1 is not None else
            "%s_dpp v%d, v%d %s row_mask:0xf bank_mask:0x%x" % (op, d, s0, ctl, bank))

    def rows_allreduce(self, op, x, t, which=(16, 32)):
        for n in which:
            self.a("v_mov_b32 v%d, v%d\nv_permlane%d_swap_b32 v%d, v%d\n%s v%d, v%d, v%d" % (t, x, n, x, t, op, x, x, t))

    def rows_scatter_sum(self, sets):
        a = self.a
        for b in sets:
            a("v_permlane32_swap_b32 v%d, v%d\nv_permlane32_swap_b32 v%d, v%d" % (b, b + 2, b + 1, b + 3))
        for b in sets:
            a("v_add_f32 v%d, v%d, v%d\nv_add_f32 v%d, v%d, v%d" % (b, b, b + 2, b + 1, b + 1, b + 3))
        for b in sets:
            a("v_permlane16_swap_b32 v%d, v%d" % (b, b + 1))
        for b in sets:
            a("v_add_f32 v%d, v%d, v%d" % (b, b, b + 1))

    def rnd(self, d, s):
        self.a("v_cvt_pk_bf16_f32 v%d, 0, v%d" % (d, s))

    def sigmoid(self, d, z):
        a = self.a
        a("v_mul_f32 v%d, 0x%x, v%d" % (d, LOG2E ^ 0x80000000, z))
        a("v_exp_f32 v%d, v%d\nv_add_f32 v%d, 1.0, v%d\nv_rcp_f32 v%d, v%d" % (d, d, d, d, d, d))
        self.rnd(d, d)

    def sel_x(self):
        a = self.a
        a("v_bfe_u32 v3, v1, 2, 1\nv_mul_u32_u24 v3, 0x202, v3\nv_add_u32 v3, 0x0c0c0100, v3")
        a("v_lshlrev_b32 v4, 4, v1\nv_alignbit_b32 v3, v3, v3, v4")
        a("v_and_b32 v4, 2, v1\nv_cmp_eq_u32 vcc, 0, v4\nv_mov_b32 v4, 0x0c0c0c0c")
        a("v_cndmask_b32 v14, v4, v3, vcc\nv_cndmask_b32 v15, v3, v4, vcc")

    def x_operands(self):
        for m in range(8):
            self.a("v_perm_b32 v%d, v%d, v%d, v14\nv_perm_b32 v%d, v%d, v%d, v15" % (
                24 + 2 * m, 16 + m, 16 + m, 25 + 2 * m, 16 + m, 16 + m))

    def mf16(self, d, av, bv, first):
        self.a("v_mfma_f32_16x16x16_bf16 %s, %s, %s, %s" % (vr(d), vr(av, 2), vr(bv, 2), "0" if first else vr(d)))

    def mf32(self, d, av, bv, first):
        self.a("v_mfma_f32_16x16x32_bf16 %s, %s, %s, %s" % (vr(d), vr(av), vr(bv), "0" if first else vr(d)))

    def sum4(self, b):
        for r in range(4):
            self.a("v_add_f32 v%d, v%d, v%d\nv_add_f32 v%d, v%d, v%d" % (b + r, b + r, b + 4 + r, b + 8 + r, b + 8 + r, b + 12 + r))
        for r in range(4):
            self.a("v_add_f32 v%d, v%d, v%d" % (b + r, b + r, b + 8 + r))

    def prologue(self):
        a = self.a
        self.stamp(0)
        if self.o["sync"] is not None:
            a("s_waitcnt lgkmcnt(0)\ns_add_u32 s4, s%d, 300\ns_or_b32 s4, s4, 0x7ff\ns_and_b32 s5, s2, 6\ns_cselect_b32 s5, %d, 0\ns_add_u32 s4, s4, s5" % (sST, self.o["sync"]))
            a("L_sync:\ns_memrealtime s[%d:%d]\ns_waitcnt lgkmcnt(0)\ns_sub_u32 s5, s%d, s4\ns_cmp_lt_i32 s5, 0\ns_cbranch_scc1 L_sync" % (sST, sST + 1, sST))
        a("s_cmp_ge_u32 s2, 256\ns_cbranch_scc1 L_exit")
        if self.o["perm"] == 1:
            a("s_lshr_b32 s4, s2, 5\ns_lshl_b32 s2, s2, 3\ns_or_b32 s2, s2, s4\ns_and_b32 s2, s2, 255")
        if self.o["perm"] == 2:
            a("s_cmp_eq_u32 s2, 42\ns_cselect_b32 s4, 7, 0\ns_cmp_eq_u32 s2, 45\ns_cselect_b32 s4, 7, s4\ns_xor_b32 s2, s2, s4")
        for n in ("x", "wq", "ws"):
            self.ptr(n)
        a("s_lshr_b32 s%d, s2, 3" % sS)
        if self.o["pf"] == 2:
            a("s_getpc_b64 s[%d:%d]\nL_pc:" % (sP, sP + 1))
            a("s_lshl_b32 s%d, s%d, 9\ns_min_u32 s%d, s%d, L_exit-L_pc-512" % (sA, sS, sA, sA))
            a("s_add_u32 s%d, s%d, s%d\ns_addc_u32 s%d, s%d, 0" % (sP, sP, sA, sP + 1, sP + 1))
            a("v_add_co_u32 v250, vcc, s%d, v0\nv_mov_b32 v251, s%d\nv_lshrrev_b32 v3, 6, v0\nv_addc_co_u32 v251, vcc, 0, v251, vcc" % (sP, sP + 1))
            a("global_load_ubyte v252, v[250:251], off " + self.o["xpol"])
        else:
            a("v_lshrrev_b32 v3, 6, v0")
        a("v_and_b32 v1, 63, v0\ns_and_b32 s%d, s2, 7" % sX)
        a("v_readfirstlane_b32 s3, v3")
        a("s_lshr_b32 s%d, s%d, 3" % (sKS, sS))
        self.desc("x")
        a("v_bfe_u32 v5, v1, 3, 1\nv_and_b32 v6, 0x30, v1\nv_and_b32 v7, 7, v1")
        a("s_and_b32 s%d, s3, 3" % sW)
        a("v_lshlrev_b32 v10, 11, v5\nv_lshl_add_u32 v10, v6, 1, v10")
        a("v_or_b32 v6, v6, v5\nv_lshlrev_b32 v7, 4, v7")
        a("s_lshl_b32 s%d, s%d, 2\ns_add_u32 s%d, s%d, s%d" % (sB, sKS, sB, sB, sW))
        a("s_lshl_b32 s%d, s%d, 7" % (sA, sB))
        a("s_getreg_b32 s%d, hwreg(HW_REG_XCC_ID, 0, 4)" % sL)
        a("s_cmp_ge_u32 s3, 4\ns_cbranch_scc1 L_F")

    def die_read(self, v):
        self.a("s_lshl_b32 s%d, s%d, 7\ns_add_u32 s%d, s%d, 0x%x\nv_and_b32 v%d, 31, v1\nv_lshlrev_b32 v%d, 2, v%d" % (sA, sX, sA, sA, DX, v, v, v))
        self.a("buffer_load_dword v%d, v%d, %s, s%d offen %s" % (v, v, srd("ws"), sA, self.o["dpol"]))

    def die_test(self, v):
        self.a("s_xor_b32 s%d, s%d, s%d\nv_cmp_ne_u32 vcc, s%d, v%d\ns_mov_b32 s%d, vcc_lo" % (sL, sL, sT, sL, v, sL))
        if not self.o["loc"]:
            self.a("s_mov_b32 s%d, 1" % sL)

    def q_block(self, d, t):
        self.a("s_and_b32 s%d, s%d, 7\ns_lshl3_add_u32 s%d, s%d, s%d\ns_xor_b32 s%d, s%d, 2" % (t, sS, d, sX, t, d, d))

    def gu_tile(self):
        a = self.a
        a("s_and_b32 s%d, s%d, 7\ns_add_u32 s%d, s%d, 3\ns_and_b32 s%d, s%d, 7\ns_min_u32 s%d, s%d, 6" % (sC, sS, sE, sX, sE, sE, sE, sE))
        a("s_add_u32 s%d, s%d, 2\ns_lshr_b32 s%d, s%d, 2\ns_sub_u32 s%d, s%d, s%d" % (sG, sC, sG, sG, sG, sC, sG))
        a("s_cmp_ge_u32 s%d, s%d\ns_addc_u32 s%d, s%d, 0" % (sG, sE, sG, sG))
        a("s_and_b32 s%d, s%d, 3\ns_cmp_eq_u32 s%d, 1\ns_cselect_b32 s%d, s%d, s%d\ns_cselect_b32 s%d, 8, 0" % (sD, sS, sD, sG, sE, sG, sE))
        a("s_mul_i32 s%d, s%d, 7\ns_add_u32 s%d, s%d, s%d" % (sD, sX, sG, sG, sD))
        a("s_cmp_eq_u32 s%d, 5\ns_cselect_b32 s%d, 0x%x, 0" % (sC, sH, OOB))
        a("s_cmp_eq_u32 s%d, 1\ns_cselect_b32 s%d, 0x%x, 0" % (sC, sOK, OOB))

    def publish(self, lbl, data, voff, soff, far=sL):
        st = "buffer_store_dwordx4 %s, v%d, %s, s%d offen" % (vr(data), voff, srd("ws"), soff)
        self.a("s_cmp_eq_u32 s%d, 0\ns_cbranch_scc1 %s_near\n%s sc1\ns_branch %s_out\n%s_near:\n%s\n%s_out:" % (far, lbl, st, lbl, lbl, st + " " + self.o["npol"], lbl))

    def a_waves(self):
        a, o = self.a, self.o
        W, pol = o["wa"], o["pol"]
        WQ, KD, VD, VT, PV, QG, QB, SD = 48, 80, 112, 144, 176, 208, 224, 232
        kil = min(o["kil"], 1)
        HI = 0x80000 if kil else 0x1000
        self.ptr("k"); self.ptr("v")
        self.desc("wq")
        L = o["wil"]
        if L:
            a("v_lshrrev_b32 v3, %d, v6\nv_or_b32 v6, v3, v5" % L)
        a("v_lshl_add_u32 v11, v6, 13, v7")
        self.q_block(sC, sD)
        a("s_lshl_b32 s%d, s%d, 7\ns_lshl_b32 s%d, s%d, %d\ns_add_u32 s%d, s%d, s%d" % (sC, sC, sB, sB, 19 - L, sB, sB, sC))
        a("s_waitcnt lgkmcnt(0)")
        vm = VM(a)
        if o["tearly"]:
            a("s_load_dword s%d, s[%d:%d], 0" % (sT, SRD["ws"], SRD["ws"] + 1))
        self.load(16, 10, "x", "s%d" % sA, 0, o["xpol"])
        self.load(20, 10, "x", "s%d" % sA, 16, o["xpol"])
        vm.note("x0"); vm.note("x1")

        def q_loads(v, p=o["gpol"], lbl="L_q0"):
            if o["qloc"]:
                a("s_lshr_b32 s%d, s%d, 1\ns_xor_b32 s%d, s%d, s%d\ns_bitcmp1_b32 s%d, 0\ns_cbranch_scc1 %s_far" % (sA, sW, sA, sA, sX, sA, lbl))
                for ks in range(4):
                    self.load(QG + 4 * ks, v, "ws", "s%d" % sF, ks * 1024, o["lpol"])
                a("s_branch %s_out\n%s_far:" % (lbl, lbl))
            for ks in range(4):
                self.load(QG + 4 * ks, v, "ws", "s%d" % sF, ks * 1024, p)
            a("%s_out:" % lbl)

        def issue(i):
            if i < 8:
                self.load(WQ + 4 * i, 11, "wq", "s%d" % sB, 0, pol)
                if i < 7:
                    a("s_add_u32 s%d, s%d, 0x%x" % (sB, sB, 8192 * (krow(i + 1, L) - krow(i, L))))
            elif i < 16:
                oc, hh = (i - 8) >> 1, (i - 8) & 1
                a("s_xor_b32 s%d, s%d, 0x%x" % (sC, sD, (oc >> 1) * HI + (oc & 1) * 512 + hh * 128))
                self.load(KD + 4 * (i - 8), 12, "k", "s%d" % sC, 0, pol)
            else:
                a("s_xor_b32 s%d, s%d, 0x%x" % (sC, sE, (i & 3) * 1024 + ((i - 16) >> 2) * HI))
                self.load(VD + 4 * (i - 16), 10, "v", "s%d" % sC, 0, pol)
            vm.note(i)
            if i == 16 + o["qpos"]:
                self.die_read(25)
            if i == 16 + o["qpos"] and "q" not in o["cut"]:
                q_loads(13)
                for ks in range(4):
                    vm.note("q%d" % ks)

        W0 = o["wa0"]
        assert W0 <= 8
        for i in range(W0):
            issue(i)
        if o["diag"]:
            a("s_mov_b64 s[%d:%d], s[%d:%d]" % (sST + 2, sST + 3, sST, sST + 1))
        else:
            self.stamp(1)
        if not o["tearly"]:
            a("s_load_dword s%d, s[%d:%d], 0" % (sT, SRD["ws"], SRD["ws"] + 1))
        self.desc("k"); self.desc("v"); self.desc("ws")
        a("s_and_b32 s%d, s%d, 1\ns_lshr_b32 s%d, s%d, 1\ns_lshl2_add_u32 s%d, s%d, s%d" % (sU, sX, sD, sX, sU, sU, sD))
        if not o["umap"]:
            a("s_mov_b32 s%d, s%d" % (sU, sX))
        a("s_lshl_b32 s%d, s%d, 23\ns_lshl_b32 s%d, s%d, %d\ns_add_u32 s%d, s%d, s%d" % (sD, sU, sE, sS, 15 - kil, sD, sD, sE))
        a("s_lshl_b32 s%d, s%d, %d\ns_add_u32 s%d, s%d, s%d\ns_add_u32 s%d, s%d, 0x%x" % (sE, sW, 13 - kil, sD, sD, sE, sD, sD, KVBASE))
        a("s_lshl2_add_u32 s%d, s%d, s%d" % (sA, sS, sW))
        if o["stx"]:
            a("s_add_u32 s%d, s%d, s%d" % (sA, sA, sX))
        a("s_mov_b32 s%d, 0" % sR)
        for c, bits in zip(o["stag"], (HI, 0x880, 0x600)):
            if c != "-":
                a("s_bitcmp1_b32 s%d, %s\ns_cselect_b32 s%d, 0x%x, 0\ns_or_b32 s%d, s%d, s%d" % (sA, c, sE, bits, sR, sR, sE))
        a("s_and_b32 s%d, s%d, 0x%x\ns_or_b32 s%d, s%d, s%d" % (sE, sR, HI + 0xc00, sE, sE, sD))
        a("s_and_b32 s%d, s%d, 0x%x\ns_or_b32 s%d, s%d, s%d" % (sA, sR, HI + 0x280, sD, sD, sA))
        a("v_and_b32 v3, 3, v1\nv_bfe_u32 v4, v1, 2, 1\nv_lshl_add_u32 v3, v3, 2, v4")
        a("v_lshrrev_b32 v4, 3, v1\nv_lshlrev_b32 v4, 4, v4\nv_lshl_add_u32 v12, v3, 8, v4")
        a("s_and_b32 s%d, s%d, 0xc00\nv_xor_b32 v12, s%d, v12" % (sA, sR, sA))
        a("v_lshlrev_b32 v13, 4, v1\ns_and_b32 s%d, s%d, 0x200\nv_xor_b32 v10, s%d, v13" % (sA, sR, sA))
        a("v_mov_b32 v2, 0xff\nv_mov_b32 v8, 1\nv_mov_b32 v9, 0\ns_mov_b32 s%d, %d" % (sCNT, o["spin"]))
        self.sel_x()
        a("s_lshl_b32 s%d, s%d, 3\ns_lshr_b32 s%d, s%d, 2\ns_add_u32 s%d, s%d, s%d" % (sRB, sX, sA, sS, sRB, sRB, sA))
        a("s_lshl_b32 s%d, s%d, 10\nv_add_u32 v5, s%d, v13" % (sA, sW, sA))
        a("s_lshl_b32 s%d, s%d, 14\ns_lshl_b32 s%d, s%d, 12\ns_add_u32 s%d, s%d, s%d\ns_add_u32 s%d, s%d, 0x%x" % (
            sF, sU, sA, sW, sF, sF, sA, sF, sF, QX))
        a("s_lshl2_add_u32 s%d, s%d, s%d" % (sA, sU, sW))
        self.spread(sF, sA, min(o["qch"], 16), sA)
        if o["qch"] == 32:
            a("s_lshr_b32 s%d, s%d, 2\ns_lshl_b32 s%d, s%d, %d\ns_add_u32 s%d, s%d, s%d" % (sA, sU, sA, sA, o["sh"] + 4, sF, sF, sA))
        a("s_mov_b32 s%d, 0x05040100\ns_mov_b32 s%d, 0x07060302" % (sG, sH))
        vm.wait("x1")
        a("ds_write_b128 v5, v[16:19] offset:%d\nds_write_b128 v5, v[20:23] offset:%d" % (XS, XS + 4096))
        self.x_operands()
        if o["wd"]:
            a("s_and_b32 s%d, s%d, 7\ns_cmp_eq_u32 s%d, 1\ns_cselect_b64 vcc, -1, 0" % (sA, sS, sA))
        n = W0
        for i in range(24 - W):
            if i >= 8 and o["wd"]:
                vm.wait(i - o["wd"])
                a("s_cbranch_vccnz L_wd%d" % i)
                vm.wait(i)
                if o["wea"]:
                    a("s_cmp_ge_u32 s%d, 2\ns_cbranch_scc1 L_wd%d" % (sX, i))
                    vm.wait(i + 1)
                a("L_wd%d:" % i)
            elif i < 8 or n < i + 1 + W:
                vm.wait(i)
                if i in (0, 8, 10, 12, 15, 18):
                    self.stamp({0: 1, 8: 6, 10: 7, 12: 8, 15: 9, 18: 10}[i], True)
            while n < i + 1 + W:
                issue(n)
                n += 1
            if i < 8:
                self.mf16(40, 24 + 2 * i, WQ + 4 * i, i == 0)
                self.mf16(44, 24 + 2 * i, WQ + 4 * i + 2, i == 0)
            if i == 7:
                for r in range(4):
                    a("v_permlane16_swap_b32 v%d, v%d" % (40 + r, 44 + r))
                for r in range(4):
                    self.dpp("v_add_f32", 40 + r, 44 + r, 40 + r, "row_ror:8")
                a("ds_write_b128 v5, v[40:43] offset:%d" % RQ)
                a("s_waitcnt lgkmcnt(0)\ns_barrier")
                self.stamp(2)
                self.tags()
        a("s_barrier")
        if o["prio"]:
            a("s_setprio %d" % o["prio"])
        self.stamp(3)
        a("v_lshrrev_b32 v3, 5, v1\ns_lshl_b32 s%d, s%d, 1\nv_add_u32 v3, s%d, v3" % (sA, sW, sA))
        a("v_and_b32 v4, 31, v1\nv_mul_u32_u24 v16, 272, v3\nv_lshl_add_u32 v16, v4, 3, v16")
        a("v_mul_u32_u24 v20, 528, v3\nv_lshl_add_u32 v20, v4, 4, v20\nv_lshlrev_b32 v21, 5, v3")
        a("v_lshrrev_b32 v4, 3, v4\nv_lshl_add_u32 v23, v3, 2, v4\nv_lshl_add_u32 v23, v23, 12, v7")
        a("v_and_b32 v3, 7, v1\nv_lshrrev_b32 v4, 3, v1\nv_mul_u32_u24 v17, 272, v3\nv_lshl_add_u32 v17, v4, 4, v17")
        a("v_mul_u32_u24 v18, 528, v3\nv_and_b32 v5, 0x30, v1\ns_mul_i32 s%d, s%d, 4224\nv_add3_u32 v18, v18, v5, s%d" % (sA, sW, sA))
        a("s_lshl_b32 s%d, s%d, 3\nv_lshlrev_b32 v19, 5, v3\nv_add_u32 v19, s%d, v19" % (sA, sW, sA))
        a("v_mov_b32 v22, s%d" % sW)
        a("s_andn2_b32 s%d, 0x80, s%d\nv_add_u32 v24, s%d, v17\ns_and_b32 s%d, s%d, 0x80\nv_add_u32 v17, s%d, v17" % (sA, sR, sA, sA, sR, sA))
        def transpose(j):
            vm.wait(16 + 2 * j + 1)
            for e in range(8):
                a("v_perm_b32 v%d, v%d, v%d, s%d" % (VT + 4 * e + j, VD + 8 * j + 4 + (e >> 1), VD + 8 * j + (e >> 1), sH if e & 1 else sG))
        early = (o["qpos"] + 1) // 2
        for j in range(early):
            transpose(j)
        vm.wait("die" if "q" in o["cut"] else "q3")
        self.die_test(25)
        if o["diag"]:
            a("s_cmp_lg_u32 s%d, 0\ns_cselect_b32 s%d, 1600, 0\ns_add_u32 s%d, s%d, s%d" % (sL, sA, sST + 2, sST + 2, sA))
        a("L_qchk:")
        self.untag(QG, 4, 3)
        a("s_branch L_qok" if o["cut"] else "s_cbranch_vccz L_qok")
        self.narrow()
        self.guard()
        q_loads(13, o["gpol"], "L_q1")
        self.count(1)
        a("s_waitcnt vmcnt(0)\ns_branch L_qchk\nL_qok:")
        self.widen()
        self.stamp(4)
        if o["twice"]:
            a("s_mov_b32 s97, 0\nL_twice:")
        self.sum4(QG)
        a("v_cvt_pk_bf16_f32 v4, v%d, v%d\nv_cvt_pk_bf16_f32 v5, v%d, v%d" % (QG, QG + 1, QG + 2, QG + 3))
        a("ds_write_b64 v16, v[4:5] offset:%d\nds_write_b8 v22, v8 offset:%d" % (QI, F_Q))
        a("s_mov_b32 s%d, 0x01010101" % sA)
        a("L_qi:")
        self.guard()
        a("ds_read_b32 v3, v9 offset:%d" % F_Q)
        a("ds_read_b128 %s, v17 offset:%d\nds_read_b128 %s, v24 offset:%d" % (vr(QB), QI, vr(QB + 4), QI))
        a("s_waitcnt lgkmcnt(0)\nv_cmp_ne_u32 vcc, s%d, v3\ns_cbranch_vccnz L_qi" % sA)
        for hh in range(2):
            for oc in range(4):
                self.mf32(SD + 4 * oc, KD + 8 * oc + 4 * hh, QB + 4 * hh, hh == 0)
        for p in range(2):
            for r in range(4):
                a("v_permlane32_swap_b32 v%d, v%d" % (SD + 8 * p + r, SD + 8 * p + 4 + r))
        for r in range(4):
            self.dpp("v_add_f32", 28 + r, SD + 4 + r, SD + r, "row_ror:8", 0x3)
        for r in range(4):
            self.dpp("v_add_f32", 28 + r, SD + 8 + r, SD + 12 + r, "row_ror:8", 0xc)
        for r in range(4):
            self.rnd(28 + r, 28 + r)
        for r in range(4):
            a("v_mul_f32 v%d, 0x%x, v%d" % (28 + r, SCALE, 28 + r))
        for r in range(4):
            self.rnd(28 + r, 28 + r)
        a("v_max3_f32 v32, v28, v29, v30\nv_max_f32 v32, v32, v31")
        self.dpp("v_max_f32", 32, 32, 32, "row_ror:8")
        self.rows_allreduce("v_max_f32", 32, 3)
        a("s_mov_b32 s%d, 0x%x" % (sB, LOG2E))
        for r in range(4):
            a("v_sub_f32 v%d, v%d, v32" % (28 + r, 28 + r))
        for r in range(4):
            a("v_mul_f32 v%d, s%d, v%d" % (28 + r, sB, 28 + r))
        for r in range(4):
            a("v_exp_f32 v%d, v%d" % (28 + r, 28 + r))
        a("v_cvt_pk_bf16_f32 v36, v28, v29\nv_cvt_pk_bf16_f32 v37, v30, v31")
        a("v_add_f32 v33, v28, v29\nv_add_f32 v30, v30, v31")
        self.dpp("v_mov_b32", 38, 36, None, "row_ror:8")
        self.dpp("v_mov_b32", 39, 37, None, "row_ror:8")
        a("v_add_f32 v33, v33, v30")
        self.dpp("v_add_f32", 33, 33, 33, "row_ror:8")
        self.rows_allreduce("v_add_f32", 33, 3)
        for j in range(early, 4):
            transpose(j)
        for e in range(8):
            self.mf32(PV + 4 * e, VT + 4 * e, 36, True)
        a("s_mov_b32 exec_lo, 0x00ff00ff\ns_mov_b32 exec_hi, 0x00ff00ff")
        for e in range(8):
            a("ds_write_b128 v18, %s offset:%d" % (vr(PV + 4 * e), OL + 64 * e))
        a("ds_write_b64 v19, v[32:33] offset:%d" % MLL)
        a("ds_write_b8 v22, v8 offset:%d" % F_O)
        a("s_mov_b64 exec, -1")
        a("s_lshl_b32 s%d, s%d, 17\ns_lshl_b32 s%d, s%d, 7\ns_add_u32 s%d, s%d, 0x%x\ns_add_u32 s%d, s%d, s%d" % (sG, sX, sD, sS, sG, sG, OX, sC, sG, sD))
        a("s_mov_b32 s%d, 0x07060501\ns_mov_b32 s%d, 0x07060502\ns_mov_b32 s%d, 0x07060503" % (sD, sE, sF))
        a("L_ox:")
        self.guard()
        a("ds_read_b32 v3, v9 offset:%d" % F_O)
        a("ds_read_b128 v[28:31], v21 offset:%d\nds_read_b128 v[32:35], v21 offset:%d" % (MLL, MLL + 16))
        for k in range(4):
            a("ds_read_b128 %s, v20 offset:%d" % (vr(QG + 4 * k), OL + 4224 * k))
        a("s_waitcnt lgkmcnt(0)\nv_cmp_ne_u32 vcc, s%d, v3\ns_cbranch_vccnz L_ox" % sA)
        a("v_max3_f32 v36, v28, v30, v32\nv_max_f32 v36, v36, v34")
        for k in range(4):
            a("v_sub_f32 v%d, v%d, v36" % (28 + 2 * k, 28 + 2 * k))
        for k in range(4):
            a("v_mul_f32 v%d, s%d, v%d" % (28 + 2 * k, sB, 28 + 2 * k))
        for k in range(4):
            a("v_exp_f32 v%d, v%d" % (28 + 2 * k, 28 + 2 * k))
        a("v_mul_f32 v37, v28, v29")
        for k in range(1, 4):
            a("v_fmac_f32 v37, v%d, v%d" % (28 + 2 * k, 29 + 2 * k))
        a("v_log_f32 v38, v37\nv_rcp_f32 v37, v37")
        for r in range(4):
            a("v_mul_f32 v%d, v28, v%d" % (QG + r, QG + r))
        a("v_fmac_f32 v38, s%d, v36" % sB)
        for k in range(1, 4):
            for r in range(4):
                a("v_fmac_f32 v%d, v%d, v%d" % (QG + r, 28 + 2 * k, QG + 4 * k + r))
        for r in range(4):
            a("v_mul_f32 v%d, v37, v%d" % (QG + r, QG + r))
        a("v_bfi_b32 v%d, v2, s%d, v%d" % (QG, sT0, QG))
        for r in range(1, 4):
            a("v_perm_b32 v%d, v%d, v38, s%d" % (QG + r, QG + r, sD + r - 1))
        if "O" not in o["cut"]:
            self.publish("L_po", QG, 23, sC)
        if o["twice"]:
            a("s_cmp_lg_u32 s97, 0\ns_cbranch_scc1 L_tw2\ns_mov_b32 s97, 1")
            self.stamp(5)
            a("s_branch L_twice\nL_tw2:")
            self.stamp(10)
        else:
            self.stamp(5)
        self.ack(10)
        a("s_cmp_ge_u32 s%d, 2\ns_cbranch_scc1 L_H\ns_cmp_eq_u32 s%d, 1\ns_cbranch_scc1 L_HP" % (sW, sW))
        a("s_lshl_b32 s%d, s%d, 12\ns_add_u32 s%d, s%d, s%d\ns_mov_b32 s%d, 0x0c04000c" % (sC, sS, sC, sC, sG, sE))
        a("s_and_b32 s%d, s%d, 3\ns_lshl_b32 s%d, s%d, 5\ns_add_u32 s%d, s%d, s%d" % (sD, sU, sD, sD, sD, sD, sS))
        a("s_lshr_b32 s%d, s%d, 2\ns_lshl1_add_u32 s%d, s%d, s%d\ns_lshl_b32 s%d, s%d, 7\ns_add_u32 s%d, s%d, 0x%x" % (sA, sU, sD, sD, sA, sD, sD, sD, sD, O2))
        a("s_lshr_b32 s%d, s%d, 4\ns_xor_b32 s%d, s%d, s%d\ns_or_b32 s%d, s%d, s%d" % (sB, sS, sA, sA, sB, sL, sL, sA) if o["o2loc"] else "s_mov_b32 s%d, 1" % sL)
        a("s_lshl_b32 s%d, s%d, 9\ns_add_u32 s%d, s%d, 0x%x\ns_and_b32 s%d, s%d, 0xffff\ns_mov_b32 s%d, 0xffff" % (sF, sRB, sF, sF, O2, sG, sT, sH))
        a("s_lshr_b32 s%d, s%d, 9" % (sA, sD))
        self.spread(sD, sA, o["och"], sA)
        self.spread(sF, sRB, o["och"], sA)
        a("v_and_b32 v3, 15, v1\nv_lshrrev_b32 v4, 4, v1\nv_lshlrev_b32 v27, 1, v3\nv_lshl_add_u32 v27, v4, 7, v27\nv_mov_b32 v26, 0x101")
        if o["osrc"] == "x":
            a("s_mov_b32 s%d, 0" % sC)
        self.flag_wait("L_to", 9, F_T)
        self.stamp(6)
        def o_loads(p):
            self.count(32)
            for m in range(0 if "o" in o["cut"] else 4):
                self.load(WQ + 4 * m, 13, o["osrc"][:1] or "ws", "s%d" % sC, m * 1024, p)
        if o["opol"] != o["lpol"]:
            o_loads(o["opol"])
            a("s_branch L_ogc")
        a("L_og:")
        self.guard()
        o_loads(o["lpol"])
        a("L_ogc:")
        a("s_waitcnt vmcnt(0)")
        for m in range(4):
            d = WQ + 4 * m
            a("v_xor_b32 v%d, s%d, v%d\nv_perm_b32 v%d, v%d, v%d, s%d" % (d, sT0, d, 28 + m, d + 2, d + 1, sE))
            a("v_lshl_or_b32 v%d, v%d, 24, v%d" % (28 + m, d + 3, 28 + m))
        a("v_or3_b32 v3, v%d, v%d, v%d\nv_or_b32 v3, v3, v%d\nv_and_b32 v3, v2, v3\nv_cmp_ne_u32 vcc, 0, v3" % tuple(WQ + 4 * m for m in range(4)))
        a("v_max3_f32 v36, v28, v29, v30\nv_max_f32 v36, v36, v31")
        if not o["cut"]:
            self.again("L_og")
        self.dpp("v_max_f32", 36, 36, 36, "row_ror:8")
        self.rows_allreduce("v_max_f32", 36, 3)
        for m in range(4):
            a("v_sub_f32 v%d, v%d, v36" % (28 + m, 28 + m))
        for m in range(4):
            a("v_exp_f32 v%d, v%d" % (28 + m, 28 + m))
        for r in range(4):
            a("v_mul_f32 v%d, v28, v%d" % (40 + r, WQ + r))
        a("v_add_f32 v36, v28, v29\nv_add_f32 v37, v30, v31")
        for m in range(1, 4):
            for r in range(4):
                a("v_fmac_f32 v%d, v%d, v%d" % (40 + r, 28 + m, WQ + 4 * m + r))
            if m == 1:
                a("v_add_f32 v36, v36, v37")
            if m == 2:
                self.dpp("v_add_f32", 36, 36, 36, "row_ror:8")
        self.rows_allreduce("v_add_f32", 36, 3)
        a("v_rcp_f32 v36, v36")
        self.rows_scatter_sum([40])
        self.dpp("v_add_f32", 40, 40, 40, "row_ror:8")
        a("v_mul_f32 v40, v36, v40")
        self.rnd(40, 40)
        a("v_or_b32 v40, s%d, v40\nv_mov_b32 v41, v40\nv_permlane16_swap_b32 v40, v41" % sG)
        a("v_mov_b32 v42, v40\nv_mov_b32 v43, v41\nv_permlane32_swap_b32 v40, v42\nv_permlane32_swap_b32 v41, v43")
        a("s_mov_b64 exec, 0xff")
        if "2" not in o["cut"]:
            self.publish("L_p2", 40, 13, sD)
        self.stamp(8)
        a("s_mov_b32 exec_lo, -1\ns_and_b32 s%d, s%d, 1\ns_lshl_b32 s%d, s%d, 3\ns_lshr_b32 s%d, 0xff00ff00, s%d" % (sE, sX, sE, sE, sE, sE))
        if o["lag"] & 2:
            a("s_waitcnt vmcnt(0)")
        self.stamp(9)
        a("L_o2:")
        self.guard()
        self.count(32 * 8)
        if "2" not in o["cut"] and o["o2loc"]:
            a("s_mov_b32 exec_lo, s%d" % sE)
            self.load(44, 13, "ws", "s%d" % sF, 0, o["rpol"])
            a("s_not_b32 exec_lo, s%d" % sE)
            self.load(44, 13, "ws", "s%d" % sF, 0, o["lpol"])
            a("s_mov_b32 exec_lo, -1")
        elif "2" not in o["cut"]:
            self.load(44, 13, "ws", "s%d" % sF, 0, o["rpol"])
        a("s_waitcnt vmcnt(0)")
        for r in range(4):
            a("v_xor_b32 v%d, s%d, v%d" % (44 + r, sG, 44 + r))
        a("v_or3_b32 v3, v44, v45, v46\nv_or_b32 v3, v3, v47\nv_and_b32 v3, s%d, v3\nv_cmp_ne_u32 vcc, 0, v3" % sH)
        if not o["cut"]:
            a("s_cbranch_vccnz L_o2")
        for r in range(4):
            a("ds_write_b16_d16_hi v27, v%d offset:%d" % (44 + r, IM + 32 * r))
        a("ds_write_b16 v9, v26 offset:%d" % F_IM)
        self.writeback("O")
        self.stamp(7)
        self.finish()
        a("L_HP:")
        self.gu_tile()
        a("s_lshl_b32 s%d, s%d, 9\ns_mul_i32 s%d, s%d, 57344\ns_add_u32 s%d, s%d, s%d\ns_add_u32 s%d, s%d, 0x%x" % (
            sG, sG, sC, sKS, sG, sG, sC, sG, sG, HX))
        a("v_mov_b32 v5, s%d\nv_mov_b32 v6, s%d\nv_cmp_gt_u32 vcc, 32, v1\nv_lshrrev_b32 v4, 5, v1\nv_cndmask_b32 v5, v6, v5, vcc" % (sH, sOK))
        a("v_mul_u32_u24 v26, %d, v4\nv_add3_u32 v26, v26, v13, v5" % (28672 - 512))
        a("v_and_b32 v6, 1, v1\nv_lshlrev_b32 v27, 3, v6\nv_lshl_add_u32 v27, v4, 7, v27\nv_bfe_u32 v5, v1, 1, 1\nv_lshl_add_u32 v27, v5, 8, v27")
        a("v_bfe_u32 v5, v1, 2, 3\nv_lshl_add_u32 v27, v5, 4, v27\ns_mov_b32 s%d, 0x01010101" % sA)
        a("L_hp:")
        self.guard()
        a("ds_read_b32 v3, v9 offset:%d" % C_H)
        for k in range(4):
            a("ds_read2st64_b64 %s, v27 offset0:%d offset1:%d" % (vr(WQ + 4 * k), RH // 512 + 2 * k, RH // 512 + 2 * k + 1))
        a("s_waitcnt lgkmcnt(0)\nv_cmp_ne_u32 vcc, s%d, v3\ns_cbranch_vccnz L_hp" % sA)
        self.sum4(WQ)
        self.tag4(WQ, [WQ, WQ + 1, WQ + 2, WQ + 3])
        if "H" not in o["cut"]:
            self.publish("L_ph", WQ, 26, sG)
        self.stamp(7)
        self.finish()
        a("L_H:")
        a("s_lshl_b32 s%d, s%d, 1\ns_add_u32 s%d, s%d, s%d\ns_mul_i32 s%d, s%d, 224" % (sF, sRB, sF, sF, sW, sF, sF))
        a("s_add_u32 s%d, s%d, 0x%x\ns_add_u32 s%d, s%d, 28672" % (sF, sF, HX - 448, sG, sF))
        a("v_and_b32 v3, 15, v1\nv_min_u32 v3, 13, v3\nv_lshrrev_b32 v5, 4, v1")
        a("v_mul_u32_u24 v26, 57344, v5\nv_lshl_add_u32 v26, v3, 4, v26")
        a("v_and_b32 v4, 1, v3\nv_and_b32 v6, 1, v5\nv_lshl_add_u32 v4, v4, 1, v6\nv_and_b32 v3, 14, v3")
        a("v_lshl_add_u32 v27, v4, 5, v3\nv_lshrrev_b32 v5, 1, v5\nv_lshl_add_u32 v27, v5, 4, v27")
        a("s_lshl_b32 s%d, s%d, 7\nv_add_u32 v27, s%d, v27" % (sA, sW, sA))
        self.flag_wait("L_th", 22, F_T)
        self.stamp(6)
        def h_loads(p):
            self.count(1024)
            if "h" not in o["cut"]:
                self.load(QB, 26, "ws", "s%d" % sF, 0, p)
                self.load(QB + 4, 26, "ws", "s%d" % sG, 0, p)
        if o["hpol"] != o["lpol"]:
            h_loads(o["hpol"])
            a("s_branch L_hgc")
        a("L_hg:")
        self.guard()
        h_loads(o["lpol"])
        a("L_hgc:")
        a("s_waitcnt vmcnt(0)")
        self.untag(QB, 2, 3)
        if not o["cut"]:
            self.again("L_hg")
        self.rows_scatter_sum([QB, QB + 4])
        self.rnd(4, QB)
        self.rnd(5, QB + 4)
        self.sigmoid(4, 4)
        a("v_mul_f32 v4, v4, v5")
        self.rnd(4, 4)
        a("ds_write_b16_d16_hi v27, v4 offset:%d\nds_write_b8 v22, v8 offset:%d" % (IM, F_IM))
        self.stamp(7)
        self.finish()

    def preread(self):
        a, o = self.a, self.o
        if o["pre"]:
            a("s_lshl_b32 s%d, s%d, 5\ns_add_u32 s%d, s%d, s%d\nv_lshlrev_b32 v40, 4, v1" % (sU, sX, sU, sU, sS))
        if "o" in o["pre"]:
            a("s_lshl2_add_u32 s%d, s%d, s%d\ns_lshl_b32 s%d, s%d, 10\ns_add_u32 s%d, s%d, 0x%x" % (sR, sU, sW, sR, sR, sR, sR, OX))
            self.load(44, 40, "ws", "s%d" % sR, 0, o["ppol"])
        if "h" in o["pre"]:
            a("s_cmp_lg_u32 s%d, 1\ns_cbranch_scc1 L_npre" % sW)
            a("s_lshr_b32 s%d, s%d, 2\ns_mul_i32 s%d, s%d, 28672\ns_mul_i32 s%d, s%d, 3584\ns_add_u32 s%d, s%d, s%d" % (sR, sS, sR, sR, sU, sX, sR, sR, sU))
            a("s_and_b32 s%d, s%d, 3\ns_mul_i32 s%d, s%d, 896\ns_add_u32 s%d, s%d, s%d\ns_add_u32 s%d, s%d, 0x%x" % (sU, sS, sU, sU, sR, sR, sU, sR, sR, HX))
            a("s_mov_b32 exec_hi, 0xffffff")
            self.load(48, 40, "ws", "s%d" % sR, 0, o["ppol"])
            a("s_mov_b32 exec_hi, -1\nL_npre:")

    def writeback(self, at):
        if at in self.o["wb"]:
            self.a("s_cmp_lg_u32 s%d, %d\ns_cbranch_scc1 L_nwb%s\nbuffer_wbl2 sc1\nL_nwb%s:" % (sS, self.o["wbs"], at, at))

    def finish(self):
        self.a("s_waitcnt lgkmcnt(0)")
        self.a("s_branch L_end" if self.o["stamps"] or self.o["hold"] else "s_endpgm")

    def f_waves(self):
        a, o = self.a, self.o
        W, pol = o["wf"], o["pol"]
        SEL, GU, WO, WD, Y, AO, DA, DB, VG = 56, 64, 128, 160, 188, 192, 224, 228, 232
        a("L_F:")
        for n in ("gw", "wg", "wu", "wo", "wd", "out"):
            self.ptr(n)
        self.desc("gw")
        if o["pf"] == 1:
            a("s_getpc_b64 s[%d:%d]\nL_pc:" % (sP, sP + 1))
            a("s_sub_u32 s%d, s%d, L_pc-%s_kernel\ns_subb_u32 s%d, s%d, 0" % (sP, sP, NAME, sP + 1, sP + 1))
            a("s_lshl_b32 s%d, s%d, 9\nv_lshl_add_u32 v250, v7, 2, s%d\nv_min_u32 v250, L_exit-%s_kernel, v250" % (sC, sS, sC, NAME))
            a("v_mov_b32 v251, s%d\nv_add_co_u32 v250, vcc, s%d, v250\ns_nop 1\nv_addc_co_u32 v251, vcc, 0, v251, vcc" % (sP + 1, sP))
            a("s_cmp_lg_u32 s%d, 0\ns_cbranch_scc1 L_nopf\nglobal_load_dword v252, v[250:251], off\nL_nopf:" % sW)
        a("v_and_b32 v3, 31, v1\nv_lshlrev_b32 v253, 4, v3\nv_lshrrev_b32 v4, 5, v1\nv_lshl_add_u32 v254, v4, 11, v253")
        a("v_mov_b32 v8, 1\nv_mov_b32 v9, 0\nv_mov_b32 v2, 0xff")
        a("s_waitcnt lgkmcnt(0)")
        a("s_load_dword s%d, s[%d:%d], 0" % (sT, SRD["ws"], SRD["ws"] + 1))
        self.stamp(1)
        self.desc("ws")
        if o["prepos"] == 0:
            self.preread()
        for n in ("wg", "wu", "wo", "wd", "out"):
            self.desc(n)
        a("v_lshlrev_b32 v3, 2, v1\nv_and_b32 v3, 31, v3\nds_write_b32 v3, v9")
        a("s_mov_b32 s%d, %d" % (sCNT, o["spin"]))
        a("s_lshl_b32 s%d, s%d, 2\nv_lshlrev_b32 v234, 4, v4\nv_add_u32 v235, s%d, v234" % (sA, sW, sA))
        self.gu_tile()
        a("s_lshr_b32 s%d, s%d, 1\nv_mov_b32 v244, s%d\ns_add_u32 s%d, s%d, s%d\nv_mov_b32 v247, s%d" % (sC, sW, sC, sE, sE, sC, sE))
        L = o["gil"]
        if L:
            a("v_lshrrev_b32 v3, %d, v6\nv_or_b32 v6, v3, v5" % L)
        a("v_mul_u32_u24 v11, 7168, v6\nv_add_u32 v11, v11, v7")
        a("v_add_u32 v246, s%d, v11\nv_add_u32 v11, s%d, v11" % (sOK, sH))
        a("s_mul_i32 s%d, s%d, %d\ns_lshl_b32 s%d, s%d, 7\ns_add_u32 s%d, s%d, s%d" % (sB, sB, (64 >> L) * 7168, sC, sG, sB, sB, sC))
        self.q_block(sA, sC)
        a("s_lshr_b32 s%d, s%d, 2\ns_lshl_b32 s%d, s%d, 12\ns_and_b32 s%d, s%d, 3\ns_lshl_b32 s%d, s%d, 8" % (sF, sA, sF, sF, sA, sA, sA, sA))
        a("s_add_u32 s%d, s%d, s%d\ns_lshl_b32 s%d, s%d, 10\ns_add_u32 s%d, s%d, s%d\ns_add_u32 s%d, s%d, 0x%x" % (
            sF, sF, sA, sA, sKS, sF, sF, sA, sF, sF, QX))
        a("s_lshr_b32 s%d, s%d, 12" % (sA, sF))
        self.spread(sF, sA, min(o["qch"], 16), sA)
        a("s_lshl_b32 s%d, s%d, 3\ns_lshr_b32 s%d, s%d, 2\ns_add_u32 s%d, s%d, s%d" % (sRB, sX, sA, sS, sRB, sRB, sA))
        if o["colmap"]:
            a("s_and_b32 s%d, s%d, 3\ns_and_b32 s%d, s%d, 1" % (sH, sS, sOK, sW))
            a("s_lshl_b32 s%d, s%d, 1\ns_add_u32 s%d, s%d, s%d\ns_lshl_b32 s%d, s%d, 8" % (sC, sH, sC, sC, sOK, sC, sC))
        else:
            a("s_and_b32 s%d, s%d, 3\ns_xor_b32 s%d, s%d, 2\ns_and_b32 s%d, s%d, 1" % (sH, sS, sH, sH, sOK, sW))
            a("s_lshl_b32 s%d, s%d, 3\ns_add_u32 s%d, s%d, s%d\ns_lshl_b32 s%d, s%d, 7" % (sC, sOK, sC, sC, sH, sC, sC))
        a("s_lshl_b32 s%d, s%d, 1\ns_lshr_b32 s%d, s%d, 1\ns_add_u32 s%d, s%d, s%d" % (sE, sRB, sA, sW, sE, sE, sA))
        a("s_lshr_b32 s%d, s%d, 2\ns_lshl_b32 s%d, s%d, 18\ns_and_b32 s%d, s%d, 3\ns_lshl_b32 s%d, s%d, 12" % (sD, sE, sD, sD, sA, sE, sA, sA))
        a("s_add_u32 s%d, s%d, s%d\ns_add_u32 s%d, s%d, s%d" % (sD, sD, sA, sD, sD, sC))
        a("s_mul_i32 s%d, s%d, %d\ns_add_u32 s%d, s%d, s%d" % (sE, sE, 28 * 2048, sE, sE, sC))
        a("v_lshrrev_b32 v3, 4, v1\nv_lshl_add_u32 v6, v5, %d, v7" % (7 if o["colmap"] else 9))
        a("v_lshl_add_u32 v12, v3, 14, v6\nv_lshl_add_u32 v13, v3, 11, v6")
        if o["oil"]:
            a("s_lshr_b32 s%d, s%d, 2\ns_lshr_b32 s%d, s%d, 1\ns_lshl1_add_u32 s%d, s%d, s%d\ns_lshl_b32 s%d, s%d, 13" % (sD, sS, sA, sW, sD, sD, sA, sD, sD))
            a("s_add_u32 s%d, s%d, s%d\ns_mul_i32 s%d, s%d, %d\ns_add_u32 s%d, s%d, s%d" % (sD, sD, sC, sE, sX, 448 * 2048, sE, sE, sD))
            a("s_lshl_b32 s%d, s%d, 20\ns_add_u32 s%d, s%d, s%d\nv_mov_b32 v12, v13" % (sA, sX, sD, sD, sA))
        a("s_lshl_b32 s%d, s%d, 10\nv_lshlrev_b32 v236, 4, v1\nv_add_u32 v236, s%d, v236" % (sA, sW, sA))
        a("v_mov_b32 v240, s%d" % sW)
        a("v_and_b32 v5, 15, v1\nv_lshlrev_b32 v6, 4, v5\nv_lshl_add_u32 v239, v3, 16, v6")
        if o["qch"] == 32:
            a("v_lshl_add_u32 v239, v3, %d, v239" % (o["sh"] + 4))
        a("v_and_b32 v6, 1, v1\nv_lshl_add_u32 v237, v3, 1, v6\nv_lshlrev_b32 v237, 8, v237")
        a("v_lshrrev_b32 v5, 1, v5\nv_lshl_add_u32 v237, v5, 4, v237")
        a("v_lshlrev_b32 v255, 8, v6\nv_lshl_add_u32 v255, v4, 9, v255\nv_bfe_u32 v5, v1, 1, 4\nv_lshl_add_u32 v255, v5, 4, v255")
        a("s_lshl_b32 s%d, s%d, 10\nv_add_u32 v255, s%d, v255" % (sA, sOK, sA))
        a("v_lshrrev_b32 v4, 2, v1\nv_and_b32 v5, 3, v1\nv_lshlrev_b32 v241, 4, v5\nv_lshl_add_u32 v241, v4, 12, v241")
        a("v_lshrrev_b32 v4, 3, v1\nv_lshlrev_b32 v243, 7, v244\nv_lshl_add_u32 v243, v4, 4, v243")
        a("v_lshlrev_b32 v242, 4, v1\nv_lshlrev_b32 v245, 3, v5\nv_lshl_add_u32 v245, v3, 1, v245")
        a("s_lshl_b32 s%d, s%d, 2\nv_mov_b32 v10, s%d" % (sA, sOK, sA))
        a("s_lshl_b32 s%d, s%d, 1\ns_add_u32 s%d, s%d, s%d\ns_lshl_b32 s%d, s%d, 16" % (sA, sH, sA, sA, sOK, sA, sA))
        a("s_lshl_b32 s%d, s%d, 6\ns_add_u32 s%d, s%d, s%d\ns_add_u32 s%d, s%d, 0x%x" % (sC, sRB, sA, sA, sC, sP, sA, FX))
        a("s_and_b32 s%d, s%d, 1\ns_or_b32 s%d, s%d, s%d" % (sA, sS, sOK, sOK, sA))
        a("s_lshl_b32 s%d, s%d, 16\ns_lshl_b32 s%d, s%d, 11\ns_add_u32 s%d, s%d, s%d\ns_add_u32 s%d, s%d, 0x%x" % (sA, sX, sC, sS, sA, sA, sC, sP + 1, sA, FX))
        a("s_bfe_u32 s%d, s%d, 0x10003" % (sC, sS))
        if o["colmap"]:
            a("s_lshl_b32 s%d, s%d, 1\ns_add_u32 s%d, s%d, s%d" % (sA, sX, sA, sA, sC))
        else:
            a("s_lshl_b32 s%d, s%d, 2\ns_lshr_b32 s%d, s%d, 1\ns_add_u32 s%d, s%d, s%d" % (sC, sC, sA, sX, sA, sA, sC))
            a("s_and_b32 s%d, s%d, 1\ns_lshl_b32 s%d, s%d, 3\ns_add_u32 s%d, s%d, s%d" % (sC, sX, sC, sC, sA, sA, sC))
        a("s_and_b32 s%d, s%d, 16\ns_add_u32 s%d, s%d, s%d\ns_lshl_b32 s%d, s%d, 7" % (sC, sS, sA, sA, sC, sA, sA))
        a("s_and_b32 s%d, s%d, 6\ns_lshl_b32 s%d, s%d, 4\ns_add_u32 s%d, s%d, s%d" % (sC, sS, sC, sC, sKS, sA, sC))
        self.sel_x()
        a("v_lshlrev_b32 v4, 4, v1\nv_mov_b32 v3, 0x0c0c0100\nv_alignbit_b32 v5, v3, v3, v4")
        a("v_mov_b32 v3, 0x0c0c0302\nv_alignbit_b32 v6, v3, v3, v4\nv_bfe_u32 v7, v1, 1, 2\nv_mov_b32 v4, 0x0c0c0c0c")
        for j in range(4):
            a("v_cmp_eq_u32 vcc, %d, v7\nv_cndmask_b32 v%d, v4, v5, vcc\nv_cndmask_b32 v%d, v4, v6, vcc" % (j, SEL + j, SEL + 4 + j))
        a("s_lshl_b32 s%d, s%d, 9\ns_waitcnt lgkmcnt(0)" % (sC, sW))
        self.tags()
        a("s_cmp_lg_u32 s%d, 0\ns_cbranch_scc1 L_nodie" % sW)
        a("s_lshl_b32 s%d, s%d, 5\ns_add_u32 s%d, s%d, s%d\ns_lshl_b32 s%d, s%d, 2\ns_add_u32 s%d, s%d, 0x%x" % (sA, sX, sA, sA, sS, sA, sA, sA, sA, DX))
        a("s_xor_b32 s%d, s%d, s%d\nv_mov_b32 v3, s%d\ns_mov_b64 exec, 1" % (sU, sL, sT, sU))
        a("buffer_store_dword v3, v9, %s, s%d offen\ns_mov_b64 exec, -1" % (srd("ws"), sA))
        if o["qloc"]:
            a("s_waitcnt vmcnt(0)")
            self.die_read(25)
        a("L_nodie:\ns_barrier")
        a("s_cmp_lg_u32 s%d, 0\ns_cbranch_scc1 L_noq" % sW)
        for k in range(4):
            a("ds_read_b128 %s, v237 offset:%d" % (vr(GU + 4 * k), RQ + 1024 * k))
        a("s_waitcnt lgkmcnt(0)")
        self.sum4(GU)
        self.tag4(248, [GU, GU + 1, GU + 2, GU + 3])
        if o["qloc"]:
            a("s_mov_b32 s%d, 0xffff\ns_not_b32 s%d, s%d\ns_bitcmp1_b32 s%d, 0\ns_cselect_b32 s%d, s%d, s%d\ns_mov_b32 exec_lo, s%d\ns_mov_b32 exec_hi, 0" % (
                  sA, sU, sA, sX, sU, sA, sU, sU))
            if "Q" not in o["cut"]:
                a("buffer_store_dwordx4 v[248:251], v239, %s, s%d offen %s" % (srd("ws"), sF, o["qst"]))
            a("s_mov_b32 exec_lo, -1\ns_waitcnt vmcnt(%d)" % ("Q" not in o["cut"]))
            self.die_test(25)
            a("s_not_b32 exec_lo, s%d" % sU)
            if "Q" not in o["cut"]:
                self.publish("L_pq", 248, 239, sF)
            a("s_mov_b64 exec, -1")
        else:
            a("s_mov_b32 exec_hi, 0")
            if "Q" not in o["cut"]:
                a("buffer_store_dwordx4 v[248:251], v239, %s, s%d offen %s" % (srd("ws"), sF, o["qst"]))
            a("s_mov_b32 exec_hi, -1")
        a("L_noq:")
        self.stamp(2)
        if o["prepos"] == 1:
            self.preread()
        if "g" not in o["cut"]:
            self.load(GU, 254, "x", "s%d" % sC)
            self.load(GU + 4, 253, "gw", "s%d" % sC, 0, o["xpol"])
        a("ds_read_b128 v[16:19], v236 offset:%d\nds_read_b128 v[20:23], v236 offset:%d\ns_waitcnt lgkmcnt(0)" % (XS, XS + 4096))
        self.x_operands()
        a("s_waitcnt vmcnt(0)")
        self.ack(1)
        self.stamp(1, True)
        t = GU + 8
        for j in range(4):
            a("v_lshlrev_b32 v%d, 16, v%d\nv_lshlrev_b32 v%d, 16, v%d" % (t + j, GU + j, t + 4 + j, GU + 4 + j))
            a("v_and_b32 v%d, 0xffff0000, v%d\nv_and_b32 v%d, 0xffff0000, v%d" % (GU + j, GU + j, GU + 4 + j, GU + 4 + j))
        for j in range(4):
            a("v_mul_f32 v%d, v%d, v%d\nv_mul_f32 v%d, v%d, v%d" % (t + j, t + j, t + 4 + j, GU + j, GU + j, GU + 4 + j))
        for j in range(4):
            self.rnd(t + j, t + j); self.rnd(GU + j, GU + j)
        for j in range(4):
            a("v_add_f32 v%d, v%d, v%d" % (t + j, t + j, GU + j))
        a("v_add_f32 v%d, v%d, v%d\nv_add_f32 v%d, v%d, v%d\nv_add_f32 v4, v%d, v%d" % (t, t, t + 1, t + 2, t + 2, t + 3, t, t + 2))
        for n in (8, 4, 2, 1):
            self.dpp("v_add_f32", 4, 4, 4, "row_ror:%d" % n)
        self.rows_allreduce("v_add_f32", 4, 3, (16,))
        a("ds_write_b32 v235, v4 offset:%d" % GP)
        a("s_waitcnt lgkmcnt(0)")
        a("s_barrier")
        self.stamp(3)

        def issue(i):
            if i < 16 and o["ilv"]:
                self.load(GU + 4 * i, 246 if i & 1 else 11, "wu" if i & 1 else "wg", "s%d" % sB, 0, pol)
                if i & 1 and i < 15:
                    a("s_add_u32 s%d, s%d, %d" % (sB, sB, 7168 * (krow(i // 2 + 1, L) - krow(i // 2, L))))
            elif i < 16:
                self.load(GU + 4 * i, 246 if i >= 8 else 11, "wu" if i >= 8 else "wg", "s%d" % sB, 0, pol)
                if i == 7:
                    a("s_sub_u32 s%d, s%d, %d" % (sB, sB, 7168 * krow(7, L)))
                elif i < 15:
                    a("s_add_u32 s%d, s%d, %d" % (sB, sB, 7168 * (krow((i & 7) + 1, L) - krow(i & 7, L))))
            elif i < 24:
                k = i - 16
                m = (k >> 1) + 4 * (k & 1)
                self.load(WO + 4 * m, 12, "wo", "s%d" % sD, 0 if o["oil"] else 2048 * (k & 1), pol)
                if o["oil"]:
                    a("s_add_u32 s%d, s%d, 0x20000" % (sD, sD))
                elif k & 1 and k < 7:
                    a("s_add_u32 s%d, s%d, 0x10000" % (sD, sD))
            else:
                m = i - 24
                self.load(WD + 4 * m, 13, "wd", "s%d" % sE, 0, pol)
                if m < 6:
                    a("s_add_u32 s%d, s%d, 0x%x" % (sE, sE, 0x20000 if o["oil"] else 0x2000))

        for i in range(W):
            issue(i)
        a("ds_read_b128 v[4:7], v234 offset:%d\ns_waitcnt lgkmcnt(0)" % GP)
        a("v_add_f32 v4, v4, v5\nv_add_f32 v6, v6, v7\nv_add_f32 v4, v4, v6")
        self.rnd(4, 4)
        self.sigmoid(VG, 4)
        a("v_sub_f32 v%d, 1.0, v%d" % (VG + 1, VG))
        self.rnd(VG + 1, VG + 1)
        if o["wef"]:
            a("s_cmp_ge_u32 s%d, 2\ns_cselect_b64 vcc, -1, 0" % sX)
        for i in range(max(31 - W, 16)):
            if i + W < 31:
                a("s_waitcnt vmcnt(%d)" % (W - 1))
                if i < o["wef"]:
                    a("s_cbranch_vccnz L_we%d\ns_waitcnt vmcnt(%d)\nL_we%d:" % (i, W - 2, i))
                if i in (0, 4, 8, 12, 20):
                    self.stamp({0: 6, 4: 7, 8: 8, 12: 9, 20: 10}[i], True)
                issue(i + W)
            else:
                a("s_waitcnt vmcnt(%d)" % (30 - i))
            if i < 16:
                gu, m = (i & 1, i >> 1) if o["ilv"] else (i >> 3, i & 7)
                self.mf16(40 + 8 * gu, 24 + 2 * m, GU + 4 * i, m == 0)
                self.mf16(44 + 8 * gu, 24 + 2 * m, GU + 4 * i + 2, m == 0)
            last = max(31 - W, 16) - 1
            for flag, step, dl in ((F_T, o["to"], o["tol"]), (F_T + 2, o["th"], o["thl"])):
                if i == min(step + (0 if o["ilv"] else dl), last):
                    a("ds_write_b8 v244, v8 offset:%d" % flag)
                elif i == step:
                    a("ds_write_b8 v247, v8 offset:%d" % flag)
            if i == 15:
                for r in range(4):
                    a("v_permlane16_swap_b32 v%d, v%d" % (40 + r, 44 + r))
                for r in range(4):
                    a("v_permlane16_swap_b32 v%d, v%d" % (48 + r, 52 + r))
                for r in range(4):
                    self.dpp("v_add_f32", 40 + r, 44 + r, 40 + r, "row_ror:8", 0x3)
                for r in range(4):
                    self.dpp("v_add_f32", 40 + r, 48 + r, 52 + r, "row_ror:8", 0xc)
                a("ds_write_b128 v236, v[40:43] offset:%d" % RH)
                a("ds_write_b8 v240, v8 offset:%d" % C_H)
                self.stamp(4)
        self.stamp(5)

        def image(lbl, flag, img):
            a("%s:" % lbl)
            self.guard()
            a("ds_read_u8 v3, v244 offset:%d\nds_read_b128 %s, v243 offset:%d" % (flag, vr(Y), img))
            a("s_waitcnt lgkmcnt(0)\nv_cmp_ne_u32 vcc, 1, v3\ns_cbranch_vccnz %s" % lbl)

        def operands(m):
            for j in range(4):
                a("v_perm_b32 v%d, v%d, v%d, v%d" % (AO + 4 * m + j, Y + (m >> 1), Y + (m >> 1), SEL + 4 * (m & 1) + j))

        image("L_oi", F_IM, IM)
        self.stamp(6)
        operands(0)
        a("s_waitcnt vmcnt(7)")
        for m in range(8):
            if m < 7:
                operands(m + 1)
            self.mf32(DA, AO + 4 * m, WO + 4 * m, m == 0)
        image("L_hi", F_IM + 2, IM + 256)
        self.stamp(7)
        operands(0)
        for m in range(7):
            if m < 6:
                operands(m + 1)
            else:
                for r in range(4):
                    a("v_mul_f32 v%d, v%d, v%d" % (DA + r, VG, DA + r))
            a("s_waitcnt vmcnt(%d)" % (6 - m))
            self.mf32(DB, AO + 4 * m, WD + 4 * m, m == 0)
        for r in range(4):
            a("v_fmac_f32 v%d, v%d, v%d" % (DA + r, VG + 1, DB + r))
        a("ds_write_b128 v236, %s offset:%d" % (vr(DA), RF))
        self.stamp(8)
        a("s_mov_b64 exec, 1\nds_add_rtn_u32 v3, v10, v8 offset:%d\ns_mov_b64 exec, -1" % C_F)
        a("ds_read_b128 %s, v255 offset:%d\nds_read_b128 %s, v255 offset:%d" % (vr(DA), RF, vr(DB), RF + 2048))
        a("s_waitcnt lgkmcnt(0)\nv_readfirstlane_b32 s%d, v3" % sA)
        for r in range(4):
            a("v_add_f32 v%d, v%d, v%d" % (DA + r, DA + r, DB + r))
        a("s_cmp_lg_u32 s%d, 1\ns_cbranch_scc1 L_end" % sA)
        self.tag4(DA, [DA + r for r in range(4)])
        if o["fcut"]:
            a("s_mov_b64 exec, 0x%x" % ((1 << (32 >> (o["fcut"] - 1))) - 1) if o["fcut"] > 1 else "s_mov_b32 exec_hi, 0")
        a("buffer_store_dwordx4 %s, v241, %s, s%d offen %s" % (vr(DA), srd("ws"), sP, o["fst"]))
        if o["fcut"]:
            a("s_mov_b64 exec, -1\ns_cmp_ge_u32 s%d, %d\ns_cselect_b32 s%d, 1, s%d" % (sS, 32 >> o["fcut"], sOK, sOK))
        self.stamp(9)
        self.writeback("F")
        a("s_cmp_lg_u32 s%d, 0\ns_cbranch_scc1 L_end" % sOK)
        if o["lag"] & 1:
            a("s_waitcnt vmcnt(0)")
        a("L_fin:")
        self.guard()
        for m in range(4):
            self.load(40 + 4 * m, 242, "ws", "s%d" % (sP + 1), 1024 * m, o["fld"])
        a("s_waitcnt vmcnt(0)")
        self.untag(40, 4, 3)
        self.again("L_fin")
        self.stamp(10)
        self.writeback("R")
        self.sum4(40)
        self.rows_scatter_sum([40])
        for n in (8, 4):
            self.dpp("v_add_f32", 40, 40, 40, "row_ror:%d" % n)
        self.rnd(40, 40)
        a("s_mov_b32 exec_lo, 0x000f000f\ns_mov_b32 exec_hi, 0x000f000f")
        a("buffer_store_short_d16_hi v40, v245, %s, s%d offen %s" % (srd("out"), sKS, o["outpol"]))
        a("s_cmp_lg_u32 s2, 0\ns_cbranch_scc1 %s" % ("L_amp" if o["ampend"] else "L_end"))
        a("s_mov_b64 exec, 1\nv_mov_b32 v3, s%d\nbuffer_store_dword v3, v9, %s, 0 offen sc1" % (sT, srd("ws")))
        if o["ampend"]:
            a("L_amp:\ns_waitcnt vmcnt(0)\ns_memrealtime s[%d:%d]\ns_waitcnt lgkmcnt(0)" % (sD, sD + 1))
            a("s_sub_u32 s%d, s%d, s%d\ns_lshl_b32 s%d, s%d, 2\ns_and_b32 s%d, s%d, 0x3fff" % (sA, sD, sST, sA, sA, sA, sA))
            a("L_amp2:\ns_memrealtime s[%d:%d]\ns_waitcnt lgkmcnt(0)\ns_sub_u32 s%d, s%d, s%d\ns_cmp_lt_u32 s%d, s%d\ns_cbranch_scc1 L_amp2" % (
                sD, sD + 1, sD, sD, sST, sD, sA))

    def epilogue(self):
        a = self.a
        a("L_end:")
        if self.o["stamps"]:
            a("s_mov_b64 exec, 1\ns_waitcnt vmcnt(0)")
            self.stamp(NST - 1)
            a("s_waitcnt lgkmcnt(0)")
            a("s_lshl_b32 s%d, s3, 8\ns_add_u32 s%d, s%d, s2\ns_mul_i32 s%d, s%d, %d\ns_add_u32 s%d, s%d, 0x%x" % (
                sA, sA, sA, sA, sA, NST * 8, sA, sA, STAMP_OFF))
            a("v_mov_b32 v1, s%d" % sA)
            for i in range(NST):
                a("v_mov_b32 v4, s%d\nv_mov_b32 v5, s%d" % (sST + 2 * i, sST + 2 * i + 1))
                a("buffer_store_dwordx2 v[4:5], v1, %s, 0 offen offset:%d\ns_nop 1" % (srd("ws"), 8 * i))
        if self.o["hold"]:
            a("s_cmp_lg_u32 s3, %d\ns_cbranch_scc1 L_exit" % self.o["ampwave"])
            if self.o["ampwg"] is not None:
                a("s_cmp_lg_u32 s2, %d\ns_cbranch_scc1 L_exit" % self.o["ampwg"])
            a("s_waitcnt lgkmcnt(0)\ns_mov_b32 s%d, %d" % (sA, self.o["hold"]))
            if self.o["amp"]:
                a("s_sub_u32 s%d, s%d, s%d\ns_lshl_b32 s%d, s%d, 2\ns_and_b32 s%d, s%d, 0x3fff\ns_add_u32 s%d, s%d, s%d" % (
                    sB, sST + 2 * self.o["amp"], sST, sB, sB, sB, sB, sA, sA, sB))
            a("L_hold:\ns_memrealtime s[%d:%d]\ns_waitcnt lgkmcnt(0)\ns_sub_u32 s%d, s%d, s%d\ns_cmp_lt_u32 s%d, s%d\ns_cbranch_scc1 L_hold" % (
                sD, sD + 1, sD, sD, sST, sD, sA))
        a("L_exit:\ns_endpgm")

    def build(self):
        if self.o["stamps"]:
            for i in range(1, NST):
                self.a("s_mov_b64 s[%d:%d], 0" % (sST + 2 * i, sST + 2 * i + 1))
        self.prologue()
        self.a_waves()
        self.f_waves()
        self.epilogue()
        lab = NAME + "_kernel"
        lines = [l[:-3] + self.o["spol"] if "buffer_store_dwordx4" in l and l.endswith("sc1") and "v241" not in l else l for l in self.a.lines]
        body = "\n".join(hazard.pad(lines)) + "\n"
        return (header(["; @launch grid=(256,1,1) block=(512,1,1) lds=%d" % LDS_BYTES]) + kernel_open(lab) + body
                + RODATA + descriptor(lab, 256))


def main():
    out = sys.argv[1]
    kw = {}
    for s in sys.argv[2:]:
        k, v = s.split("=")
        try:
            v = v if k == "stag" else int(v, 0)
        except ValueError:
            pass
        kw[k] = v.replace("+", " ") if isinstance(v, str) else v
    open(out, "w").write(Gen(**kw).build())


if __name__ == "__main__":
    main()
```

```python
import sys
from asmlib import *
import hazard

DEFAULTS = dict(wa=5, wf=5, pol="nt", stamps=False, spin=100000, outpol="", wa0=8, qpos=7, to=8, th=20, loc=1, umap=1, dpol="sc1 nt", qloc=0, o2loc=1, pf=2, tearly=1, ilv=0, colmap=0, mask=1, fine=0, sync=None, stag="102", stx=0, tol=3, thl=1, cut="", lag=1, gpol="sc1", twice=0, prio=0, wd=1, wea=0, wef=0, qst="sc1", fst="sc1", fld="sc1", xpol="", wb="", wbs=3, pre="", ppol="nt", lagx=0, fpre="", fppol="sc1", prepos=0, lpol="sc1 nt", fcut=0, floc=0, cown=0, wt=99, wr=1, gpol0="sc1", hcut=0, t2=0, t2l=1, adap=0, fq=2, fsel=0, hpol2="sc1", npol="", osrc="", kil=0, wil=0, gil=0, oil=0, qch=0, och=0, hch=0, fch=0, sb=2, sh=18, opol="sc1 nt", hpol="sc1 nt", rpol="sc1", spol="sc1", diag=0, hold=0, perm=0, ampend=0, amp=None, ampwave=0, ampwg=None)

DX, QX, O2, HX, FX, OX = 0x8000, 0x10000, 0x30000, 0x40000, 0x80000, 0x100000
STAMP_OFF = 128 << 20
F_Q, F_O, C_H, F_IM, C_F, F_L, F_T = 0, 4, 8, 12, 16, 20, 24
GP, MLL, IM = 64, 256, 512
RQ, RH, RF, QI, OL = 2048, 6144, 10240, 14336, 16640
XS = OL + 4 * 4224
LDS_BYTES = XS + 8192
SRD = dict(x=4, wq=8, k=12, v=16, wg=20, wu=24, wo=28, wd=32, gw=36, ws=40, out=44)
sX, sS, sW, sT, sT0, sCNT = 48, 49, 50, 51, 52, 56
sA, sB, sC, sD, sE, sF, sG, sH, sRB, sKS = 57, 58, 59, 60, 61, 62, 63, 64, 65, 66
sOK, sP, sR, sL, sU = 67, 68, 94, 95, 96
sST = 70
NST = 12
OOB = 0x7f000000
LOG2E = 0x3fb8aa3b
SCALE = 0x3db504f3
KVBASE = (32768 - 4096) * 256


def srd(n):
    return "s[%d:%d]" % (SRD[n], SRD[n] + 3)


def vr(b, n=4):
    return "v[%d:%d]" % (b, b + n - 1)


def krow(i, L):
    return ((i >> (3 - L)) << (10 - L)) + ((i & ((8 >> L) - 1)) << 1)


class VM:
    def __init__(self, a):
        self.a, self.q = a, []

    def note(self, name):
        self.q.append(name)

    def wait(self, name):
        self.a("s_waitcnt vmcnt(%d)" % (len(self.q) - 1 - self.q.index(name)))


class Gen:
    def __init__(self, **kw):
        self.o = dict(DEFAULTS)
        self.o.update(kw)
        self.a = Asm()

    def spread(self, d, idx, n, t):
        if n:
            self.a("s_and_b32 s%d, s%d, %d\ns_lshl_b32 s%d, s%d, %d\ns_add_u32 s%d, s%d, s%d\ns_add_u32 s%d, s%d, 0x%x" % (
                t, idx, n - 1, t, t, self.o["sh"], d, d, t, d, d, self.o["sb"] << 20))

    def stamp(self, i, fine=False):
        if self.o["fine"] and i in (1, 6, 7, 8, 9, 10) and not fine or fine and not self.o["fine"]:
            return
        if self.o["stamps"] or (self.o["hold"] and i in (0, self.o["amp"])) or (self.o["ampend"] and i == 0):
            self.a("s_memrealtime s[%d:%d]" % (sST + 2 * i, sST + 2 * i + 1))

    def count(self, unit):
        if self.o["diag"]:
            self.a("s_add_u32 s%d, s%d, %d" % (sST + 2, sST + 2, 100 * unit))

    def ack(self, i):
        if self.o["diag"]:
            self.a("s_waitcnt vmcnt(0)")
            self.stamp(i)

    def ptr(self, n):
        self.a("s_load_dwordx2 s[%d:%d], s[0:1], %d" % (SRD[n], SRD[n] + 1, KARG[n]))

    def desc(self, n):
        self.a("s_mov_b32 s%d, 0x%x\ns_mov_b32 s%d, 0x20000" % (SRD[n] + 2, SIZE[n], SRD[n] + 3))

    def guard(self):
        self.a("s_sub_u32 s%d, s%d, 1\ns_cbranch_scc1 L_end" % (sCNT, sCNT))

    def load(self, dst, voff, buf, soff, imm=0, pol=""):
        self.a("buffer_load_dwordx4 %s, v%d, %s, %s offen%s%s" % (
            vr(dst), voff, srd(buf), soff, " offset:%d" % imm if imm else "", " " + pol if pol else ""))

    def flag_wait(self, lbl, vaddr, flag):
        self.a("%s:" % lbl)
        self.guard()
        self.a("ds_read_u8 v3, v%d offset:%d\ns_waitcnt lgkmcnt(0)\nv_cmp_ne_u32 vcc, 1, v3\ns_cbranch_vccnz %s" % (vaddr, flag, lbl))

    def tags(self):
        a = self.a
        a("s_add_u32 s%d, s%d, 0x01010101" % (sT, sT))
        a("s_and_b32 s%d, s%d, 0xff" % (sT0, sT))
        a("s_bfe_u32 s%d, s%d, 0x80008" % (sT0 + 1, sT))
        a("s_bfe_u32 s%d, s%d, 0x80010" % (sT0 + 2, sT))
        a("s_lshr_b32 s%d, s%d, 24" % (sT0 + 3, sT))

    def tag4(self, dst, src):
        for j in range(4):
            self.a("v_bfi_b32 v%d, v2, s%d, v%d" % (dst + j, sT0 + j, src[j]))

    def untag(self, base, n, acc, cmp=True, also=None):
        a = self.a
        regs = list(range(base, base + 4 * n))
        for r in regs:
            a("v_xor_b32 v%d, s%d, v%d" % (r, sT0 + (r - base) % 4, r))
        a("v_or_b32 v%d, v%d, v%d" % (acc, regs[0], regs[1]))
        for i in range(2, len(regs), 2):
            a("v_or3_b32 v%d, v%d, v%d, v%d" % (acc, acc, regs[i], regs[i + 1]))
        if also is not None:
            a("v_or_b32 v%d, v%d, v%d" % (acc, acc, also))
        if cmp:
            a("v_and_b32 v%d, v2, v%d" % (acc, acc))
            a("v_cmp_ne_u32 vcc, 0, v%d" % acc)

    def narrow(self):
        if self.o["mask"]:
            self.a("s_wqm_b64 exec, vcc")

    def widen(self):
        if self.o["mask"]:
            self.a("s_mov_b64 exec, -1")

    def again(self, lbl):
        self.narrow()
        self.a("s_cbranch_vccnz %s" % lbl)
        self.widen()

    def dpp(self, op, d, s0, s1, ctl, bank=0xf):
        self.a("%s_dpp v%d, v%d, %s%s row_mask:0xf bank_mask:0x%x" % (
            op, d, s0, "v%d " % s1 if s1 is not None else "", ctl, bank) if s1 is not None else
            "%s_dpp v%d, v%d %s row_mask:0xf bank_mask:0x%x" % (op, d, s0, ctl, bank))

    def rows_allreduce(self, op, x, t, which=(16, 32)):
        for n in which:
            self.a("v_mov_b32 v%d, v%d\nv_permlane%d_swap_b32 v%d, v%d\n%s v%d, v%d, v%d" % (t, x, n, x, t, op, x, x, t))

    def rows_scatter_sum(self, sets):
        a = self.a
        for b in sets:
            a("v_permlane32_swap_b32 v%d, v%d\nv_permlane32_swap_b32 v%d, v%d" % (b, b + 2, b + 1, b + 3))
        for b in sets:
            a("v_add_f32 v%d, v%d, v%d\nv_add_f32 v%d, v%d, v%d" % (b, b, b + 2, b + 1, b + 1, b + 3))
        for b in sets:
            a("v_permlane16_swap_b32 v%d, v%d" % (b, b + 1))
        for b in sets:
            a("v_add_f32 v%d, v%d, v%d" % (b, b, b + 1))

    def rnd(self, d, s):
        self.a("v_cvt_pk_bf16_f32 v%d, 0, v%d" % (d, s))

    def sigmoid(self, d, z):
        a = self.a
        a("v_mul_f32 v%d, 0x%x, v%d" % (d, LOG2E ^ 0x80000000, z))
        a("v_exp_f32 v%d, v%d\nv_add_f32 v%d, 1.0, v%d\nv_rcp_f32 v%d, v%d" % (d, d, d, d, d, d))
        self.rnd(d, d)

    def sel_x(self):
        a = self.a
        a("v_bfe_u32 v3, v1, 2, 1\nv_mul_u32_u24 v3, 0x202, v3\nv_add_u32 v3, 0x0c0c0100, v3")
        a("v_lshlrev_b32 v4, 4, v1\nv_alignbit_b32 v3, v3, v3, v4")
        a("v_and_b32 v4, 2, v1\nv_cmp_eq_u32 vcc, 0, v4\nv_mov_b32 v4, 0x0c0c0c0c")
        a("v_cndmask_b32 v14, v4, v3, vcc\nv_cndmask_b32 v15, v3, v4, vcc")

    def x_operands(self):
        for m in range(8):
            self.a("v_perm_b32 v%d, v%d, v%d, v14\nv_perm_b32 v%d, v%d, v%d, v15" % (
                24 + 2 * m, 16 + m, 16 + m, 25 + 2 * m, 16 + m, 16 + m))

    def mf16(self, d, av, bv, first):
        self.a("v_mfma_f32_16x16x16_bf16 %s, %s, %s, %s" % (vr(d), vr(av, 2), vr(bv, 2), "0" if first else vr(d)))

    def mf32(self, d, av, bv, first):
        self.a("v_mfma_f32_16x16x32_bf16 %s, %s, %s, %s" % (vr(d), vr(av), vr(bv), "0" if first else vr(d)))

    def sum4(self, b):
        for r in range(4):
            self.a("v_add_f32 v%d, v%d, v%d\nv_add_f32 v%d, v%d, v%d" % (b + r, b + r, b + 4 + r, b + 8 + r, b + 8 + r, b + 12 + r))
        for r in range(4):
            self.a("v_add_f32 v%d, v%d, v%d" % (b + r, b + r, b + 8 + r))

    def prologue(self):
        a = self.a
        self.stamp(0)
        if self.o["sync"] is not None:
            a("s_waitcnt lgkmcnt(0)\ns_add_u32 s4, s%d, 300\ns_or_b32 s4, s4, 0x7ff\ns_and_b32 s5, s2, 6\ns_cselect_b32 s5, %d, 0\ns_add_u32 s4, s4, s5" % (sST, self.o["sync"]))
            a("L_sync:\ns_memrealtime s[%d:%d]\ns_waitcnt lgkmcnt(0)\ns_sub_u32 s5, s%d, s4\ns_cmp_lt_i32 s5, 0\ns_cbranch_scc1 L_sync" % (sST, sST + 1, sST))
        a("s_cmp_ge_u32 s2, 256\ns_cbranch_scc1 L_exit")
        if self.o["perm"] == 1:
            a("s_lshr_b32 s4, s2, 5\ns_lshl_b32 s2, s2, 3\ns_or_b32 s2, s2, s4\ns_and_b32 s2, s2, 255")
        if self.o["perm"] == 2:
            a("s_cmp_eq_u32 s2, 42\ns_cselect_b32 s4, 7, 0\ns_cmp_eq_u32 s2, 45\ns_cselect_b32 s4, 7, s4\ns_xor_b32 s2, s2, s4")
        for n in ("x", "wq", "ws"):
            self.ptr(n)
        a("s_lshr_b32 s%d, s2, 3" % sS)
        if self.o["pf"] == 2:
            a("s_getpc_b64 s[%d:%d]\nL_pc:" % (sP, sP + 1))
            a("s_lshl_b32 s%d, s%d, 9\ns_min_u32 s%d, s%d, L_exit-L_pc-512" % (sA, sS, sA, sA))
            a("s_add_u32 s%d, s%d, s%d\ns_addc_u32 s%d, s%d, 0" % (sP, sP, sA, sP + 1, sP + 1))
            a("v_add_co_u32 v250, vcc, s%d, v0\nv_mov_b32 v251, s%d\nv_lshrrev_b32 v3, 6, v0\nv_addc_co_u32 v251, vcc, 0, v251, vcc" % (sP, sP + 1))
            a("global_load_ubyte v252, v[250:251], off " + self.o["xpol"])
        else:
            a("v_lshrrev_b32 v3, 6, v0")
        a("v_and_b32 v1, 63, v0\ns_and_b32 s%d, s2, 7" % sX)
        a("v_readfirstlane_b32 s3, v3")
        a("s_lshr_b32 s%d, s%d, 3" % (sKS, sS))
        self.desc("x")
        a("v_bfe_u32 v5, v1, 3, 1\nv_and_b32 v6, 0x30, v1\nv_and_b32 v7, 7, v1")
        a("s_and_b32 s%d, s3, 3" % sW)
        a("v_lshlrev_b32 v10, 11, v5\nv_lshl_add_u32 v10, v6, 1, v10")
        a("v_or_b32 v6, v6, v5\nv_lshlrev_b32 v7, 4, v7")
        a("s_lshl_b32 s%d, s%d, 2\ns_add_u32 s%d, s%d, s%d" % (sB, sKS, sB, sB, sW))
        a("s_lshl_b32 s%d, s%d, 7" % (sA, sB))
        a("s_getreg_b32 s%d, hwreg(HW_REG_XCC_ID, 0, 4)" % sL)
        a("s_cmp_ge_u32 s3, 4\ns_cbranch_scc1 L_F")

    def die_read(self, v):
        self.a("s_lshl_b32 s%d, s%d, 7\ns_add_u32 s%d, s%d, 0x%x\nv_and_b32 v%d, 31, v1\nv_lshlrev_b32 v%d, 2, v%d" % (sA, sX, sA, sA, DX, v, v, v))
        self.a("buffer_load_dword v%d, v%d, %s, s%d offen %s" % (v, v, srd("ws"), sA, self.o["dpol"]))

    def die_test(self, v):
        self.a("s_xor_b32 s%d, s%d, s%d\nv_cmp_ne_u32 vcc, s%d, v%d\ns_mov_b32 s%d, vcc_lo" % (sL, sL, sT, sL, v, sL))
        if not self.o["loc"]:
            self.a("s_mov_b32 s%d, 1" % sL)

    def q_block(self, d, t):
        self.a("s_and_b32 s%d, s%d, 7\ns_lshl3_add_u32 s%d, s%d, s%d\ns_xor_b32 s%d, s%d, 2" % (t, sS, d, sX, t, d, d))

    def gu_tile(self):
        a = self.a
        a("s_and_b32 s%d, s%d, 7\ns_add_u32 s%d, s%d, 3\ns_and_b32 s%d, s%d, 7\ns_min_u32 s%d, s%d, 6" % (sC, sS, sE, sX, sE, sE, sE, sE))
        a("s_add_u32 s%d, s%d, 2\ns_lshr_b32 s%d, s%d, 2\ns_sub_u32 s%d, s%d, s%d" % (sG, sC, sG, sG, sG, sC, sG))
        a("s_cmp_ge_u32 s%d, s%d\ns_addc_u32 s%d, s%d, 0" % (sG, sE, sG, sG))
        a("s_and_b32 s%d, s%d, 3\ns_cmp_eq_u32 s%d, 1\ns_cselect_b32 s%d, s%d, s%d\ns_cselect_b32 s%d, 8, 0" % (sD, sS, sD, sG, sE, sG, sE))
        a("s_mul_i32 s%d, s%d, 7\ns_add_u32 s%d, s%d, s%d" % (sD, sX, sG, sG, sD))
        a("s_cmp_eq_u32 s%d, 5\ns_cselect_b32 s%d, 0x%x, 0" % (sC, sH, OOB))
        a("s_cmp_eq_u32 s%d, 1\ns_cselect_b32 s%d, 0x%x, 0" % (sC, sOK, OOB))

    def publish(self, lbl, data, voff, soff, far=sL):
        st = "buffer_store_dwordx4 %s, v%d, %s, s%d offen" % (vr(data), voff, srd("ws"), soff)
        if far is None:
            return self.a(st + " sc1")
        self.a("s_cmp_eq_u32 s%d, 0\ns_cbranch_scc1 %s_near\n%s sc1\ns_branch %s_out\n%s_near:\n%s\n%s_out:" % (far, lbl, st, lbl, lbl, st + " " + self.o["npol"], lbl))

    def a_waves(self):
        a, o = self.a, self.o
        W, pol = o["wa"], o["pol"]
        WQ, KD, VD, VT, PV, QG, QB, SD = 48, 80, 112, 144, 176, 208, 224, 232
        kil = min(o["kil"], 1)
        HI = 0x80000 if kil else 0x1000
        self.ptr("k"); self.ptr("v")
        self.desc("wq")
        L = o["wil"]
        if L:
            a("v_lshrrev_b32 v3, %d, v6\nv_or_b32 v6, v3, v5" % L)
        a("v_lshl_add_u32 v11, v6, 13, v7")
        self.q_block(sC, sD)
        a("s_lshl_b32 s%d, s%d, 7\ns_lshl_b32 s%d, s%d, %d\ns_add_u32 s%d, s%d, s%d" % (sC, sC, sB, sB, 19 - L, sB, sB, sC))
        a("s_waitcnt lgkmcnt(0)")
        vm = VM(a)
        if o["tearly"]:
            a("s_load_dword s%d, s[%d:%d], 0" % (sT, SRD["ws"], SRD["ws"] + 1))
        self.load(16, 10, "x", "s%d" % sA, 0, o["xpol"])
        self.load(20, 10, "x", "s%d" % sA, 16, o["xpol"])
        vm.note("x0"); vm.note("x1")

        def q_loads(v, p=o["gpol0"], lbl="L_q0"):
            if o["qloc"]:
                a("s_lshr_b32 s%d, s%d, 1\ns_xor_b32 s%d, s%d, s%d\ns_bitcmp1_b32 s%d, 0\ns_cbranch_scc1 %s_far" % (sA, sW, sA, sA, sX, sA, lbl))
                for ks in range(4):
                    self.load(QG + 4 * ks, v, "ws", "s%d" % sF, ks * 1024, o["lpol"])
                a("s_branch %s_out\n%s_far:" % (lbl, lbl))
            for ks in range(4):
                self.load(QG + 4 * ks, v, "ws", "s%d" % sF, ks * 1024, p)
            a("%s_out:" % lbl)

        def issue(i):
            if i < 8:
                self.load(WQ + 4 * i, 11, "wq", "s%d" % sB, 0, pol)
                if i < 7:
                    a("s_add_u32 s%d, s%d, 0x%x" % (sB, sB, 8192 * (krow(i + 1, L) - krow(i, L))))
            elif i < 16:
                oc, hh = (i - 8) >> 1, (i - 8) & 1
                a("s_xor_b32 s%d, s%d, 0x%x" % (sC, sD, (oc >> 1) * HI + (oc & 1) * 512 + hh * 128))
                self.load(KD + 4 * (i - 8), 12, "k", "s%d" % sC, 0, pol)
            else:
                a("s_xor_b32 s%d, s%d, 0x%x" % (sC, sE, (i & 3) * 1024 + ((i - 16) >> 2) * HI))
                self.load(VD + 4 * (i - 16), 10, "v", "s%d" % sC, 0, pol)
            vm.note(i)
            if i == 16 + o["qpos"]:
                self.die_read(25)
            if i == 16 + o["qpos"] and "q" not in o["cut"]:
                q_loads(13)
                for ks in range(4):
                    vm.note("q%d" % ks)

        W0 = o["wa0"]
        assert W0 <= 8
        for i in range(W0):
            issue(i)
        if o["diag"]:
            a("s_mov_b64 s[%d:%d], s[%d:%d]" % (sST + 2, sST + 3, sST, sST + 1))
        else:
            self.stamp(1)
        if not o["tearly"]:
            a("s_load_dword s%d, s[%d:%d], 0" % (sT, SRD["ws"], SRD["ws"] + 1))
        self.desc("k"); self.desc("v"); self.desc("ws")
        a("s_and_b32 s%d, s%d, 1\ns_lshr_b32 s%d, s%d, 1\ns_lshl2_add_u32 s%d, s%d, s%d" % (sU, sX, sD, sX, sU, sU, sD))
        if not o["umap"]:
            a("s_mov_b32 s%d, s%d" % (sU, sX))
        a("s_lshl_b32 s%d, s%d, 23\ns_lshl_b32 s%d, s%d, %d\ns_add_u32 s%d, s%d, s%d" % (sD, sU, sE, sS, 15 - kil, sD, sD, sE))
        a("s_lshl_b32 s%d, s%d, %d\ns_add_u32 s%d, s%d, s%d\ns_add_u32 s%d, s%d, 0x%x" % (sE, sW, 13 - kil, sD, sD, sE, sD, sD, KVBASE))
        a("s_lshl2_add_u32 s%d, s%d, s%d" % (sA, sS, sW))
        if o["stx"]:
            a("s_add_u32 s%d, s%d, s%d" % (sA, sA, sX))
        a("s_mov_b32 s%d, 0" % sR)
        for c, bits in zip(o["stag"], (HI, 0x880, 0x600)):
            if c != "-":
                a("s_bitcmp1_b32 s%d, %s\ns_cselect_b32 s%d, 0x%x, 0\ns_or_b32 s%d, s%d, s%d" % (sA, c, sE, bits, sR, sR, sE))
        a("s_and_b32 s%d, s%d, 0x%x\ns_or_b32 s%d, s%d, s%d" % (sE, sR, HI + 0xc00, sE, sE, sD))
        a("s_and_b32 s%d, s%d, 0x%x\ns_or_b32 s%d, s%d, s%d" % (sA, sR, HI + 0x280, sD, sD, sA))
        a("v_and_b32 v3, 3, v1\nv_bfe_u32 v4, v1, 2, 1\nv_lshl_add_u32 v3, v3, 2, v4")
        a("v_lshrrev_b32 v4, 3, v1\nv_lshlrev_b32 v4, 4, v4\nv_lshl_add_u32 v12, v3, 8, v4")
        a("s_and_b32 s%d, s%d, 0xc00\nv_xor_b32 v12, s%d, v12" % (sA, sR, sA))
        a("v_lshlrev_b32 v13, 4, v1\ns_and_b32 s%d, s%d, 0x200\nv_xor_b32 v10, s%d, v13" % (sA, sR, sA))
        a("v_mov_b32 v2, 0xff\nv_mov_b32 v8, 1\nv_mov_b32 v9, 0\ns_mov_b32 s%d, %d" % (sCNT, o["spin"]))
        self.sel_x()
        a("s_lshl_b32 s%d, s%d, 3\ns_lshr_b32 s%d, s%d, 2\ns_add_u32 s%d, s%d, s%d" % (sRB, sX, sA, sS, sRB, sRB, sA))
        a("s_lshl_b32 s%d, s%d, 10\nv_add_u32 v5, s%d, v13" % (sA, sW, sA))
        a("s_lshl_b32 s%d, s%d, 14\ns_lshl_b32 s%d, s%d, 12\ns_add_u32 s%d, s%d, s%d\ns_add_u32 s%d, s%d, 0x%x" % (
            sF, sU, sA, sW, sF, sF, sA, sF, sF, QX))
        a("s_lshl2_add_u32 s%d, s%d, s%d" % (sA, sU, sW))
        self.spread(sF, sA, min(o["qch"], 16), sA)
        if o["qch"] == 32:
            a("s_lshr_b32 s%d, s%d, 2\ns_lshl_b32 s%d, s%d, %d\ns_add_u32 s%d, s%d, s%d" % (sA, sU, sA, sA, o["sh"] + 4, sF, sF, sA))
        a("s_mov_b32 s%d, 0x05040100\ns_mov_b32 s%d, 0x07060302" % (sG, sH))
        vm.wait("x1")
        a("ds_write_b128 v5, v[16:19] offset:%d\nds_write_b128 v5, v[20:23] offset:%d" % (XS, XS + 4096))
        self.x_operands()
        if o["wd"]:
            a("s_and_b32 s%d, s%d, 7\ns_cmp_eq_u32 s%d, 1\ns_cselect_b64 vcc, -1, 0" % (sA, sS, sA))
        n = W0
        for i in range(24 - W):
            if i >= 8 and o["wd"]:
                vm.wait(i - o["wd"])
                a("s_cbranch_vccnz L_wd%d" % i)
                vm.wait(i)
                if o["wea"]:
                    a("s_cmp_ge_u32 s%d, 2\ns_cbranch_scc1 L_wd%d" % (sX, i))
                    vm.wait(i + 1)
                a("L_wd%d:" % i)
            elif i < 8 or n < i + 1 + W:
                vm.wait(i)
                if i in (0, 8, 10, 12, 15, 18):
                    self.stamp({0: 1, 8: 6, 10: 7, 12: 8, 15: 9, 18: 10}[i], True)
            while n < i + 1 + W:
                issue(n)
                n += 1
            if i < 8:
                self.mf16(40, 24 + 2 * i, WQ + 4 * i, i == 0)
                self.mf16(44, 24 + 2 * i, WQ + 4 * i + 2, i == 0)
            if i == 7:
                for r in range(4):
                    a("v_permlane16_swap_b32 v%d, v%d" % (40 + r, 44 + r))
                for r in range(4):
                    self.dpp("v_add_f32", 40 + r, 44 + r, 40 + r, "row_ror:8")
                a("ds_write_b128 v5, v[40:43] offset:%d" % RQ)
                a("s_waitcnt lgkmcnt(0)\ns_barrier")
                self.stamp(2)
                self.tags()
        a("s_barrier")
        if o["prio"]:
            a("s_setprio %d" % o["prio"])
        self.stamp(3)
        a("v_lshrrev_b32 v3, 5, v1\ns_lshl_b32 s%d, s%d, 1\nv_add_u32 v3, s%d, v3" % (sA, sW, sA))
        a("v_and_b32 v4, 31, v1\nv_mul_u32_u24 v16, 272, v3\nv_lshl_add_u32 v16, v4, 3, v16")
        a("v_mul_u32_u24 v20, 528, v3\nv_lshl_add_u32 v20, v4, 4, v20\nv_lshlrev_b32 v21, 5, v3")
        a("v_lshrrev_b32 v4, 3, v4\nv_lshl_add_u32 v23, v3, 2, v4\nv_lshl_add_u32 v23, v23, 12, v7")
        a("v_and_b32 v3, 7, v1\nv_lshrrev_b32 v4, 3, v1\nv_mul_u32_u24 v17, 272, v3\nv_lshl_add_u32 v17, v4, 4, v17")
        a("v_mul_u32_u24 v18, 528, v3\nv_and_b32 v5, 0x30, v1\ns_mul_i32 s%d, s%d, 4224\nv_add3_u32 v18, v18, v5, s%d" % (sA, sW, sA))
        a("s_lshl_b32 s%d, s%d, 3\nv_lshlrev_b32 v19, 5, v3\nv_add_u32 v19, s%d, v19" % (sA, sW, sA))
        a("v_mov_b32 v22, s%d" % sW)
        a("s_andn2_b32 s%d, 0x80, s%d\nv_add_u32 v24, s%d, v17\ns_and_b32 s%d, s%d, 0x80\nv_add_u32 v17, s%d, v17" % (sA, sR, sA, sA, sR, sA))
        def transpose(j):
            vm.wait(16 + 2 * j + 1)
            for e in range(8):
                a("v_perm_b32 v%d, v%d, v%d, s%d" % (VT + 4 * e + j, VD + 8 * j + 4 + (e >> 1), VD + 8 * j + (e >> 1), sH if e & 1 else sG))
        early = (o["qpos"] + 1) // 2
        for j in range(early):
            transpose(j)
        vm.wait("die" if "q" in o["cut"] else "q3")
        self.die_test(25)
        if o["diag"]:
            a("s_cmp_lg_u32 s%d, 0\ns_cselect_b32 s%d, 1600, 0\ns_add_u32 s%d, s%d, s%d" % (sL, sA, sST + 2, sST + 2, sA))
        a("L_qchk:")
        self.untag(QG, 4, 3)
        a("s_branch L_qok" if o["cut"] else "s_cbranch_vccz L_qok")
        self.narrow()
        self.guard()
        q_loads(13, o["gpol"], "L_q1")
        self.count(1)
        a("s_waitcnt vmcnt(0)\ns_branch L_qchk\nL_qok:")
        self.widen()
        self.stamp(4)
        if o["twice"]:
            a("s_mov_b32 s97, 0\nL_twice:")
        self.sum4(QG)
        a("v_cvt_pk_bf16_f32 v4, v%d, v%d\nv_cvt_pk_bf16_f32 v5, v%d, v%d" % (QG, QG + 1, QG + 2, QG + 3))
        a("ds_write_b64 v16, v[4:5] offset:%d\nds_write_b8 v22, v8 offset:%d" % (QI, F_Q))
        a("s_mov_b32 s%d, 0x01010101" % sA)
        a("L_qi:")
        self.guard()
        a("ds_read_b32 v3, v9 offset:%d" % F_Q)
        a("ds_read_b128 %s, v17 offset:%d\nds_read_b128 %s, v24 offset:%d" % (vr(QB), QI, vr(QB + 4), QI))
        a("s_waitcnt lgkmcnt(0)\nv_cmp_ne_u32 vcc, s%d, v3\ns_cbranch_vccnz L_qi" % sA)
        for hh in range(2):
            for oc in range(4):
                self.mf32(SD + 4 * oc, KD + 8 * oc + 4 * hh, QB + 4 * hh, hh == 0)
        for p in range(2):
            for r in range(4):
                a("v_permlane32_swap_b32 v%d, v%d" % (SD + 8 * p + r, SD + 8 * p + 4 + r))
        for r in range(4):
            self.dpp("v_add_f32", 28 + r, SD + 4 + r, SD + r, "row_ror:8", 0x3)
        for r in range(4):
            self.dpp("v_add_f32", 28 + r, SD + 8 + r, SD + 12 + r, "row_ror:8", 0xc)
        for r in range(4):
            self.rnd(28 + r, 28 + r)
        for r in range(4):
            a("v_mul_f32 v%d, 0x%x, v%d" % (28 + r, SCALE, 28 + r))
        for r in range(4):
            self.rnd(28 + r, 28 + r)
        a("v_max3_f32 v32, v28, v29, v30\nv_max_f32 v32, v32, v31")
        self.dpp("v_max_f32", 32, 32, 32, "row_ror:8")
        self.rows_allreduce("v_max_f32", 32, 3)
        a("s_mov_b32 s%d, 0x%x" % (sB, LOG2E))
        for r in range(4):
            a("v_sub_f32 v%d, v%d, v32" % (28 + r, 28 + r))
        for r in range(4):
            a("v_mul_f32 v%d, s%d, v%d" % (28 + r, sB, 28 + r))
        for r in range(4):
            a("v_exp_f32 v%d, v%d" % (28 + r, 28 + r))
        a("v_cvt_pk_bf16_f32 v36, v28, v29\nv_cvt_pk_bf16_f32 v37, v30, v31")
        a("v_add_f32 v33, v28, v29\nv_add_f32 v30, v30, v31")
        self.dpp("v_mov_b32", 38, 36, None, "row_ror:8")
        self.dpp("v_mov_b32", 39, 37, None, "row_ror:8")
        a("v_add_f32 v33, v33, v30")
        self.dpp("v_add_f32", 33, 33, 33, "row_ror:8")
        self.rows_allreduce("v_add_f32", 33, 3)
        for j in range(early, 4):
            transpose(j)
        for e in range(8):
            self.mf32(PV + 4 * e, VT + 4 * e, 36, True)
        a("s_mov_b32 exec_lo, 0x00ff00ff\ns_mov_b32 exec_hi, 0x00ff00ff")
        for e in range(8):
            a("ds_write_b128 v18, %s offset:%d" % (vr(PV + 4 * e), OL + 64 * e))
        a("ds_write_b64 v19, v[32:33] offset:%d" % MLL)
        a("ds_write_b8 v22, v8 offset:%d" % F_O)
        a("s_mov_b64 exec, -1")
        a("s_lshl_b32 s%d, s%d, 17\ns_lshl_b32 s%d, s%d, 7\ns_add_u32 s%d, s%d, 0x%x\ns_add_u32 s%d, s%d, s%d" % (sG, sX, sD, sS, sG, sG, OX, sC, sG, sD))
        a("s_mov_b32 s%d, 0x07060501\ns_mov_b32 s%d, 0x07060502\ns_mov_b32 s%d, 0x07060503" % (sD, sE, sF))
        a("L_ox:")
        self.guard()
        a("ds_read_b32 v3, v9 offset:%d" % F_O)
        a("ds_read_b128 v[28:31], v21 offset:%d\nds_read_b128 v[32:35], v21 offset:%d" % (MLL, MLL + 16))
        for k in range(4):
            a("ds_read_b128 %s, v20 offset:%d" % (vr(QG + 4 * k), OL + 4224 * k))
        a("s_waitcnt lgkmcnt(0)\nv_cmp_ne_u32 vcc, s%d, v3\ns_cbranch_vccnz L_ox" % sA)
        a("v_max3_f32 v36, v28, v30, v32\nv_max_f32 v36, v36, v34")
        for k in range(4):
            a("v_sub_f32 v%d, v%d, v36" % (28 + 2 * k, 28 + 2 * k))
        for k in range(4):
            a("v_mul_f32 v%d, s%d, v%d" % (28 + 2 * k, sB, 28 + 2 * k))
        for k in range(4):
            a("v_exp_f32 v%d, v%d" % (28 + 2 * k, 28 + 2 * k))
        a("v_mul_f32 v37, v28, v29")
        for k in range(1, 4):
            a("v_fmac_f32 v37, v%d, v%d" % (28 + 2 * k, 29 + 2 * k))
        a("v_log_f32 v38, v37\nv_rcp_f32 v37, v37")
        for r in range(4):
            a("v_mul_f32 v%d, v28, v%d" % (QG + r, QG + r))
        a("v_fmac_f32 v38, s%d, v36" % sB)
        for k in range(1, 4):
            for r in range(4):
                a("v_fmac_f32 v%d, v%d, v%d" % (QG + r, 28 + 2 * k, QG + 4 * k + r))
        for r in range(4):
            a("v_mul_f32 v%d, v37, v%d" % (QG + r, QG + r))
        a("v_bfi_b32 v%d, v2, s%d, v%d" % (QG, sT0, QG))
        for r in range(1, 4):
            a("v_perm_b32 v%d, v%d, v38, s%d" % (QG + r, QG + r, sD + r - 1))
        if "O" not in o["cut"]:
            self.publish("L_po", QG, 23, sC)
        if o["twice"]:
            a("s_cmp_lg_u32 s97, 0\ns_cbranch_scc1 L_tw2\ns_mov_b32 s97, 1")
            self.stamp(5)
            a("s_branch L_twice\nL_tw2:")
            self.stamp(10)
        else:
            self.stamp(5)
        self.ack(10)
        a("s_cmp_ge_u32 s%d, 2\ns_cbranch_scc1 L_H\ns_cmp_eq_u32 s%d, 1\ns_cbranch_scc1 L_HP" % (sW, sW))
        a("s_lshl_b32 s%d, s%d, 12\ns_add_u32 s%d, s%d, s%d\ns_mov_b32 s%d, 0x0c04000c" % (sC, sS, sC, sC, sG, sE))
        a("s_and_b32 s%d, s%d, 3\ns_lshl_b32 s%d, s%d, 5\ns_add_u32 s%d, s%d, s%d" % (sD, sU, sD, sD, sD, sD, sS))
        a("s_lshr_b32 s%d, s%d, 2\ns_lshl1_add_u32 s%d, s%d, s%d\ns_lshl_b32 s%d, s%d, 7\ns_add_u32 s%d, s%d, 0x%x" % (sA, sU, sD, sD, sA, sD, sD, sD, sD, O2))
        if o["cown"]:
            a("v_mov_b32 v3, s%d\nds_write_b32 v9, v3 offset:%d" % (sL, F_L))
            a("s_lshl_b32 s%d, s%d, 10" % (sF, sS))
        else:
            a("s_lshr_b32 s%d, s%d, 4\ns_xor_b32 s%d, s%d, s%d\ns_or_b32 s%d, s%d, s%d" % (sB, sS, sA, sA, sB, sL, sL, sA) if o["o2loc"] else "s_mov_b32 s%d, 1" % sL)
            a("s_lshl_b32 s%d, s%d, 9" % (sF, sRB))
        a("s_add_u32 s%d, s%d, 0x%x\ns_and_b32 s%d, s%d, 0xffff\ns_mov_b32 s%d, 0xffff" % (sF, sF, O2, sG, sT, sH))
        a("s_lshr_b32 s%d, s%d, 9" % (sA, sD))
        self.spread(sD, sA, o["och"], sA)
        self.spread(sF, sRB, o["och"], sA)
        a("v_and_b32 v3, 15, v1\nv_lshrrev_b32 v4, 4, v1\nv_lshlrev_b32 v27, 1, v3\nv_lshl_add_u32 v27, v4, 7, v27\nv_mov_b32 v26, 0x101")
        if o["osrc"] == "x":
            a("s_mov_b32 s%d, 0" % sC)
        self.flag_wait("L_to", 9, F_T)
        self.stamp(6)
        def o_loads(p):
            self.count(32)
            for m in range(0 if "o" in o["cut"] else 4):
                self.load(WQ + 4 * m, 13, o["osrc"][:1] or "ws", "s%d" % sC, m * 1024, p)
        if o["opol"] != o["lpol"]:
            o_loads(o["opol"])
            a("s_branch L_ogc")
        a("L_og:")
        self.guard()
        o_loads(o["lpol"])
        a("L_ogc:")
        a("s_waitcnt vmcnt(0)")
        for m in range(4):
            d = WQ + 4 * m
            a("v_xor_b32 v%d, s%d, v%d\nv_perm_b32 v%d, v%d, v%d, s%d" % (d, sT0, d, 28 + m, d + 2, d + 1, sE))
            a("v_lshl_or_b32 v%d, v%d, 24, v%d" % (28 + m, d + 3, 28 + m))
        a("v_or3_b32 v3, v%d, v%d, v%d\nv_or_b32 v3, v3, v%d\nv_and_b32 v3, v2, v3\nv_cmp_ne_u32 vcc, 0, v3" % tuple(WQ + 4 * m for m in range(4)))
        a("v_max3_f32 v36, v28, v29, v30\nv_max_f32 v36, v36, v31")
        if not o["cut"]:
            self.again("L_og")
        self.dpp("v_max_f32", 36, 36, 36, "row_ror:8")
        self.rows_allreduce("v_max_f32", 36, 3)
        for m in range(4):
            a("v_sub_f32 v%d, v%d, v36" % (28 + m, 28 + m))
        for m in range(4):
            a("v_exp_f32 v%d, v%d" % (28 + m, 28 + m))
        for r in range(4):
            a("v_mul_f32 v%d, v28, v%d" % (40 + r, WQ + r))
        a("v_add_f32 v36, v28, v29\nv_add_f32 v37, v30, v31")
        for m in range(1, 4):
            for r in range(4):
                a("v_fmac_f32 v%d, v%d, v%d" % (40 + r, 28 + m, WQ + 4 * m + r))
            if m == 1:
                a("v_add_f32 v36, v36, v37")
            if m == 2:
                self.dpp("v_add_f32", 36, 36, 36, "row_ror:8")
        self.rows_allreduce("v_add_f32", 36, 3)
        a("v_rcp_f32 v36, v36")
        self.rows_scatter_sum([40])
        self.dpp("v_add_f32", 40, 40, 40, "row_ror:8")
        a("v_mul_f32 v40, v36, v40")
        self.rnd(40, 40)
        a("v_or_b32 v40, s%d, v40\nv_mov_b32 v41, v40\nv_permlane16_swap_b32 v40, v41" % sG)
        a("v_mov_b32 v42, v40\nv_mov_b32 v43, v41\nv_permlane32_swap_b32 v40, v42\nv_permlane32_swap_b32 v41, v43")
        a("s_mov_b64 exec, 0xff")
        if "2" not in o["cut"]:
            self.publish("L_p2", 40, 13, sD, None if o["cown"] else sL)
        self.stamp(8)
        a("s_mov_b64 exec, -1" if o["cown"] else "s_mov_b32 exec_lo, -1\ns_and_b32 s%d, s%d, 1\ns_lshl_b32 s%d, s%d, 3\ns_lshr_b32 s%d, 0xff00ff00, s%d" % (sE, sX, sE, sE, sE, sE))
        if o["lag"] & 2:
            a("s_waitcnt vmcnt(0)")
        if o["t2"]:
            self.flag_wait("L_t2", 9, F_T + 4)
        self.stamp(9)
        a("L_o2:")
        self.guard()
        self.count(32 * 8)
        if "2" not in o["cut"] and o["o2loc"] and not o["cown"]:
            a("s_mov_b32 exec_lo, s%d" % sE)
            self.load(44, 13, "ws", "s%d" % sF, 0, o["rpol"])
            a("s_not_b32 exec_lo, s%d" % sE)
            self.load(44, 13, "ws", "s%d" % sF, 0, o["lpol"])
            a("s_mov_b32 exec_lo, -1")
        elif "2" not in o["cut"]:
            self.load(44, 13, "ws", "s%d" % sF, 0, o["rpol"])
        a("s_waitcnt vmcnt(0)")
        for r in range(4):
            a("v_xor_b32 v%d, s%d, v%d" % (44 + r, sG, 44 + r))
        a("v_or3_b32 v3, v44, v45, v46\nv_or_b32 v3, v3, v47\nv_and_b32 v3, s%d, v3\nv_cmp_ne_u32 vcc, 0, v3" % sH)
        if not o["cut"]:
            a("s_cbranch_vccnz L_o2")
        for r in range(4):
            a("ds_write_b16_d16_hi v27, v%d offset:%d" % (44 + r, IM + 32 * r))
        a("ds_write_b16 v9, v26 offset:%d" % F_IM)
        self.writeback("O")
        self.stamp(7)
        self.finish()
        a("L_HP:")
        def fpre():
            a("s_lshl_b32 s%d, s%d, 16\ns_lshl_b32 s%d, s%d, 11\ns_add_u32 s%d, s%d, s%d\ns_add_u32 s%d, s%d, 0x%x" % (sA, sX, sC, sS, sA, sA, sC, sA, sA, FX))
            for m in range(2):
                self.load(VT + 4 * m, 13, "ws", "s%d" % sA, 1024 * m, o["fppol"])
        if o["fpre"] == "a":
            fpre()
        self.gu_tile()
        a("s_lshl_b32 s%d, s%d, 9\ns_mul_i32 s%d, s%d, 57344\ns_add_u32 s%d, s%d, s%d\ns_add_u32 s%d, s%d, 0x%x" % (
            sG, sG, sC, sKS, sG, sG, sC, sG, sG, HX))
        a("v_mov_b32 v5, s%d\nv_mov_b32 v6, s%d\nv_cmp_gt_u32 vcc, 32, v1\nv_lshrrev_b32 v4, 5, v1\nv_cndmask_b32 v5, v6, v5, vcc" % (sH, sOK))
        a("v_mul_u32_u24 v26, %d, v4\nv_add3_u32 v26, v26, v13, v5" % (28672 - 512))
        a("v_and_b32 v6, 1, v1\nv_lshlrev_b32 v27, 3, v6\nv_lshl_add_u32 v27, v4, 7, v27\nv_bfe_u32 v5, v1, 1, 1\nv_lshl_add_u32 v27, v5, 8, v27")
        a("v_bfe_u32 v5, v1, 2, 3\nv_lshl_add_u32 v27, v5, 4, v27\ns_mov_b32 s%d, 0x01010101" % sA)
        a("L_hp:")
        self.guard()
        a("ds_read_b32 v3, v9 offset:%d" % C_H)
        for k in range(4):
            a("ds_read2st64_b64 %s, v27 offset0:%d offset1:%d" % (vr(WQ + 4 * k), RH // 512 + 2 * k, RH // 512 + 2 * k + 1))
        a("s_waitcnt lgkmcnt(0)\nv_cmp_ne_u32 vcc, s%d, v3\ns_cbranch_vccnz L_hp" % sA)
        self.sum4(WQ)
        self.tag4(WQ, [WQ, WQ + 1, WQ + 2, WQ + 3])
        if "H" not in o["cut"]:
            self.publish("L_ph", WQ, 26, sG, None if o["cown"] else sL)
        if o["fpre"] == "b":
            fpre()
        self.stamp(7)
        self.finish()
        a("L_H:")
        if o["cown"]:
            return self.h_gather()
        a("s_lshl_b32 s%d, s%d, 1\ns_add_u32 s%d, s%d, s%d\ns_mul_i32 s%d, s%d, 224" % (sF, sRB, sF, sF, sW, sF, sF))
        a("s_add_u32 s%d, s%d, 0x%x\ns_add_u32 s%d, s%d, 28672" % (sF, sF, HX - 448, sG, sF))
        a("v_and_b32 v3, 15, v1\nv_min_u32 v3, 13, v3\nv_lshrrev_b32 v5, 4, v1")
        a("v_mul_u32_u24 v26, 57344, v5\nv_lshl_add_u32 v26, v3, 4, v26")
        a("v_and_b32 v4, 1, v3\nv_and_b32 v6, 1, v5\nv_lshl_add_u32 v4, v4, 1, v6\nv_and_b32 v3, 14, v3")
        a("v_lshl_add_u32 v27, v4, 5, v3\nv_lshrrev_b32 v5, 1, v5\nv_lshl_add_u32 v27, v5, 4, v27")
        a("s_lshl_b32 s%d, s%d, 7\nv_add_u32 v27, s%d, v27" % (sA, sW, sA))
        self.flag_wait("L_th", 22, F_T)
        self.stamp(6)
        def h_loads(p):
            self.count(1024)
            if "h" not in o["cut"]:
                self.load(QB, 26, "ws", "s%d" % sF, 0, p)
                self.load(QB + 4, 26, "ws", "s%d" % sG, 0, p)
        if o["hpol"] != o["lpol"]:
            h_loads(o["hpol"])
            a("s_branch L_hgc")
        a("L_hg:")
        self.guard()
        h_loads(o["lpol"])
        a("L_hgc:")
        a("s_waitcnt vmcnt(0)")
        self.untag(QB, 2, 3)
        if not o["cut"]:
            self.again("L_hg")
        self.rows_scatter_sum([QB, QB + 4])
        self.rnd(4, QB)
        self.rnd(5, QB + 4)
        self.sigmoid(4, 4)
        a("v_mul_f32 v4, v4, v5")
        self.rnd(4, 4)
        a("ds_write_b16_d16_hi v27, v4 offset:%d\nds_write_b8 v22, v8 offset:%d" % (IM, F_IM))
        self.stamp(7)
        self.finish()

    def h_gather(self):
        a, o = self.a, self.o
        G, U = 48, 56
        a("s_lshl1_add_u32 s%d, s%d, s%d\ns_mul_i32 s%d, s%d, 448\ns_add_u32 s%d, s%d, 0x%x" % (sC, sS, sW, sC, sC, sC, sC, HX - 896))
        a("s_add_u32 s%d, s%d, %d\ns_add_u32 s%d, s%d, %d\ns_add_u32 s%d, s%d, %d" % (sD, sC, 2 * 57344, sE, sC, 28672, sF, sD, 28672))
        a("v_and_b32 v3, 31, v1\nv_min_u32 v3, 27, v3\nv_lshrrev_b32 v5, 5, v1")
        a("v_mul_u32_u24 v26, 57344, v5\nv_lshl_add_u32 v26, v3, 4, v26")
        a("v_cmp_lt_u32 vcc, 13, v3\nv_add_u32 v4, %d, v3\nv_cndmask_b32 v4, v3, v4, vcc" % (128 - 14))
        a("v_and_b32 v3, 1, v3\nv_and_b32 v4, -2, v4\nv_lshl_add_u32 v27, v3, 6, v4\nv_lshl_add_u32 v27, v5, 4, v27")
        a("s_lshl_b32 s%d, s%d, 8\nv_add_u32 v27, s%d, v27" % (sA, sW, sA))
        self.flag_wait("L_th", 22, F_T)
        self.stamp(6)
        a("L_hg:")
        self.guard()
        self.count(1024)
        if "h" not in o["cut"]:
            for m in range(0, 4, 1 + o["hcut"]):
                self.load(G + 4 * m, 26, "ws", "s%d" % (sC + m), 0, o["hpol2"])
        a("s_waitcnt vmcnt(0)")
        self.untag(G, 4, 3)
        if not o["cut"]:
            self.again("L_hg")
        for b in (G, U):
            a("v_pk_add_f32 v[%d:%d], v[%d:%d], v[%d:%d]" % (b, b + 1, b, b + 1, b + 4, b + 5))
            a("v_pk_add_f32 v[%d:%d], v[%d:%d], v[%d:%d]" % (b + 2, b + 3, b + 2, b + 3, b + 6, b + 7))
        for b in (G, U):
            a("v_permlane32_swap_b32 v%d, v%d\nv_permlane32_swap_b32 v%d, v%d" % (b, b + 2, b + 1, b + 3))
        for b in (G, U):
            a("v_pk_add_f32 v[%d:%d], v[%d:%d], v[%d:%d]" % (b, b + 1, b, b + 1, b + 2, b + 3))
        for r in (G, G + 1, U, U + 1):
            self.rnd(r, r)
        for op in ("v_mul_f32 v%d, " + "0x%x" % (LOG2E ^ 0x80000000) + ", v%d", "v_exp_f32 v%d, v%d", "v_add_f32 v%d, 1.0, v%d", "v_rcp_f32 v%d, v%d",
                   "v_cvt_pk_bf16_f32 v%d, 0, v%d"):
            for r in (G, G + 1):
                a(op % (r, r))
        a("v_mul_f32 v%d, v%d, v%d\nv_mul_f32 v%d, v%d, v%d" % (G, G, U, G + 1, G + 1, U + 1))
        a("v_cvt_pk_bf16_f32 v4, v%d, v%d" % (G, G + 1))
        a("ds_write_b16 v27, v4 offset:%d\nds_write_b16_d16_hi v27, v4 offset:%d\nds_write_b8 v22, v8 offset:%d" % (IM, IM + 32, F_IM))
        self.stamp(7)
        self.finish()

    def preread(self):
        a, o = self.a, self.o
        if o["pre"]:
            a("s_lshl_b32 s%d, s%d, 5\ns_add_u32 s%d, s%d, s%d\nv_lshlrev_b32 v40, 4, v1" % (sU, sX, sU, sU, sS))
        if "o" in o["pre"]:
            a("s_lshl2_add_u32 s%d, s%d, s%d\ns_lshl_b32 s%d, s%d, 10\ns_add_u32 s%d, s%d, 0x%x" % (sR, sU, sW, sR, sR, sR, sR, OX))
            self.load(192, 40, "ws", "s%d" % sR, 0, o["ppol"])
        if "h" in o["pre"]:
            a("s_cmp_lg_u32 s%d, 1\ns_cbranch_scc1 L_npre" % sW)
            a("s_lshr_b32 s%d, s%d, 2\ns_mul_i32 s%d, s%d, 28672\ns_mul_i32 s%d, s%d, 3584\ns_add_u32 s%d, s%d, s%d" % (sR, sS, sR, sR, sU, sX, sR, sR, sU))
            a("s_and_b32 s%d, s%d, 3\ns_mul_i32 s%d, s%d, 896\ns_add_u32 s%d, s%d, s%d\ns_add_u32 s%d, s%d, 0x%x" % (sU, sS, sU, sU, sR, sR, sU, sR, sR, HX))
            a("s_mov_b32 exec_hi, 0xffffff")
            self.load(48, 40, "ws", "s%d" % sR, 0, o["ppol"])
            a("s_mov_b32 exec_hi, -1\nL_npre:")

    def writeback(self, at):
        if at in self.o["wb"]:
            self.a("s_cmp_lg_u32 s%d, %d\ns_cbranch_scc1 L_nwb%s\nbuffer_wbl2 sc1\nL_nwb%s:" % (sS, self.o["wbs"], at, at))

    def finish(self):
        self.a("s_waitcnt lgkmcnt(0)")
        self.a("s_branch L_end" if self.o["stamps"] or self.o["hold"] else "s_endpgm")

    def f_waves(self):
        a, o = self.a, self.o
        W, pol = o["wf"], o["pol"]
        SEL, GU, WO, WD, Y, AO, DA, DB, VG = 56, 64, 128, 160, 188, 192, 224, 228, 232
        a("L_F:")
        for n in ("gw", "wg", "wu", "wo", "wd", "out"):
            self.ptr(n)
        self.desc("gw")
        if o["pf"] == 1:
            a("s_getpc_b64 s[%d:%d]\nL_pc:" % (sP, sP + 1))
            a("s_sub_u32 s%d, s%d, L_pc-%s_kernel\ns_subb_u32 s%d, s%d, 0" % (sP, sP, NAME, sP + 1, sP + 1))
            a("s_lshl_b32 s%d, s%d, 9\nv_lshl_add_u32 v250, v7, 2, s%d\nv_min_u32 v250, L_exit-%s_kernel, v250" % (sC, sS, sC, NAME))
            a("v_mov_b32 v251, s%d\nv_add_co_u32 v250, vcc, s%d, v250\ns_nop 1\nv_addc_co_u32 v251, vcc, 0, v251, vcc" % (sP + 1, sP))
            a("s_cmp_lg_u32 s%d, 0\ns_cbranch_scc1 L_nopf\nglobal_load_dword v252, v[250:251], off\nL_nopf:" % sW)
        a("v_and_b32 v3, 31, v1\nv_lshlrev_b32 v253, 4, v3\nv_lshrrev_b32 v4, 5, v1\nv_lshl_add_u32 v254, v4, 11, v253")
        a("v_mov_b32 v8, 1\nv_mov_b32 v9, 0\nv_mov_b32 v2, 0xff")
        a("s_waitcnt lgkmcnt(0)")
        a("s_load_dword s%d, s[%d:%d], 0" % (sT, SRD["ws"], SRD["ws"] + 1))
        self.stamp(1)
        self.desc("ws")
        if o["prepos"] == 0:
            self.preread()
        for n in ("wg", "wu", "wo", "wd", "out"):
            self.desc(n)
        a("v_lshlrev_b32 v3, 2, v1\nv_and_b32 v3, 31, v3\nds_write_b32 v3, v9")
        a("s_mov_b32 s%d, %d" % (sCNT, o["spin"]))
        a("s_lshl_b32 s%d, s%d, 2\nv_lshlrev_b32 v234, 4, v4\nv_add_u32 v235, s%d, v234" % (sA, sW, sA))
        self.gu_tile()
        a("s_lshr_b32 s%d, s%d, 1\nv_mov_b32 v244, s%d\ns_add_u32 s%d, s%d, s%d\nv_mov_b32 v247, s%d" % (sC, sW, sC, sE, sE, sC, sE))
        L = o["gil"]
        if L:
            a("v_lshrrev_b32 v3, %d, v6\nv_or_b32 v6, v3, v5" % L)
        a("v_mul_u32_u24 v11, 7168, v6\nv_add_u32 v11, v11, v7")
        a("v_add_u32 v246, s%d, v11\nv_add_u32 v11, s%d, v11" % (sOK, sH))
        a("s_mul_i32 s%d, s%d, %d\ns_lshl_b32 s%d, s%d, 7\ns_add_u32 s%d, s%d, s%d" % (sB, sB, (64 >> L) * 7168, sC, sG, sB, sB, sC))
        self.q_block(sA, sC)
        a("s_lshr_b32 s%d, s%d, 2\ns_lshl_b32 s%d, s%d, 12\ns_and_b32 s%d, s%d, 3\ns_lshl_b32 s%d, s%d, 8" % (sF, sA, sF, sF, sA, sA, sA, sA))
        a("s_add_u32 s%d, s%d, s%d\ns_lshl_b32 s%d, s%d, 10\ns_add_u32 s%d, s%d, s%d\ns_add_u32 s%d, s%d, 0x%x" % (
            sF, sF, sA, sA, sKS, sF, sF, sA, sF, sF, QX))
        a("s_lshr_b32 s%d, s%d, 12" % (sA, sF))
        self.spread(sF, sA, min(o["qch"], 16), sA)
        a("s_lshl_b32 s%d, s%d, 3\ns_lshr_b32 s%d, s%d, 2\ns_add_u32 s%d, s%d, s%d" % (sRB, sX, sA, sS, sRB, sRB, sA))
        if o["colmap"]:
            a("s_and_b32 s%d, s%d, 3\ns_and_b32 s%d, s%d, 1" % (sH, sS, sOK, sW))
            a("s_lshl_b32 s%d, s%d, 1\ns_add_u32 s%d, s%d, s%d\ns_lshl_b32 s%d, s%d, 8" % (sC, sH, sC, sC, sOK, sC, sC))
        else:
            a("s_and_b32 s%d, s%d, 3\ns_xor_b32 s%d, s%d, 2\ns_and_b32 s%d, s%d, 1" % (sH, sS, sH, sH, sOK, sW))
            a("s_lshl_b32 s%d, s%d, 3\ns_add_u32 s%d, s%d, s%d\ns_lshl_b32 s%d, s%d, 7" % (sC, sOK, sC, sC, sH, sC, sC))
        a("s_lshl_b32 s%d, s%d, 1\ns_lshr_b32 s%d, s%d, 1\ns_add_u32 s%d, s%d, s%d" % (sE, sRB, sA, sW, sE, sE, sA))
        if o["cown"]:
            a("s_lshl2_add_u32 s%d, s%d, s%d" % (sE, sS, sW))
            if o["colmap"]:
                a("s_lshl_b32 s%d, s%d, 8" % (sC, sX))
            else:
                a("s_and_b32 s%d, s%d, 1\ns_lshr_b32 s%d, s%d, 1\ns_lshl3_add_u32 s%d, s%d, s%d\ns_lshl_b32 s%d, s%d, 7" % (sC, sX, sA, sX, sC, sC, sA, sC, sC))
        a("s_lshr_b32 s%d, s%d, 2\ns_lshl_b32 s%d, s%d, 18\ns_and_b32 s%d, s%d, 3\ns_lshl_b32 s%d, s%d, 12" % (sD, sE, sD, sD, sA, sE, sA, sA))
        a("s_add_u32 s%d, s%d, s%d\ns_add_u32 s%d, s%d, s%d" % (sD, sD, sA, sD, sD, sC))
        a("s_mul_i32 s%d, s%d, %d\ns_add_u32 s%d, s%d, s%d" % (sE, sE, 28 * 2048, sE, sE, sC))
        a("v_lshrrev_b32 v3, 4, v1\nv_lshl_add_u32 v6, v5, %d, v7" % (7 if o["colmap"] else 9))
        a("v_lshl_add_u32 v12, v3, 14, v6\nv_lshl_add_u32 v13, v3, 11, v6")
        if o["oil"]:
            a("s_lshr_b32 s%d, s%d, 2\ns_lshr_b32 s%d, s%d, 1\ns_lshl1_add_u32 s%d, s%d, s%d\ns_lshl_b32 s%d, s%d, 13" % (sD, sS, sA, sW, sD, sD, sA, sD, sD))
            a("s_add_u32 s%d, s%d, s%d\ns_mul_i32 s%d, s%d, %d\ns_add_u32 s%d, s%d, s%d" % (sD, sD, sC, sE, sX, 448 * 2048, sE, sE, sD))
            a("s_lshl_b32 s%d, s%d, 20\ns_add_u32 s%d, s%d, s%d\nv_mov_b32 v12, v13" % (sA, sX, sD, sD, sA))
        a("s_lshl_b32 s%d, s%d, 10\nv_lshlrev_b32 v236, 4, v1\nv_add_u32 v236, s%d, v236" % (sA, sW, sA))
        a("v_mov_b32 v240, s%d" % sW)
        a("v_and_b32 v5, 15, v1\nv_lshlrev_b32 v6, 4, v5\nv_lshl_add_u32 v239, v3, 16, v6")
        if o["qch"] == 32:
            a("v_lshl_add_u32 v239, v3, %d, v239" % (o["sh"] + 4))
        a("v_and_b32 v6, 1, v1\nv_lshl_add_u32 v237, v3, 1, v6\nv_lshlrev_b32 v237, 8, v237")
        a("v_lshrrev_b32 v5, 1, v5\nv_lshl_add_u32 v237, v5, 4, v237")
        a("v_lshlrev_b32 v255, 8, v6\nv_lshl_add_u32 v255, v4, 9, v255\nv_bfe_u32 v5, v1, 1, 4\nv_lshl_add_u32 v255, v5, 4, v255")
        own, fq = o["cown"], o["fq"] if o["cown"] else 2
        if not own:
            a("s_lshl_b32 s%d, s%d, 10\nv_add_u32 v255, s%d, v255" % (sA, sOK, sA))
        a("v_lshrrev_b32 v4, %d, v1\nv_and_b32 v5, %d, v1\nv_lshlrev_b32 v241, 4, v5\nv_lshl_add_u32 v241, v4, %d, v241" % (fq, (1 << fq) - 1, 9 + fq if own else 12))
        a("v_lshrrev_b32 v4, 3, v1\nv_lshlrev_b32 v243, 7, v%d\nv_lshl_add_u32 v243, v4, 4, v243" % (240 if own else 244))
        a("v_lshlrev_b32 v242, 4, v1\nv_lshlrev_b32 v245, 3, v5\nv_lshl_add_u32 v245, v3, 1, v245")
        if own:
            nr = (1 << (fq - 1)) - 1
            a("s_lshl_b32 s%d, s%d, 15\ns_add_u32 s%d, s%d, 0x%x\ns_lshl_b32 s%d, s%d, %d\ns_add_u32 s%d, s%d, s%d" % (sA, sX, sA, sA, FX, sC, sS, 4 + fq, sP, sA, sC))
            a("s_andn2_b32 s%d, s%d, %d\ns_lshl_b32 s%d, s%d, 10\ns_add_u32 s%d, s%d, s%d" % (sC, sS, nr, sC, sC, sP + 1, sA, sC))
            a("s_and_b32 s%d, s%d, %d\ns_xor_b32 s%d, s%d, %d" % (sOK, sS, nr, sOK, sOK, o["fsel"] & nr))
        else:
            a("s_lshl_b32 s%d, s%d, 2\nv_mov_b32 v10, s%d" % (sA, sOK, sA))
            a("s_lshl_b32 s%d, s%d, 1\ns_add_u32 s%d, s%d, s%d\ns_lshl_b32 s%d, s%d, 16" % (sA, sH, sA, sA, sOK, sA, sA))
            a("s_lshl_b32 s%d, s%d, 6\ns_add_u32 s%d, s%d, s%d\ns_add_u32 s%d, s%d, 0x%x" % (sC, sRB, sA, sA, sC, sP, sA, FX))
            if o["floc"]:
                a("s_lshl1_add_u32 s%d, s%d, s%d\ns_lshl_b32 s%d, s%d, 6\ns_lshl_b32 s%d, s%d, 16\ns_add_u32 s%d, s%d, s%d\ns_add_u32 s%d, s%d, 0x%x" % (
                    sA, sS, sOK, sA, sA, sC, sX, sA, sA, sC, sP, sA, FX))
            a("s_and_b32 s%d, s%d, 1\ns_or_b32 s%d, s%d, s%d" % (sA, sS, sOK, sOK, sA))
            a("s_lshl_b32 s%d, s%d, 16\ns_lshl_b32 s%d, s%d, 11\ns_add_u32 s%d, s%d, s%d\ns_add_u32 s%d, s%d, 0x%x" % (sA, sX, sC, sS, sA, sA, sC, sP + 1, sA, FX))
        a("s_bfe_u32 s%d, s%d, 0x10003" % (sC, sS))
        if o["colmap"]:
            a("s_lshl_b32 s%d, s%d, 1\ns_add_u32 s%d, s%d, s%d" % (sA, sX, sA, sA, sC))
        else:
            a("s_lshl_b32 s%d, s%d, 2\ns_lshr_b32 s%d, s%d, 1\ns_add_u32 s%d, s%d, s%d" % (sC, sC, sA, sX, sA, sA, sC))
            a("s_and_b32 s%d, s%d, 1\ns_lshl_b32 s%d, s%d, 3\ns_add_u32 s%d, s%d, s%d" % (sC, sX, sC, sC, sA, sA, sC))
        a("s_and_b32 s%d, s%d, 16\ns_add_u32 s%d, s%d, s%d\ns_lshl_b32 s%d, s%d, 7" % (sC, sS, sA, sA, sC, sA, sA))
        a("s_and_b32 s%d, s%d, %d\ns_lshl_b32 s%d, s%d, 4\ns_add_u32 s%d, s%d, s%d" % (sC, sS, 8 - (1 << (fq - 1)), sC, sC, sKS, sA, sC))
        self.sel_x()
        a("v_lshlrev_b32 v4, 4, v1\nv_mov_b32 v3, 0x0c0c0100\nv_alignbit_b32 v5, v3, v3, v4")
        a("v_mov_b32 v3, 0x0c0c0302\nv_alignbit_b32 v6, v3, v3, v4\nv_bfe_u32 v7, v1, 1, 2\nv_mov_b32 v4, 0x0c0c0c0c")
        for j in range(4):
            a("v_cmp_eq_u32 vcc, %d, v7\nv_cndmask_b32 v%d, v4, v5, vcc\nv_cndmask_b32 v%d, v4, v6, vcc" % (j, SEL + j, SEL + 4 + j))
        a("s_lshl_b32 s%d, s%d, 9\ns_waitcnt lgkmcnt(0)" % (sC, sW))
        self.tags()
        a("s_cmp_lg_u32 s%d, 0\ns_cbranch_scc1 L_nodie" % sW)
        a("s_lshl_b32 s%d, s%d, 5\ns_add_u32 s%d, s%d, s%d\ns_lshl_b32 s%d, s%d, 2\ns_add_u32 s%d, s%d, 0x%x" % (sA, sX, sA, sA, sS, sA, sA, sA, sA, DX))
        a("s_xor_b32 s%d, s%d, s%d\nv_mov_b32 v3, s%d\ns_mov_b64 exec, 1" % (sU, sL, sT, sU))
        a("buffer_store_dword v3, v9, %s, s%d offen\ns_mov_b64 exec, -1" % (srd("ws"), sA))
        if o["qloc"]:
            a("s_waitcnt vmcnt(0)")
            self.die_read(25)
        a("L_nodie:\ns_barrier")
        a("s_cmp_lg_u32 s%d, 0\ns_cbranch_scc1 L_noq" % sW)
        for k in range(4):
            a("ds_read_b128 %s, v237 offset:%d" % (vr(GU + 4 * k), RQ + 1024 * k))
        a("s_waitcnt lgkmcnt(0)")
        self.sum4(GU)
        self.tag4(248, [GU, GU + 1, GU + 2, GU + 3])
        if o["qloc"]:
            a("s_mov_b32 s%d, 0xffff\ns_not_b32 s%d, s%d\ns_bitcmp1_b32 s%d, 0\ns_cselect_b32 s%d, s%d, s%d\ns_mov_b32 exec_lo, s%d\ns_mov_b32 exec_hi, 0" % (
                  sA, sU, sA, sX, sU, sA, sU, sU))
            if "Q" not in o["cut"]:
                a("buffer_store_dwordx4 v[248:251], v239, %s, s%d offen %s" % (srd("ws"), sF, o["qst"]))
            a("s_mov_b32 exec_lo, -1\ns_waitcnt vmcnt(%d)" % ("Q" not in o["cut"]))
            self.die_test(25)
            a("s_not_b32 exec_lo, s%d" % sU)
            if "Q" not in o["cut"]:
                self.publish("L_pq", 248, 239, sF)
            a("s_mov_b64 exec, -1")
        else:
            a("s_mov_b32 exec_hi, 0")
            if "Q" not in o["cut"]:
                a("buffer_store_dwordx4 v[248:251], v239, %s, s%d offen %s" % (srd("ws"), sF, o["qst"]))
            a("s_mov_b32 exec_hi, -1")
        a("L_noq:")
        self.stamp(2)
        if o["prepos"] == 1:
            self.preread()
        if o["fpre"] == "w":
            a("s_cmp_lt_u32 s%d, 2\ns_cbranch_scc1 L_nfp" % sW)
            self.load(40, 241, "ws", "s%d" % sP, 0, o["fppol"])
            a("L_nfp:")
        if o["fpre"] == "r":
            a("s_bitcmp1_b32 s%d, 0\ns_cbranch_scc1 L_nfp\ns_lshl_b32 s%d, s%d, 10\ns_add_u32 s%d, s%d, s%d" % (sS, sA, sW, sA, sA, sP + 1))
            self.load(40, 242, "ws", "s%d" % sA, 0, o["fppol"])
            a("L_nfp:")
        if "g" not in o["cut"]:
            self.load(GU, 254, "x", "s%d" % sC)
            self.load(GU + 4, 253, "gw", "s%d" % sC, 0, o["xpol"])
        a("ds_read_b128 v[16:19], v236 offset:%d\nds_read_b128 v[20:23], v236 offset:%d\ns_waitcnt lgkmcnt(0)" % (XS, XS + 4096))
        self.x_operands()
        a("s_waitcnt vmcnt(0)")
        self.ack(1)
        self.stamp(1, True)
        t = GU + 8
        for j in range(4):
            a("v_lshlrev_b32 v%d, 16, v%d\nv_lshlrev_b32 v%d, 16, v%d" % (t + j, GU + j, t + 4 + j, GU + 4 + j))
            a("v_and_b32 v%d, 0xffff0000, v%d\nv_and_b32 v%d, 0xffff0000, v%d" % (GU + j, GU + j, GU + 4 + j, GU + 4 + j))
        for j in range(4):
            a("v_mul_f32 v%d, v%d, v%d\nv_mul_f32 v%d, v%d, v%d" % (t + j, t + j, t + 4 + j, GU + j, GU + j, GU + 4 + j))
        for j in range(4):
            self.rnd(t + j, t + j); self.rnd(GU + j, GU + j)
        for j in range(4):
            a("v_add_f32 v%d, v%d, v%d" % (t + j, t + j, GU + j))
        a("v_add_f32 v%d, v%d, v%d\nv_add_f32 v%d, v%d, v%d\nv_add_f32 v4, v%d, v%d" % (t, t, t + 1, t + 2, t + 2, t + 3, t, t + 2))
        for n in (8, 4, 2, 1):
            self.dpp("v_add_f32", 4, 4, 4, "row_ror:%d" % n)
        self.rows_allreduce("v_add_f32", 4, 3, (16,))
        a("ds_write_b32 v235, v4 offset:%d" % GP)
        a("s_waitcnt lgkmcnt(0)")
        a("s_barrier")
        self.stamp(3)

        def issue(i):
            if i < 16 and o["ilv"]:
                self.load(GU + 4 * i, 246 if i & 1 else 11, "wu" if i & 1 else "wg", "s%d" % sB, 0, pol)
                if i & 1 and i < 15:
                    a("s_add_u32 s%d, s%d, %d" % (sB, sB, 7168 * (krow(i // 2 + 1, L) - krow(i // 2, L))))
            elif i < 16:
                self.load(GU + 4 * i, 246 if i >= 8 else 11, "wu" if i >= 8 else "wg", "s%d" % sB, 0, pol)
                if i == 7:
                    a("s_sub_u32 s%d, s%d, %d" % (sB, sB, 7168 * krow(7, L)))
                elif i < 15:
                    a("s_add_u32 s%d, s%d, %d" % (sB, sB, 7168 * (krow((i & 7) + 1, L) - krow(i & 7, L))))
            elif i < 24:
                k = i - 16
                m = (k >> 1) + 4 * (k & 1)
                self.load(WO + 4 * m, 12, "wo", "s%d" % sD, 0 if o["oil"] else 2048 * (k & 1), pol)
                if o["oil"]:
                    a("s_add_u32 s%d, s%d, 0x20000" % (sD, sD))
                elif k & 1 and k < 7:
                    a("s_add_u32 s%d, s%d, 0x10000" % (sD, sD))
            else:
                m = i - 24
                self.load(WD + 4 * m, 13, "wd", "s%d" % sE, 0, pol)
                if m < 6:
                    a("s_add_u32 s%d, s%d, 0x%x" % (sE, sE, 0x20000 if o["oil"] else 0x2000))

        if o["prepos"] == 2:
            self.preread()
        for i in range(W):
            issue(i)
        a("ds_read_b128 v[4:7], v234 offset:%d\ns_waitcnt lgkmcnt(0)" % GP)
        a("v_add_f32 v4, v4, v5\nv_add_f32 v6, v6, v7\nv_add_f32 v4, v4, v6")
        self.rnd(4, 4)
        self.sigmoid(VG, 4)
        a("v_sub_f32 v%d, 1.0, v%d" % (VG + 1, VG))
        self.rnd(VG + 1, VG + 1)
        if o["wef"]:
            a("s_cmp_ge_u32 s%d, 2\ns_cselect_b64 vcc, -1, 0" % sX)
        nis = W
        steps = max(31 - W, 16)
        if o["wt"] < 99:
            steps = min(steps, max(o["th"] + o["thl"], o["t2"] + o["t2l"]) + 1)
        for i in range(steps):
            if i >= o["wt"]:
                a("s_waitcnt vmcnt(%d)" % (nis - 1 - i))
                while nis < min(31, i + W + 1 + (i + 1 - o["wt"]) * o["wr"]) or i == steps - 1 and nis < 31:
                    issue(nis)
                    nis += 1
            elif i + W < 31:
                nis += 1
                a("s_waitcnt vmcnt(%d)" % (W - 1))
                if i < o["wef"]:
                    a("s_cbranch_vccnz L_we%d\ns_waitcnt vmcnt(%d)\nL_we%d:" % (i, W - 2, i))
                if i in (0, 4, 8, 12, 20):
                    self.stamp({0: 6, 4: 7, 8: 8, 12: 9, 20: 10}[i], True)
                issue(i + W)
            else:
                a("s_waitcnt vmcnt(%d)" % (30 - i))
            if i < 16:
                gu, m = (i & 1, i >> 1) if o["ilv"] else (i >> 3, i & 7)
                self.mf16(40 + 8 * gu, 24 + 2 * m, GU + 4 * i, m == 0)
                self.mf16(44 + 8 * gu, 24 + 2 * m, GU + 4 * i + 2, m == 0)
            last = steps - 1
            for flag, step, dl in ((F_T, o["to"], o["tol"]), (F_T + 2, o["th"], o["thl"])) + (((F_T + 4, o["t2"], o["t2l"]),) if o["t2"] else ()):
                if i == min(step + (0 if o["ilv"] else dl), last):
                    a("ds_write_b8 v244, v8 offset:%d" % flag)
                elif i == step:
                    a("ds_write_b8 v247, v8 offset:%d" % flag)
            if i == 15:
                for r in range(4):
                    a("v_permlane16_swap_b32 v%d, v%d" % (40 + r, 44 + r))
                for r in range(4):
                    a("v_permlane16_swap_b32 v%d, v%d" % (48 + r, 52 + r))
                for r in range(4):
                    self.dpp("v_add_f32", 40 + r, 44 + r, 40 + r, "row_ror:8", 0x3)
                for r in range(4):
                    self.dpp("v_add_f32", 40 + r, 48 + r, 52 + r, "row_ror:8", 0xc)
                a("ds_write_b128 v236, v[40:43] offset:%d" % RH)
                a("ds_write_b8 v240, v8 offset:%d" % C_H)
                self.stamp(4)
        self.stamp(5)

        def image(lbl, flag, img, Y=Y):
            a("%s:" % lbl)
            self.guard()
            a("ds_read_u8 v3, v244 offset:%d\nds_read_b128 %s, v243 offset:%d" % (flag, vr(Y), img))
            a("s_waitcnt lgkmcnt(0)\nv_cmp_ne_u32 vcc, 1, v3\ns_cbranch_vccnz %s" % lbl)

        def operands(m, Y=Y):
            for j in range(4):
                a("v_perm_b32 v%d, v%d, v%d, v%d" % (AO + 4 * m + j, Y + (m >> 1), Y + (m >> 1), SEL + 4 * (m & 1) + j))

        if o["adap"]:
            YH = 16
            def chain(d, n, Yr, Wr, wait, fill=None):
                operands(0, Yr)
                for m in range(n):
                    if m < n - 1:
                        operands(m + 1, Yr)
                    elif fill:
                        for r in range(4):
                            a("v_mul_f32 v%d, v%d, v%d" % (fill[0] + r, fill[1], fill[0] + r))
                    if wait(m) is not None:
                        a("s_waitcnt vmcnt(%d)" % wait(m))
                    self.mf32(d, AO + 4 * m, Wr + 4 * m, m == 0)
            a("L_im:")
            self.guard()
            a("ds_read_u8 v3, v244 offset:%d\nds_read_u8 v4, v244 offset:%d" % (F_IM, F_IM + 2))
            a("ds_read_b128 %s, v243 offset:%d\nds_read_b128 %s, v243 offset:%d" % (vr(Y), IM, vr(YH), IM + 512))
            a("s_waitcnt lgkmcnt(0)\nv_cmp_eq_u32 vcc, 1, v3\ns_cbranch_vccnz L_of\nv_cmp_ne_u32 vcc, 1, v4\ns_cbranch_vccnz L_im")
            self.stamp(7)
            chain(DB, 7, YH, WD, lambda m: 6 - m)
            image("L_oi", F_IM, IM)
            self.stamp(6)
            chain(DA, 8, Y, WO, lambda m: None)
            for r in range(4):
                a("v_mul_f32 v%d, v%d, v%d" % (DA + r, VG, DA + r))
            a("s_branch L_mix\nL_of:")
            self.stamp(6)
            a("v_cmp_eq_u32 vcc, 1, v4")
            chain(DA, 8, Y, WO, lambda m: None if m else 7)
            a("s_cbranch_vccnz L_hok")
            image("L_hi", F_IM + 2, IM + 512, YH)
            a("L_hok:")
            self.stamp(7)
            chain(DB, 7, YH, WD, lambda m: 6 - m, (DA, VG))
            a("s_nop 7\nL_mix:")
            for r in range(4):
                a("v_fmac_f32 v%d, v%d, v%d" % (DA + r, VG + 1, DB + r))
        else:
            image("L_oi", F_IM, IM)
            self.stamp(6)
            operands(0)
            a("s_waitcnt vmcnt(7)")
            for m in range(8):
                if m < 7:
                    operands(m + 1)
                self.mf32(DA, AO + 4 * m, WO + 4 * m, m == 0)
            image("L_hi", F_IM + 2, IM + (512 if own else 256))
            self.stamp(7)
            operands(0)
            for m in range(7):
                if m < 6:
                    operands(m + 1)
                else:
                    for r in range(4):
                        a("v_mul_f32 v%d, v%d, v%d" % (DA + r, VG, DA + r))
                a("s_waitcnt vmcnt(%d)" % (6 - m))
                self.mf32(DB, AO + 4 * m, WD + 4 * m, m == 0)
            for r in range(4):
                a("v_fmac_f32 v%d, v%d, v%d" % (DA + r, VG + 1, DB + r))
        a("ds_write_b128 v236, %s offset:%d" % (vr(DA), RF))
        self.stamp(8)
        if own:
            return self.final_local(DA, AO, fq)
        a("s_mov_b64 exec, 1\nds_add_rtn_u32 v3, v10, v8 offset:%d\ns_mov_b64 exec, -1" % C_F)
        a("ds_read_b128 %s, v255 offset:%d\nds_read_b128 %s, v255 offset:%d" % (vr(DA), RF, vr(DB), RF + 2048))
        a("s_waitcnt lgkmcnt(0)\nv_readfirstlane_b32 s%d, v3" % sA)
        for r in range(4):
            a("v_add_f32 v%d, v%d, v%d" % (DA + r, DA + r, DB + r))
        a("s_cmp_lg_u32 s%d, 1\ns_cbranch_scc1 L_end" % sA)
        self.tag4(DA, [DA + r for r in range(4)])
        if o["fcut"]:
            a("s_mov_b64 exec, 0x%x" % ((1 << (32 >> (o["fcut"] - 1))) - 1) if o["fcut"] > 1 else "s_mov_b32 exec_hi, 0")
        a("buffer_store_dwordx4 %s, v241, %s, s%d offen %s" % (vr(DA), srd("ws"), sP, o["fst"]))
        if o["fcut"]:
            a("s_mov_b64 exec, -1\ns_cmp_ge_u32 s%d, %d\ns_cselect_b32 s%d, 1, s%d" % (sS, 32 >> o["fcut"], sOK, sOK))
        self.stamp(9)
        self.writeback("F")
        a("s_cmp_lg_u32 s%d, 0\ns_cbranch_scc1 L_end" % sOK)
        if o["lag"] & 1:
            a("s_waitcnt vmcnt(0)")
        if o["lagx"]:
            a("s_cmp_ge_u32 s%d, %d\ns_cbranch_scc1 L_fin" % (sX, o["lagx"]))
            self.load(40, 241, "ws", "s%d" % sP, 0, "sc1")
            a("s_waitcnt vmcnt(0)")
        a("L_fin:")
        self.guard()
        for m in range(4):
            self.load(40 + 4 * m, 242, "ws", "s%d" % (sP + 1), 1024 * m, o["fld"])
        a("s_waitcnt vmcnt(0)")
        self.untag(40, 4, 3)
        self.again("L_fin")
        self.stamp(10)
        self.writeback("R")
        self.sum4(40)
        self.rows_scatter_sum([40])
        for n in (8, 4):
            self.dpp("v_add_f32", 40, 40, 40, "row_ror:%d" % n)
        self.rnd(40, 40)
        a("s_mov_b32 exec_lo, 0x000f000f\ns_mov_b32 exec_hi, 0x000f000f")
        a("buffer_store_short_d16_hi v40, v245, %s, s%d offen %s" % (srd("out"), sKS, o["outpol"]))
        self.last(0)

    def final_local(self, DA, R, fq):
        a, o = self.a, self.o
        n = 1 << (fq - 1)
        a("s_mov_b64 exec, 1\nds_add_rtn_u32 v3, v9, v8 offset:%d\nds_read_b32 v4, v9 offset:%d\ns_mov_b64 exec, -1" % (C_F, F_L))
        for k in range(4):
            a("ds_read_b128 %s, v255 offset:%d" % (vr(R + 4 * k), RF + 1024 * k))
        a("s_waitcnt lgkmcnt(4)\nv_readfirstlane_b32 s%d, v3\nv_readfirstlane_b32 s%d, v4" % (sA, sL))
        a("s_cmp_lg_u32 s%d, 3\ns_waitcnt lgkmcnt(0)\ns_cbranch_scc1 L_end" % sA)
        self.sumq(R, 4)
        self.tag4(R, [R + r for r in range(4)])
        self.publish("L_pf", R, 241, sP)
        self.stamp(9)
        if n > 1:
            a("s_cmp_lg_u32 s%d, 0\ns_cbranch_scc1 L_end" % sOK)
        if o["lag"] & 1:
            a("s_waitcnt vmcnt(0)")
        a("L_fin:")
        self.guard()
        for m in range(n):
            self.load(40 + 4 * m, 242, "ws", "s%d" % (sP + 1), 1024 * m, o["fld"])
        a("s_waitcnt vmcnt(0)")
        self.untag(40, n, 3)
        self.again("L_fin")
        self.stamp(10)
        self.sumq(40, n)
        self.rows_scatter_sum([40])
        for k in range(3, fq - 1, -1):
            self.dpp("v_add_f32", 40, 40, 40, "row_ror:%d" % (1 << k))
        self.rnd(40, 40)
        m = ((1 << (1 << fq)) - 1) * 0x10001
        a("s_mov_b32 exec_lo, 0x%x\ns_mov_b32 exec_hi, 0x%x" % (m, m))
        a("buffer_store_short_d16_hi v40, v245, %s, s%d offen %s" % (srd("out"), sKS, o["outpol"]))
        self.last(8 * (o["fsel"] & (n - 1)))

    def sumq(self, b, n):
        st = 4
        while st < 4 * n:
            for q in range(b, b + 4 * n, 2 * st):
                for r in (0, 2):
                    self.a("v_pk_add_f32 v[%d:%d], v[%d:%d], v[%d:%d]" % (q + r, q + r + 1, q + r, q + r + 1, q + st + r, q + st + r + 1))
            st *= 2

    def last(self, wg):
        a, o = self.a, self.o
        a("s_cmp_lg_u32 s2, %d\ns_cbranch_scc1 %s" % (wg, "L_amp" if o["ampend"] else "L_end"))
        a("s_mov_b64 exec, 1\nv_mov_b32 v3, s%d\nbuffer_store_dword v3, v9, %s, 0 offen sc1" % (sT, srd("ws")))
        if o["ampend"]:
            a("L_amp:\ns_waitcnt vmcnt(0)\ns_memrealtime s[%d:%d]\ns_waitcnt lgkmcnt(0)" % (sD, sD + 1))
            a("s_sub_u32 s%d, s%d, s%d\ns_lshl_b32 s%d, s%d, 2\ns_and_b32 s%d, s%d, 0x3fff" % (sA, sD, sST, sA, sA, sA, sA))
            a("L_amp2:\ns_memrealtime s[%d:%d]\ns_waitcnt lgkmcnt(0)\ns_sub_u32 s%d, s%d, s%d\ns_cmp_lt_u32 s%d, s%d\ns_cbranch_scc1 L_amp2" % (
                sD, sD + 1, sD, sD, sST, sD, sA))

    def epilogue(self):
        a = self.a
        a("L_end:")
        if self.o["stamps"]:
            a("s_mov_b64 exec, 1\ns_waitcnt vmcnt(0)")
            self.stamp(NST - 1)
            a("s_waitcnt lgkmcnt(0)")
            a("s_lshl_b32 s%d, s3, 8\ns_add_u32 s%d, s%d, s2\ns_mul_i32 s%d, s%d, %d\ns_add_u32 s%d, s%d, 0x%x" % (
                sA, sA, sA, sA, sA, NST * 8, sA, sA, STAMP_OFF))
            a("v_mov_b32 v1, s%d" % sA)
            for i in range(NST):
                a("v_mov_b32 v4, s%d\nv_mov_b32 v5, s%d" % (sST + 2 * i, sST + 2 * i + 1))
                a("buffer_store_dwordx2 v[4:5], v1, %s, 0 offen offset:%d\ns_nop 1" % (srd("ws"), 8 * i))
        if self.o["hold"]:
            a("s_cmp_lg_u32 s3, %d\ns_cbranch_scc1 L_exit" % self.o["ampwave"])
            if self.o["ampwg"] is not None:
                a("s_cmp_lg_u32 s2, %d\ns_cbranch_scc1 L_exit" % self.o["ampwg"])
            a("s_waitcnt lgkmcnt(0)\ns_mov_b32 s%d, %d" % (sA, self.o["hold"]))
            if self.o["amp"]:
                a("s_sub_u32 s%d, s%d, s%d\ns_lshl_b32 s%d, s%d, 2\ns_and_b32 s%d, s%d, 0x3fff\ns_add_u32 s%d, s%d, s%d" % (
                    sB, sST + 2 * self.o["amp"], sST, sB, sB, sB, sB, sA, sA, sB))
            a("L_hold:\ns_memrealtime s[%d:%d]\ns_waitcnt lgkmcnt(0)\ns_sub_u32 s%d, s%d, s%d\ns_cmp_lt_u32 s%d, s%d\ns_cbranch_scc1 L_hold" % (
                sD, sD + 1, sD, sD, sST, sD, sA))
        a("L_exit:\ns_endpgm")

    def build(self):
        if self.o["stamps"]:
            for i in range(1, NST):
                self.a("s_mov_b64 s[%d:%d], 0" % (sST + 2 * i, sST + 2 * i + 1))
        self.prologue()
        self.a_waves()
        self.f_waves()
        self.epilogue()
        lab = NAME + "_kernel"
        lines = [l[:-3] + self.o["spol"] if "buffer_store_dwordx4" in l and l.endswith("sc1") and "v241" not in l else l for l in self.a.lines]
        body = "\n".join(hazard.pad(lines)) + "\n"
        return (header(["; @launch grid=(256,1,1) block=(512,1,1) lds=%d" % LDS_BYTES]) + kernel_open(lab) + body
                + RODATA + descriptor(lab, 256))


def main():
    out = sys.argv[1]
    kw = {}
    for s in sys.argv[2:]:
        k, v = s.split("=")
        try:
            v = v if k == "stag" else int(v, 0)
        except ValueError:
            pass
        kw[k] = v.replace("+", " ") if isinstance(v, str) else v
    open(out, "w").write(Gen(**kw).build())


if __name__ == "__main__":
    main()
```

```python
import sys
from asmlib import *
import hazard

DEFAULTS = dict(wa=5, wf=5, pol="nt", stamps=False, spin=100000, outpol="", wa0=8, qpos=7, to=8, th=20, loc=1, umap=1, dpol="sc1 nt", qloc=0, o2loc=1, pf=2, tearly=1, ilv=0, colmap=0, mask=1, fine=0, sync=None, stag="102", stx=0, tol=3, thl=1, cut="", lag=1, gpol="sc1", twice=0, prio=0, wd=1, wea=0, wef=0, qst="sc1", fst="sc1", fld="sc1", xpol="", wb="", wbs=3, pre="", ppol="nt", lagx=0, fpre="", fppol="sc1", prepos=0, lpol="sc1 nt", fcut=0, floc=0, cown=0, h2=0, xpre="", xppol="sc1", wt=99, wr=1, gpol0="sc1", hcut=0, t2=0, t2l=1, adap=0, fq=2, fsel=0, hpol2="sc1", npol="", osrc="", kil=0, wil=0, gil=0, oil=0, qch=0, och=0, hch=0, fch=0, sb=2, sh=18, opol="sc1 nt", hpol="sc1 nt", rpol="sc1", spol="sc1", diag=0, hold=0, perm=0, ampend=0, amp=None, ampwave=0, ampwg=None)

V9 = dict(cown=1, lag=0, colmap=1, adap=1, fld="sc1", fpre="b", fppol="sc1", h2=1, th=22, t2=23, to=8, tol=1)

DX, QX, O2, HX, FX, OX = 0x8000, 0x10000, 0x30000, 0x40000, 0x80000, 0x100000
STAMP_OFF = 128 << 20
F_Q, F_O, C_H, F_IM, C_F, F_L, F_T = 0, 4, 8, 12, 16, 20, 24
GP, MLL, IM = 64, 256, 512
RQ, RH, RF, QI, OL = 2048, 6144, 10240, 14336, 16640
XS = OL + 4 * 4224
LDS_BYTES = XS + 8192
SRD = dict(x=4, wq=8, k=12, v=16, wg=20, wu=24, wo=28, wd=32, gw=36, ws=40, out=44)
sX, sS, sW, sT, sT0, sCNT = 48, 49, 50, 51, 52, 56
sA, sB, sC, sD, sE, sF, sG, sH, sRB, sKS = 57, 58, 59, 60, 61, 62, 63, 64, 65, 66
sOK, sP, sR, sL, sU = 67, 68, 94, 95, 96
sST = 70
NST = 12
OOB = 0x7f000000
LOG2E = 0x3fb8aa3b
SCALE = 0x3db504f3
KVBASE = (32768 - 4096) * 256


def srd(n):
    return "s[%d:%d]" % (SRD[n], SRD[n] + 3)


def vr(b, n=4):
    return "v[%d:%d]" % (b, b + n - 1)


def krow(i, L):
    return ((i >> (3 - L)) << (10 - L)) + ((i & ((8 >> L) - 1)) << 1)


class VM:
    def __init__(self, a):
        self.a, self.q = a, []

    def note(self, name):
        self.q.append(name)

    def wait(self, name):
        self.a("s_waitcnt vmcnt(%d)" % (len(self.q) - 1 - self.q.index(name)))


class Gen:
    def __init__(self, **kw):
        self.o = dict(DEFAULTS)
        if not kw.get("v8"):
            self.o.update(V9)
        self.o.update(kw)
        self.a = Asm()

    def spread(self, d, idx, n, t):
        if n:
            self.a("s_and_b32 s%d, s%d, %d\ns_lshl_b32 s%d, s%d, %d\ns_add_u32 s%d, s%d, s%d\ns_add_u32 s%d, s%d, 0x%x" % (
                t, idx, n - 1, t, t, self.o["sh"], d, d, t, d, d, self.o["sb"] << 20))

    def stamp(self, i, fine=False):
        if self.o["fine"] and i in (1, 6, 7, 8, 9, 10) and not fine or fine and not self.o["fine"]:
            return
        if self.o["stamps"] or (self.o["hold"] and i in (0, self.o["amp"])) or (self.o["ampend"] and i == 0):
            self.a("s_memrealtime s[%d:%d]" % (sST + 2 * i, sST + 2 * i + 1))

    def count(self, unit):
        if self.o["diag"]:
            self.a("s_add_u32 s%d, s%d, %d" % (sST + 2, sST + 2, 100 * unit))

    def ack(self, i):
        if self.o["diag"]:
            self.a("s_waitcnt vmcnt(0)")
            self.stamp(i)

    def ptr(self, n):
        self.a("s_load_dwordx2 s[%d:%d], s[0:1], %d" % (SRD[n], SRD[n] + 1, KARG[n]))

    def desc(self, n):
        self.a("s_mov_b32 s%d, 0x%x\ns_mov_b32 s%d, 0x20000" % (SRD[n] + 2, SIZE[n], SRD[n] + 3))

    def guard(self):
        self.a("s_sub_u32 s%d, s%d, 1\ns_cbranch_scc1 L_end" % (sCNT, sCNT))

    def load(self, dst, voff, buf, soff, imm=0, pol=""):
        self.a("buffer_load_dwordx4 %s, v%d, %s, %s offen%s%s" % (
            vr(dst), voff, srd(buf), soff, " offset:%d" % imm if imm else "", " " + pol if pol else ""))

    def flag_wait(self, lbl, vaddr, flag):
        self.a("%s:" % lbl)
        self.guard()
        self.a("ds_read_u8 v3, v%d offset:%d\ns_waitcnt lgkmcnt(0)\nv_cmp_ne_u32 vcc, 1, v3\ns_cbranch_vccnz %s" % (vaddr, flag, lbl))

    def tags(self):
        a = self.a
        a("s_add_u32 s%d, s%d, 0x01010101" % (sT, sT))
        a("s_and_b32 s%d, s%d, 0xff" % (sT0, sT))
        a("s_bfe_u32 s%d, s%d, 0x80008" % (sT0 + 1, sT))
        a("s_bfe_u32 s%d, s%d, 0x80010" % (sT0 + 2, sT))
        a("s_lshr_b32 s%d, s%d, 24" % (sT0 + 3, sT))

    def tag4(self, dst, src):
        for j in range(4):
            self.a("v_bfi_b32 v%d, v2, s%d, v%d" % (dst + j, sT0 + j, src[j]))

    def untag(self, base, n, acc, cmp=True, also=None, vt=None):
        a = self.a
        regs = list(range(base, base + 4 * n))
        for r in regs:
            a("v_xor_b32 v%d, %s, v%d" % (r, "v%d" % (vt + (r - base) % 4) if vt and (r - base) & 4 else "s%d" % (sT0 + (r - base) % 4), r))
        a("v_or_b32 v%d, v%d, v%d" % (acc, regs[0], regs[1]))
        for i in range(2, len(regs), 2):
            a("v_or3_b32 v%d, v%d, v%d, v%d" % (acc, acc, regs[i], regs[i + 1]))
        if also is not None:
            a("v_or_b32 v%d, v%d, v%d" % (acc, acc, also))
        if cmp:
            a("v_and_b32 v%d, v2, v%d" % (acc, acc))
            a("v_cmp_ne_u32 vcc, 0, v%d" % acc)

    def narrow(self):
        if self.o["mask"]:
            self.a("s_wqm_b64 exec, vcc")

    def widen(self):
        if self.o["mask"]:
            self.a("s_mov_b64 exec, -1")

    def again(self, lbl):
        self.narrow()
        self.a("s_cbranch_vccnz %s" % lbl)
        self.widen()

    def dpp(self, op, d, s0, s1, ctl, bank=0xf):
        self.a("%s_dpp v%d, v%d, %s%s row_mask:0xf bank_mask:0x%x" % (
            op, d, s0, "v%d " % s1 if s1 is not None else "", ctl, bank) if s1 is not None else
            "%s_dpp v%d, v%d %s row_mask:0xf bank_mask:0x%x" % (op, d, s0, ctl, bank))

    def rows_allreduce(self, op, x, t, which=(16, 32)):
        for n in which:
            self.a("v_mov_b32 v%d, v%d\nv_permlane%d_swap_b32 v%d, v%d\n%s v%d, v%d, v%d" % (t, x, n, x, t, op, x, x, t))

    def rows_scatter_sum(self, sets):
        a = self.a
        for b in sets:
            a("v_permlane32_swap_b32 v%d, v%d\nv_permlane32_swap_b32 v%d, v%d" % (b, b + 2, b + 1, b + 3))
        for b in sets:
            a("v_add_f32 v%d, v%d, v%d\nv_add_f32 v%d, v%d, v%d" % (b, b, b + 2, b + 1, b + 1, b + 3))
        for b in sets:
            a("v_permlane16_swap_b32 v%d, v%d" % (b, b + 1))
        for b in sets:
            a("v_add_f32 v%d, v%d, v%d" % (b, b, b + 1))

    def rnd(self, d, s):
        self.a("v_cvt_pk_bf16_f32 v%d, 0, v%d" % (d, s))

    def sigmoid(self, d, z):
        a = self.a
        a("v_mul_f32 v%d, 0x%x, v%d" % (d, LOG2E ^ 0x80000000, z))
        a("v_exp_f32 v%d, v%d\nv_add_f32 v%d, 1.0, v%d\nv_rcp_f32 v%d, v%d" % (d, d, d, d, d, d))
        self.rnd(d, d)

    def sel_x(self):
        a = self.a
        a("v_bfe_u32 v3, v1, 2, 1\nv_mul_u32_u24 v3, 0x202, v3\nv_add_u32 v3, 0x0c0c0100, v3")
        a("v_lshlrev_b32 v4, 4, v1\nv_alignbit_b32 v3, v3, v3, v4")
        a("v_and_b32 v4, 2, v1\nv_cmp_eq_u32 vcc, 0, v4\nv_mov_b32 v4, 0x0c0c0c0c")
        a("v_cndmask_b32 v14, v4, v3, vcc\nv_cndmask_b32 v15, v3, v4, vcc")

    def x_operands(self, d=24, s=16):
        for m in range(8):
            self.a("v_perm_b32 v%d, v%d, v%d, v14\nv_perm_b32 v%d, v%d, v%d, v15" % (
                d + 2 * m, s + m, s + m, d + 1 + 2 * m, s + m, s + m))

    def mf16(self, d, av, bv, first):
        self.a("v_mfma_f32_16x16x16_bf16 %s, %s, %s, %s" % (vr(d), vr(av, 2), vr(bv, 2), "0" if first else vr(d)))

    def mf32(self, d, av, bv, first):
        self.a("v_mfma_f32_16x16x32_bf16 %s, %s, %s, %s" % (vr(d), vr(av), vr(bv), "0" if first else vr(d)))

    def sum4(self, b):
        for r in range(4):
            self.a("v_add_f32 v%d, v%d, v%d\nv_add_f32 v%d, v%d, v%d" % (b + r, b + r, b + 4 + r, b + 8 + r, b + 8 + r, b + 12 + r))
        for r in range(4):
            self.a("v_add_f32 v%d, v%d, v%d" % (b + r, b + r, b + 8 + r))

    def prologue(self):
        a = self.a
        self.stamp(0)
        if self.o["sync"] is not None:
            a("s_waitcnt lgkmcnt(0)\ns_add_u32 s4, s%d, 300\ns_or_b32 s4, s4, 0x7ff\ns_and_b32 s5, s2, 6\ns_cselect_b32 s5, %d, 0\ns_add_u32 s4, s4, s5" % (sST, self.o["sync"]))
            a("L_sync:\ns_memrealtime s[%d:%d]\ns_waitcnt lgkmcnt(0)\ns_sub_u32 s5, s%d, s4\ns_cmp_lt_i32 s5, 0\ns_cbranch_scc1 L_sync" % (sST, sST + 1, sST))
        a("s_cmp_ge_u32 s2, 256\ns_cbranch_scc1 L_exit")
        if self.o["perm"] == 1:
            a("s_lshr_b32 s4, s2, 5\ns_lshl_b32 s2, s2, 3\ns_or_b32 s2, s2, s4\ns_and_b32 s2, s2, 255")
        if self.o["perm"] == 2:
            a("s_cmp_eq_u32 s2, 42\ns_cselect_b32 s4, 7, 0\ns_cmp_eq_u32 s2, 45\ns_cselect_b32 s4, 7, s4\ns_xor_b32 s2, s2, s4")
        for n in ("x", "wq", "ws"):
            self.ptr(n)
        a("s_lshr_b32 s%d, s2, 3" % sS)
        if self.o["pf"] == 2:
            a("s_getpc_b64 s[%d:%d]\nL_pc:" % (sP, sP + 1))
            a("s_lshl_b32 s%d, s%d, 9\ns_min_u32 s%d, s%d, L_exit-L_pc-512" % (sA, sS, sA, sA))
            a("s_add_u32 s%d, s%d, s%d\ns_addc_u32 s%d, s%d, 0" % (sP, sP, sA, sP + 1, sP + 1))
            a("v_add_co_u32 v250, vcc, s%d, v0\nv_mov_b32 v251, s%d\nv_lshrrev_b32 v3, 6, v0\nv_addc_co_u32 v251, vcc, 0, v251, vcc" % (sP, sP + 1))
            a("global_load_ubyte v252, v[250:251], off " + self.o["xpol"])
        else:
            a("v_lshrrev_b32 v3, 6, v0")
        a("v_and_b32 v1, 63, v0\ns_and_b32 s%d, s2, 7" % sX)
        a("v_readfirstlane_b32 s3, v3")
        a("s_lshr_b32 s%d, s%d, 3" % (sKS, sS))
        self.desc("x")
        a("v_bfe_u32 v5, v1, 3, 1\nv_and_b32 v6, 0x30, v1\nv_and_b32 v7, 7, v1")
        a("s_and_b32 s%d, s3, 3" % sW)
        a("v_lshlrev_b32 v10, 11, v5\nv_lshl_add_u32 v10, v6, 1, v10")
        a("v_or_b32 v6, v6, v5\nv_lshlrev_b32 v7, 4, v7")
        a("s_lshl_b32 s%d, s%d, 2\ns_add_u32 s%d, s%d, s%d" % (sB, sKS, sB, sB, sW))
        a("s_lshl_b32 s%d, s%d, 7" % (sA, sB))
        a("s_getreg_b32 s%d, hwreg(HW_REG_XCC_ID, 0, 4)" % sL)
        a("s_cmp_ge_u32 s3, 4\ns_cbranch_scc1 L_F")

    def die_read(self, v):
        self.a("s_lshl_b32 s%d, s%d, 7\ns_add_u32 s%d, s%d, 0x%x\nv_and_b32 v%d, 31, v1\nv_lshlrev_b32 v%d, 2, v%d" % (sA, sX, sA, sA, DX, v, v, v))
        self.a("buffer_load_dword v%d, v%d, %s, s%d offen %s" % (v, v, srd("ws"), sA, self.o["dpol"]))

    def die_test(self, v):
        self.a("s_xor_b32 s%d, s%d, s%d\nv_cmp_ne_u32 vcc, s%d, v%d\ns_mov_b32 s%d, vcc_lo" % (sL, sL, sT, sL, v, sL))
        if not self.o["loc"]:
            self.a("s_mov_b32 s%d, 1" % sL)

    def q_block(self, d, t):
        self.a("s_and_b32 s%d, s%d, 7\ns_lshl3_add_u32 s%d, s%d, s%d\ns_xor_b32 s%d, s%d, 2" % (t, sS, d, sX, t, d, d))

    def gu_tile(self):
        a = self.a
        a("s_and_b32 s%d, s%d, 7\ns_add_u32 s%d, s%d, 3\ns_and_b32 s%d, s%d, 7\ns_min_u32 s%d, s%d, 6" % (sC, sS, sE, sX, sE, sE, sE, sE))
        a("s_add_u32 s%d, s%d, 2\ns_lshr_b32 s%d, s%d, 2\ns_sub_u32 s%d, s%d, s%d" % (sG, sC, sG, sG, sG, sC, sG))
        a("s_cmp_ge_u32 s%d, s%d\ns_addc_u32 s%d, s%d, 0" % (sG, sE, sG, sG))
        a("s_and_b32 s%d, s%d, 3\ns_cmp_eq_u32 s%d, 1\ns_cselect_b32 s%d, s%d, s%d\ns_cselect_b32 s%d, 8, 0" % (sD, sS, sD, sG, sE, sG, sE))
        a("s_mul_i32 s%d, s%d, 7\ns_add_u32 s%d, s%d, s%d" % (sD, sX, sG, sG, sD))
        if self.o["h2"]:
            a("s_and_b32 s%d, s%d, 1\ns_lshr_b32 s%d, s%d, 1\ns_lshr_b32 s%d, s%d, 2" % (sH, sKS, sOK, sKS, sC, sC))
            a("s_cmp_eq_u32 s%d, 8\ns_cselect_b32 s%d, s%d, s%d\ns_cselect_b32 s%d, s%d, s%d" % (sE, sH, sC, sH, sOK, sKS, sOK))
            return
        a("s_cmp_eq_u32 s%d, 5\ns_cselect_b32 s%d, 0x%x, 0" % (sC, sH, OOB))
        a("s_cmp_eq_u32 s%d, 1\ns_cselect_b32 s%d, 0x%x, 0" % (sC, sOK, OOB))

    def publish(self, lbl, data, voff, soff, far=sL):
        st = "buffer_store_dwordx4 %s, v%d, %s, s%d offen" % (vr(data), voff, srd("ws"), soff)
        if far is None:
            return self.a(st + " sc1")
        self.a("s_cmp_eq_u32 s%d, 0\ns_cbranch_scc1 %s_near\n%s sc1\ns_branch %s_out\n%s_near:\n%s\n%s_out:" % (far, lbl, st, lbl, lbl, st + " " + self.o["npol"], lbl))

    def a_waves(self):
        a, o = self.a, self.o
        W, pol = o["wa"], o["pol"]
        WQ, KD, VD, VT, PV, QG, QB, SD = 48, 80, 112, 144, 176, 208, 224, 232
        kil = min(o["kil"], 1)
        HI = 0x80000 if kil else 0x1000
        self.ptr("k"); self.ptr("v")
        self.desc("wq")
        L = o["wil"]
        if L:
            a("v_lshrrev_b32 v3, %d, v6\nv_or_b32 v6, v3, v5" % L)
        a("v_lshl_add_u32 v11, v6, 13, v7")
        self.q_block(sC, sD)
        a("s_lshl_b32 s%d, s%d, 7\ns_lshl_b32 s%d, s%d, %d\ns_add_u32 s%d, s%d, s%d" % (sC, sC, sB, sB, 19 - L, sB, sB, sC))
        a("s_waitcnt lgkmcnt(0)")
        vm = VM(a)
        if o["tearly"]:
            a("s_load_dword s%d, s[%d:%d], 0" % (sT, SRD["ws"], SRD["ws"] + 1))
        self.load(16, 10, "x", "s%d" % sA, 0, o["xpol"])
        self.load(20, 10, "x", "s%d" % sA, 16, o["xpol"])
        vm.note("x0"); vm.note("x1")

        def q_loads(v, p=o["gpol0"], lbl="L_q0"):
            if o["qloc"]:
                a("s_lshr_b32 s%d, s%d, 1\ns_xor_b32 s%d, s%d, s%d\ns_bitcmp1_b32 s%d, 0\ns_cbranch_scc1 %s_far" % (sA, sW, sA, sA, sX, sA, lbl))
                for ks in range(4):
                    self.load(QG + 4 * ks, v, "ws", "s%d" % sF, ks * 1024, o["lpol"])
                a("s_branch %s_out\n%s_far:" % (lbl, lbl))
            for ks in range(4):
                self.load(QG + 4 * ks, v, "ws", "s%d" % sF, ks * 1024, p)
            a("%s_out:" % lbl)

        def issue(i):
            if i < 8:
                self.load(WQ + 4 * i, 11, "wq", "s%d" % sB, 0, pol)
                if i < 7:
                    a("s_add_u32 s%d, s%d, 0x%x" % (sB, sB, 8192 * (krow(i + 1, L) - krow(i, L))))
            elif i < 16:
                oc, hh = (i - 8) >> 1, (i - 8) & 1
                a("s_xor_b32 s%d, s%d, 0x%x" % (sC, sD, (oc >> 1) * HI + (oc & 1) * 512 + hh * 128))
                self.load(KD + 4 * (i - 8), 12, "k", "s%d" % sC, 0, pol)
            else:
                a("s_xor_b32 s%d, s%d, 0x%x" % (sC, sE, (i & 3) * 1024 + ((i - 16) >> 2) * HI))
                self.load(VD + 4 * (i - 16), 10, "v", "s%d" % sC, 0, pol)
            vm.note(i)
            if i == 16 + o["qpos"]:
                self.die_read(25)
            if i == 16 + o["qpos"] and "q" not in o["cut"]:
                q_loads(13)
                for ks in range(4):
                    vm.note("q%d" % ks)

        W0 = o["wa0"]
        assert W0 <= 8
        for i in range(W0):
            issue(i)
        if o["diag"]:
            a("s_mov_b64 s[%d:%d], s[%d:%d]" % (sST + 2, sST + 3, sST, sST + 1))
        else:
            self.stamp(1)
        if not o["tearly"]:
            a("s_load_dword s%d, s[%d:%d], 0" % (sT, SRD["ws"], SRD["ws"] + 1))
        self.desc("k"); self.desc("v"); self.desc("ws")
        a("s_and_b32 s%d, s%d, 1\ns_lshr_b32 s%d, s%d, 1\ns_lshl2_add_u32 s%d, s%d, s%d" % (sU, sX, sD, sX, sU, sU, sD))
        if not o["umap"]:
            a("s_mov_b32 s%d, s%d" % (sU, sX))
        a("s_lshl_b32 s%d, s%d, 23\ns_lshl_b32 s%d, s%d, %d\ns_add_u32 s%d, s%d, s%d" % (sD, sU, sE, sS, 15 - kil, sD, sD, sE))
        a("s_lshl_b32 s%d, s%d, %d\ns_add_u32 s%d, s%d, s%d\ns_add_u32 s%d, s%d, 0x%x" % (sE, sW, 13 - kil, sD, sD, sE, sD, sD, KVBASE))
        a("s_lshl2_add_u32 s%d, s%d, s%d" % (sA, sS, sW))
        if o["stx"]:
            a("s_add_u32 s%d, s%d, s%d" % (sA, sA, sX))
        a("s_mov_b32 s%d, 0" % sR)
        for c, bits in zip(o["stag"], (HI, 0x880, 0x600)):
            if c != "-":
                a("s_bitcmp1_b32 s%d, %s\ns_cselect_b32 s%d, 0x%x, 0\ns_or_b32 s%d, s%d, s%d" % (sA, c, sE, bits, sR, sR, sE))
        a("s_and_b32 s%d, s%d, 0x%x\ns_or_b32 s%d, s%d, s%d" % (sE, sR, HI + 0xc00, sE, sE, sD))
        a("s_and_b32 s%d, s%d, 0x%x\ns_or_b32 s%d, s%d, s%d" % (sA, sR, HI + 0x280, sD, sD, sA))
        a("v_and_b32 v3, 3, v1\nv_bfe_u32 v4, v1, 2, 1\nv_lshl_add_u32 v3, v3, 2, v4")
        a("v_lshrrev_b32 v4, 3, v1\nv_lshlrev_b32 v4, 4, v4\nv_lshl_add_u32 v12, v3, 8, v4")
        a("s_and_b32 s%d, s%d, 0xc00\nv_xor_b32 v12, s%d, v12" % (sA, sR, sA))
        a("v_lshlrev_b32 v13, 4, v1\ns_and_b32 s%d, s%d, 0x200\nv_xor_b32 v10, s%d, v13" % (sA, sR, sA))
        a("v_mov_b32 v2, 0xff\nv_mov_b32 v8, 1\nv_mov_b32 v9, 0\ns_mov_b32 s%d, %d" % (sCNT, o["spin"]))
        self.sel_x()
        a("s_lshl_b32 s%d, s%d, 3\ns_lshr_b32 s%d, s%d, 2\ns_add_u32 s%d, s%d, s%d" % (sRB, sX, sA, sS, sRB, sRB, sA))
        a("s_lshl_b32 s%d, s%d, 10\nv_add_u32 v5, s%d, v13" % (sA, sW, sA))
        a("s_lshl_b32 s%d, s%d, 14\ns_lshl_b32 s%d, s%d, 12\ns_add_u32 s%d, s%d, s%d\ns_add_u32 s%d, s%d, 0x%x" % (
            sF, sU, sA, sW, sF, sF, sA, sF, sF, QX))
        a("s_lshl2_add_u32 s%d, s%d, s%d" % (sA, sU, sW))
        self.spread(sF, sA, min(o["qch"], 16), sA)
        if o["qch"] == 32:
            a("s_lshr_b32 s%d, s%d, 2\ns_lshl_b32 s%d, s%d, %d\ns_add_u32 s%d, s%d, s%d" % (sA, sU, sA, sA, o["sh"] + 4, sF, sF, sA))
        a("s_mov_b32 s%d, 0x05040100\ns_mov_b32 s%d, 0x07060302" % (sG, sH))
        vm.wait("x1")
        a("ds_write_b128 v5, v[16:19] offset:%d\nds_write_b128 v5, v[20:23] offset:%d" % (XS, XS + 4096))
        self.x_operands()
        if o["wd"]:
            a("s_and_b32 s%d, s%d, 7\ns_cmp_eq_u32 s%d, 1\ns_cselect_b64 vcc, -1, 0" % (sA, sS, sA))
        n = W0
        for i in range(24 - W):
            if i >= 8 and o["wd"]:
                vm.wait(i - o["wd"])
                a("s_cbranch_vccnz L_wd%d" % i)
                vm.wait(i)
                if o["wea"]:
                    a("s_cmp_ge_u32 s%d, 2\ns_cbranch_scc1 L_wd%d" % (sX, i))
                    vm.wait(i + 1)
                a("L_wd%d:" % i)
            elif i < 8 or n < i + 1 + W:
                vm.wait(i)
                if i in (0, 8, 10, 12, 15, 18):
                    self.stamp({0: 1, 8: 6, 10: 7, 12: 8, 15: 9, 18: 10}[i], True)
            while n < i + 1 + W:
                issue(n)
                n += 1
            if i < 8:
                self.mf16(40, 24 + 2 * i, WQ + 4 * i, i == 0)
                self.mf16(44, 24 + 2 * i, WQ + 4 * i + 2, i == 0)
            if i == 7:
                for r in range(4):
                    a("v_permlane16_swap_b32 v%d, v%d" % (40 + r, 44 + r))
                for r in range(4):
                    self.dpp("v_add_f32", 40 + r, 44 + r, 40 + r, "row_ror:8")
                a("ds_write_b128 v5, v[40:43] offset:%d" % RQ)
                a("s_waitcnt lgkmcnt(0)\ns_barrier")
                self.stamp(2)
                self.tags()
        a("s_barrier")
        if o["prio"]:
            a("s_setprio %d" % o["prio"])
        self.stamp(3)
        a("v_lshrrev_b32 v3, 5, v1\ns_lshl_b32 s%d, s%d, 1\nv_add_u32 v3, s%d, v3" % (sA, sW, sA))
        a("v_and_b32 v4, 31, v1\nv_mul_u32_u24 v16, 272, v3\nv_lshl_add_u32 v16, v4, 3, v16")
        a("v_mul_u32_u24 v20, 528, v3\nv_lshl_add_u32 v20, v4, 4, v20\nv_lshlrev_b32 v21, 5, v3")
        a("v_lshrrev_b32 v4, 3, v4\nv_lshl_add_u32 v23, v3, 2, v4\nv_lshl_add_u32 v23, v23, 12, v7")
        a("v_and_b32 v3, 7, v1\nv_lshrrev_b32 v4, 3, v1\nv_mul_u32_u24 v17, 272, v3\nv_lshl_add_u32 v17, v4, 4, v17")
        a("v_mul_u32_u24 v18, 528, v3\nv_and_b32 v5, 0x30, v1\ns_mul_i32 s%d, s%d, 4224\nv_add3_u32 v18, v18, v5, s%d" % (sA, sW, sA))
        a("s_lshl_b32 s%d, s%d, 3\nv_lshlrev_b32 v19, 5, v3\nv_add_u32 v19, s%d, v19" % (sA, sW, sA))
        a("v_mov_b32 v22, s%d" % sW)
        a("s_andn2_b32 s%d, 0x80, s%d\nv_add_u32 v24, s%d, v17\ns_and_b32 s%d, s%d, 0x80\nv_add_u32 v17, s%d, v17" % (sA, sR, sA, sA, sR, sA))
        def transpose(j):
            vm.wait(16 + 2 * j + 1)
            for e in range(8):
                a("v_perm_b32 v%d, v%d, v%d, s%d" % (VT + 4 * e + j, VD + 8 * j + 4 + (e >> 1), VD + 8 * j + (e >> 1), sH if e & 1 else sG))
        early = (o["qpos"] + 1) // 2
        for j in range(early):
            transpose(j)
        vm.wait("die" if "q" in o["cut"] else "q3")
        self.die_test(25)
        if o["diag"]:
            a("s_cmp_lg_u32 s%d, 0\ns_cselect_b32 s%d, 1600, 0\ns_add_u32 s%d, s%d, s%d" % (sL, sA, sST + 2, sST + 2, sA))
        a("L_qchk:")
        self.untag(QG, 4, 3)
        a("s_branch L_qok" if o["cut"] else "s_cbranch_vccz L_qok")
        self.narrow()
        self.guard()
        q_loads(13, o["gpol"], "L_q1")
        self.count(1)
        a("s_waitcnt vmcnt(0)\ns_branch L_qchk\nL_qok:")
        self.widen()
        self.stamp(4)
        if o["twice"]:
            a("s_mov_b32 s97, 0\nL_twice:")
        self.sum4(QG)
        a("v_cvt_pk_bf16_f32 v4, v%d, v%d\nv_cvt_pk_bf16_f32 v5, v%d, v%d" % (QG, QG + 1, QG + 2, QG + 3))
        a("ds_write_b64 v16, v[4:5] offset:%d\nds_write_b8 v22, v8 offset:%d" % (QI, F_Q))
        a("s_mov_b32 s%d, 0x01010101" % sA)
        a("L_qi:")
        self.guard()
        a("ds_read_b32 v3, v9 offset:%d" % F_Q)
        a("ds_read_b128 %s, v17 offset:%d\nds_read_b128 %s, v24 offset:%d" % (vr(QB), QI, vr(QB + 4), QI))
        a("s_waitcnt lgkmcnt(0)\nv_cmp_ne_u32 vcc, s%d, v3\ns_cbranch_vccnz L_qi" % sA)
        for hh in range(2):
            for oc in range(4):
                self.mf32(SD + 4 * oc, KD + 8 * oc + 4 * hh, QB + 4 * hh, hh == 0)
        for p in range(2):
            for r in range(4):
                a("v_permlane32_swap_b32 v%d, v%d" % (SD + 8 * p + r, SD + 8 * p + 4 + r))
        for r in range(4):
            self.dpp("v_add_f32", 28 + r, SD + 4 + r, SD + r, "row_ror:8", 0x3)
        for r in range(4):
            self.dpp("v_add_f32", 28 + r, SD + 8 + r, SD + 12 + r, "row_ror:8", 0xc)
        for r in range(4):
            self.rnd(28 + r, 28 + r)
        for r in range(4):
            a("v_mul_f32 v%d, 0x%x, v%d" % (28 + r, SCALE, 28 + r))
        for r in range(4):
            self.rnd(28 + r, 28 + r)
        a("v_max3_f32 v32, v28, v29, v30\nv_max_f32 v32, v32, v31")
        self.dpp("v_max_f32", 32, 32, 32, "row_ror:8")
        self.rows_allreduce("v_max_f32", 32, 3)
        a("s_mov_b32 s%d, 0x%x" % (sB, LOG2E))
        for r in range(4):
            a("v_sub_f32 v%d, v%d, v32" % (28 + r, 28 + r))
        for r in range(4):
            a("v_mul_f32 v%d, s%d, v%d" % (28 + r, sB, 28 + r))
        for r in range(4):
            a("v_exp_f32 v%d, v%d" % (28 + r, 28 + r))
        a("v_cvt_pk_bf16_f32 v36, v28, v29\nv_cvt_pk_bf16_f32 v37, v30, v31")
        a("v_add_f32 v33, v28, v29\nv_add_f32 v30, v30, v31")
        self.dpp("v_mov_b32", 38, 36, None, "row_ror:8")
        self.dpp("v_mov_b32", 39, 37, None, "row_ror:8")
        a("v_add_f32 v33, v33, v30")
        self.dpp("v_add_f32", 33, 33, 33, "row_ror:8")
        self.rows_allreduce("v_add_f32", 33, 3)
        for j in range(early, 4):
            transpose(j)
        for e in range(8):
            self.mf32(PV + 4 * e, VT + 4 * e, 36, True)
        a("s_mov_b32 exec_lo, 0x00ff00ff\ns_mov_b32 exec_hi, 0x00ff00ff")
        for e in range(8):
            a("ds_write_b128 v18, %s offset:%d" % (vr(PV + 4 * e), OL + 64 * e))
        a("ds_write_b64 v19, v[32:33] offset:%d" % MLL)
        a("ds_write_b8 v22, v8 offset:%d" % F_O)
        a("s_mov_b64 exec, -1")
        a("s_lshl_b32 s%d, s%d, 17\ns_lshl_b32 s%d, s%d, 7\ns_add_u32 s%d, s%d, 0x%x\ns_add_u32 s%d, s%d, s%d" % (sG, sX, sD, sS, sG, sG, OX, sC, sG, sD))
        a("s_mov_b32 s%d, 0x07060501\ns_mov_b32 s%d, 0x07060502\ns_mov_b32 s%d, 0x07060503" % (sD, sE, sF))
        a("L_ox:")
        self.guard()
        a("ds_read_b32 v3, v9 offset:%d" % F_O)
        a("ds_read_b128 v[28:31], v21 offset:%d\nds_read_b128 v[32:35], v21 offset:%d" % (MLL, MLL + 16))
        for k in range(4):
            a("ds_read_b128 %s, v20 offset:%d" % (vr(QG + 4 * k), OL + 4224 * k))
        a("s_waitcnt lgkmcnt(0)\nv_cmp_ne_u32 vcc, s%d, v3\ns_cbranch_vccnz L_ox" % sA)
        a("v_max3_f32 v36, v28, v30, v32\nv_max_f32 v36, v36, v34")
        for k in range(4):
            a("v_sub_f32 v%d, v%d, v36" % (28 + 2 * k, 28 + 2 * k))
        for k in range(4):
            a("v_mul_f32 v%d, s%d, v%d" % (28 + 2 * k, sB, 28 + 2 * k))
        for k in range(4):
            a("v_exp_f32 v%d, v%d" % (28 + 2 * k, 28 + 2 * k))
        a("v_mul_f32 v37, v28, v29")
        for k in range(1, 4):
            a("v_fmac_f32 v37, v%d, v%d" % (28 + 2 * k, 29 + 2 * k))
        a("v_log_f32 v38, v37\nv_rcp_f32 v37, v37")
        for r in range(4):
            a("v_mul_f32 v%d, v28, v%d" % (QG + r, QG + r))
        a("v_fmac_f32 v38, s%d, v36" % sB)
        for k in range(1, 4):
            for r in range(4):
                a("v_fmac_f32 v%d, v%d, v%d" % (QG + r, 28 + 2 * k, QG + 4 * k + r))
        for r in range(4):
            a("v_mul_f32 v%d, v37, v%d" % (QG + r, QG + r))
        a("v_bfi_b32 v%d, v2, s%d, v%d" % (QG, sT0, QG))
        for r in range(1, 4):
            a("v_perm_b32 v%d, v%d, v38, s%d" % (QG + r, QG + r, sD + r - 1))
        if "O" not in o["cut"]:
            self.publish("L_po", QG, 23, sC)
        if o["twice"]:
            a("s_cmp_lg_u32 s97, 0\ns_cbranch_scc1 L_tw2\ns_mov_b32 s97, 1")
            self.stamp(5)
            a("s_branch L_twice\nL_tw2:")
            self.stamp(10)
        else:
            self.stamp(5)
        self.ack(10)
        a("s_cmp_ge_u32 s%d, 2\ns_cbranch_scc1 L_H\ns_cmp_eq_u32 s%d, 1\ns_cbranch_scc1 L_HP" % (sW, sW))
        a("s_lshl_b32 s%d, s%d, 12\ns_add_u32 s%d, s%d, s%d\ns_mov_b32 s%d, 0x0c04000c" % (sC, sS, sC, sC, sG, sE))
        a("s_and_b32 s%d, s%d, 3\ns_lshl_b32 s%d, s%d, 5\ns_add_u32 s%d, s%d, s%d" % (sD, sU, sD, sD, sD, sD, sS))
        a("s_lshr_b32 s%d, s%d, 2\ns_lshl1_add_u32 s%d, s%d, s%d\ns_lshl_b32 s%d, s%d, 7\ns_add_u32 s%d, s%d, 0x%x" % (sA, sU, sD, sD, sA, sD, sD, sD, sD, O2))
        if o["cown"]:
            a("v_mov_b32 v3, s%d\nds_write_b32 v9, v3 offset:%d" % (sL, F_L))
            a("s_lshl_b32 s%d, s%d, 10" % (sF, sS))
        else:
            a("s_lshr_b32 s%d, s%d, 4\ns_xor_b32 s%d, s%d, s%d\ns_or_b32 s%d, s%d, s%d" % (sB, sS, sA, sA, sB, sL, sL, sA) if o["o2loc"] else "s_mov_b32 s%d, 1" % sL)
            a("s_lshl_b32 s%d, s%d, 9" % (sF, sRB))
        a("s_add_u32 s%d, s%d, 0x%x\ns_and_b32 s%d, s%d, 0xffff\ns_mov_b32 s%d, 0xffff" % (sF, sF, O2, sG, sT, sH))
        a("s_lshr_b32 s%d, s%d, 9" % (sA, sD))
        self.spread(sD, sA, o["och"], sA)
        self.spread(sF, sRB, o["och"], sA)
        a("v_and_b32 v3, 15, v1\nv_lshrrev_b32 v4, 4, v1\nv_lshlrev_b32 v27, 1, v3\nv_lshl_add_u32 v27, v4, 7, v27\nv_mov_b32 v26, 0x101")
        if o["osrc"] == "x":
            a("s_mov_b32 s%d, 0" % sC)
        if "o" in o["xpre"]:
            a("s_mov_b64 exec, 0xff")
            self.load(VT, 13, "ws", "s%d" % sD, 0, o["xppol"])
            a("s_mov_b64 exec, -1")
        self.flag_wait("L_to", 9, F_T)
        self.stamp(6)
        def o_loads(p):
            self.count(32)
            for m in range(0 if "o" in o["cut"] else 4):
                self.load(WQ + 4 * m, 13, o["osrc"][:1] or "ws", "s%d" % sC, m * 1024, p)
        if o["opol"] != o["lpol"]:
            o_loads(o["opol"])
            a("s_branch L_ogc")
        a("L_og:")
        self.guard()
        o_loads(o["lpol"])
        a("L_ogc:")
        a("s_waitcnt vmcnt(0)")
        for m in range(4):
            d = WQ + 4 * m
            a("v_xor_b32 v%d, s%d, v%d\nv_perm_b32 v%d, v%d, v%d, s%d" % (d, sT0, d, 28 + m, d + 2, d + 1, sE))
            a("v_lshl_or_b32 v%d, v%d, 24, v%d" % (28 + m, d + 3, 28 + m))
        a("v_or3_b32 v3, v%d, v%d, v%d\nv_or_b32 v3, v3, v%d\nv_and_b32 v3, v2, v3\nv_cmp_ne_u32 vcc, 0, v3" % tuple(WQ + 4 * m for m in range(4)))
        a("v_max3_f32 v36, v28, v29, v30\nv_max_f32 v36, v36, v31")
        if not o["cut"]:
            self.again("L_og")
        self.dpp("v_max_f32", 36, 36, 36, "row_ror:8")
        self.rows_allreduce("v_max_f32", 36, 3)
        for m in range(4):
            a("v_sub_f32 v%d, v%d, v36" % (28 + m, 28 + m))
        for m in range(4):
            a("v_exp_f32 v%d, v%d" % (28 + m, 28 + m))
        for r in range(4):
            a("v_mul_f32 v%d, v28, v%d" % (40 + r, WQ + r))
        a("v_add_f32 v36, v28, v29\nv_add_f32 v37, v30, v31")
        for m in range(1, 4):
            for r in range(4):
                a("v_fmac_f32 v%d, v%d, v%d" % (40 + r, 28 + m, WQ + 4 * m + r))
            if m == 1:
                a("v_add_f32 v36, v36, v37")
            if m == 2:
                self.dpp("v_add_f32", 36, 36, 36, "row_ror:8")
        self.rows_allreduce("v_add_f32", 36, 3)
        a("v_rcp_f32 v36, v36")
        self.rows_scatter_sum([40])
        self.dpp("v_add_f32", 40, 40, 40, "row_ror:8")
        a("v_mul_f32 v40, v36, v40")
        self.rnd(40, 40)
        a("v_or_b32 v40, s%d, v40\nv_mov_b32 v41, v40\nv_permlane16_swap_b32 v40, v41" % sG)
        a("v_mov_b32 v42, v40\nv_mov_b32 v43, v41\nv_permlane32_swap_b32 v40, v42\nv_permlane32_swap_b32 v41, v43")
        a("s_mov_b64 exec, 0xff")
        if "2" not in o["cut"]:
            self.publish("L_p2", 40, 13, sD, None if o["cown"] else sL)
        self.stamp(8)
        a("s_mov_b64 exec, -1" if o["cown"] else "s_mov_b32 exec_lo, -1\ns_and_b32 s%d, s%d, 1\ns_lshl_b32 s%d, s%d, 3\ns_lshr_b32 s%d, 0xff00ff00, s%d" % (sE, sX, sE, sE, sE, sE))
        if o["lag"] & 2:
            a("s_waitcnt vmcnt(0)")
        if o["t2"]:
            self.flag_wait("L_t2", 9, F_T + 4)
        self.stamp(9)
        a("L_o2:")
        self.guard()
        self.count(32 * 8)
        if "2" not in o["cut"] and o["o2loc"] and not o["cown"]:
            a("s_mov_b32 exec_lo, s%d" % sE)
            self.load(44, 13, "ws", "s%d" % sF, 0, o["rpol"])
            a("s_not_b32 exec_lo, s%d" % sE)
            self.load(44, 13, "ws", "s%d" % sF, 0, o["lpol"])
            a("s_mov_b32 exec_lo, -1")
        elif "2" not in o["cut"]:
            self.load(44, 13, "ws", "s%d" % sF, 0, o["rpol"])
        a("s_waitcnt vmcnt(0)")
        for r in range(4):
            a("v_xor_b32 v%d, s%d, v%d" % (44 + r, sG, 44 + r))
        a("v_or3_b32 v3, v44, v45, v46\nv_or_b32 v3, v3, v47\nv_and_b32 v3, s%d, v3\nv_cmp_ne_u32 vcc, 0, v3" % sH)
        if not o["cut"]:
            a("s_cbranch_vccnz L_o2")
        for r in range(4):
            a("ds_write_b16_d16_hi v27, v%d offset:%d" % (44 + r, IM + 32 * r))
        a("ds_write_b16 v9, v26 offset:%d" % F_IM)
        self.writeback("O")
        self.stamp(7)
        self.finish()
        a("L_HP:")
        def fpre():
            a("s_lshl_b32 s%d, s%d, %d\ns_lshl_b32 s%d, s%d, %d\ns_add_u32 s%d, s%d, s%d\ns_add_u32 s%d, s%d, 0x%x" % (
                sA, sX, 16 - o["cown"], sC, sS, 11 - o["cown"], sA, sA, sC, sA, sA, FX))
            for m in range(2 - o["cown"]):
                self.load(VT + 4 * m, 13, "ws", "s%d" % sA, 1024 * m, o["fppol"])
        if o["fpre"] == "a":
            fpre()
        self.gu_tile()
        if o["h2"]:
            a("s_lshl1_add_u32 s%d, s%d, s%d\ns_mul_i32 s%d, s%d, 28672\ns_lshl_b32 s%d, s%d, 9" % (sC, sOK, sH, sC, sC, sG, sG))
            a("s_add_u32 s%d, s%d, s%d\ns_add_u32 s%d, s%d, 0x%x\nv_mov_b32 v26, v13" % (sG, sG, sC, sG, sG, HX))
            a("v_and_b32 v6, 1, v1\nv_lshlrev_b32 v27, 3, v6\nv_bfe_u32 v5, v1, 1, 1\nv_lshl_add_u32 v27, v5, 8, v27")
        else:
            a("s_lshl_b32 s%d, s%d, 9\ns_mul_i32 s%d, s%d, 57344\ns_add_u32 s%d, s%d, s%d\ns_add_u32 s%d, s%d, 0x%x" % (
                sG, sG, sC, sKS, sG, sG, sC, sG, sG, HX))
            a("v_mov_b32 v5, s%d\nv_mov_b32 v6, s%d\nv_cmp_gt_u32 vcc, 32, v1\nv_lshrrev_b32 v4, 5, v1\nv_cndmask_b32 v5, v6, v5, vcc" % (sH, sOK))
            a("v_mul_u32_u24 v26, %d, v4\nv_add3_u32 v26, v26, v13, v5" % (28672 - 512))
            a("v_and_b32 v6, 1, v1\nv_lshlrev_b32 v27, 3, v6\nv_lshl_add_u32 v27, v4, 7, v27\nv_bfe_u32 v5, v1, 1, 1\nv_lshl_add_u32 v27, v5, 8, v27")
        a("v_bfe_u32 v5, v1, 2, 3\nv_lshl_add_u32 v27, v5, 4, v27\ns_mov_b32 s%d, 0x01010101" % sA)
        if "h" in o["xpre"]:
            self.load(VT + 8, 26, "ws", "s%d" % sG, 0, o["xppol"])
        a("L_hp:")
        self.guard()
        a("ds_read_b32 v3, v9 offset:%d" % C_H)
        for k in range(4):
            a("ds_read2st64_b64 %s, v27 offset0:%d offset1:%d" % (vr(WQ + 4 * k), RH // 512 + 2 * k, RH // 512 + 2 * k + 1))
        a("s_waitcnt lgkmcnt(0)\nv_cmp_ne_u32 vcc, s%d, v3\ns_cbranch_vccnz L_hp" % sA)
        self.sum4(WQ)
        self.tag4(WQ, [WQ, WQ + 1, WQ + 2, WQ + 3])
        if o["h2"]:
            a("s_mov_b32 exec_hi, 0")
        if "H" not in o["cut"]:
            self.publish("L_ph", WQ, 26, sG, None if o["cown"] else sL)
        if o["h2"]:
            a("s_mov_b32 exec_hi, -1")
        if o["fpre"] == "c":
            self.flag_wait("L_tp", 9, F_T + 4)
        if o["fpre"] in ("b", "c"):
            fpre()
        if o["fpre"] or o["xpre"]:
            a("s_waitcnt vmcnt(0)")
        self.stamp(7)
        self.finish()
        a("L_H:")
        if o["cown"]:
            return self.h_gather()
        a("s_lshl_b32 s%d, s%d, 1\ns_add_u32 s%d, s%d, s%d\ns_mul_i32 s%d, s%d, 224" % (sF, sRB, sF, sF, sW, sF, sF))
        a("s_add_u32 s%d, s%d, 0x%x\ns_add_u32 s%d, s%d, 28672" % (sF, sF, HX - 448, sG, sF))
        a("v_and_b32 v3, 15, v1\nv_min_u32 v3, 13, v3\nv_lshrrev_b32 v5, 4, v1")
        a("v_mul_u32_u24 v26, 57344, v5\nv_lshl_add_u32 v26, v3, 4, v26")
        a("v_and_b32 v4, 1, v3\nv_and_b32 v6, 1, v5\nv_lshl_add_u32 v4, v4, 1, v6\nv_and_b32 v3, 14, v3")
        a("v_lshl_add_u32 v27, v4, 5, v3\nv_lshrrev_b32 v5, 1, v5\nv_lshl_add_u32 v27, v5, 4, v27")
        a("s_lshl_b32 s%d, s%d, 7\nv_add_u32 v27, s%d, v27" % (sA, sW, sA))
        self.flag_wait("L_th", 22, F_T)
        self.stamp(6)
        def h_loads(p):
            self.count(1024)
            if "h" not in o["cut"]:
                self.load(QB, 26, "ws", "s%d" % sF, 0, p)
                self.load(QB + 4, 26, "ws", "s%d" % sG, 0, p)
        if o["hpol"] != o["lpol"]:
            h_loads(o["hpol"])
            a("s_branch L_hgc")
        a("L_hg:")
        self.guard()
        h_loads(o["lpol"])
        a("L_hgc:")
        a("s_waitcnt vmcnt(0)")
        self.untag(QB, 2, 3)
        if not o["cut"]:
            self.again("L_hg")
        self.rows_scatter_sum([QB, QB + 4])
        self.rnd(4, QB)
        self.rnd(5, QB + 4)
        self.sigmoid(4, 4)
        a("v_mul_f32 v4, v4, v5")
        self.rnd(4, 4)
        a("ds_write_b16_d16_hi v27, v4 offset:%d\nds_write_b8 v22, v8 offset:%d" % (IM, F_IM))
        self.stamp(7)
        self.finish()

    def h_gather(self):
        a, o = self.a, self.o
        G, U = 48, 56
        a("s_lshl1_add_u32 s%d, s%d, s%d\ns_mul_i32 s%d, s%d, 448\ns_add_u32 s%d, s%d, 0x%x" % (sC, sS, sW, sC, sC, sC, sC, HX - 896))
        a("s_add_u32 s%d, s%d, %d\ns_add_u32 s%d, s%d, %d\ns_add_u32 s%d, s%d, %d" % (sD, sC, 2 * 57344, sE, sC, 28672, sF, sD, 28672))
        a("v_and_b32 v3, 31, v1\nv_min_u32 v3, 27, v3\nv_lshrrev_b32 v5, 5, v1")
        a("v_mul_u32_u24 v26, 57344, v5\nv_lshl_add_u32 v26, v3, 4, v26")
        if o["h2"]:
            mask = sum(1 << (7 * x + min((x + 3) & 7, 6)) for x in range(8))
            a("s_lshl1_add_u32 s%d, s%d, s%d\ns_mul_i32 s%d, s%d, 28\ns_sub_u32 s%d, s%d, 56\nv_add_u32 v4, s%d, v3\nv_lshrrev_b32 v4, 5, v4" % (sA, sS, sW, sA, sA, sA, sA, sA))
            a("s_mov_b32 s%d, 0x%x\ns_mov_b32 s%d, 0x%x\nv_lshrrev_b64 v[6:7], v4, s[%d:%d]" % (sP, mask & 0xffffffff, sP + 1, mask >> 32, sP, sP + 1))
            a("v_bfe_i32 v6, v6, 0, 1\nv_mov_b32 v7, 0x%x\nv_bfi_b32 v25, v6, v26, v7" % OOB)
            for j in range(4):
                a("v_and_b32 v%d, s%d, v6" % (28 + j, sT0 + j))
        a("v_cmp_lt_u32 vcc, 13, v3\nv_add_u32 v4, %d, v3\nv_cndmask_b32 v4, v3, v4, vcc" % (128 - 14))
        a("v_and_b32 v3, 1, v3\nv_and_b32 v4, -2, v4\nv_lshl_add_u32 v27, v3, 6, v4\nv_lshl_add_u32 v27, v5, 4, v27")
        a("s_lshl_b32 s%d, s%d, 8\nv_add_u32 v27, s%d, v27" % (sA, sW, sA))
        self.flag_wait("L_th", 22, F_T)
        self.stamp(6)
        a("L_hg:")
        self.guard()
        self.count(1024)
        if "h" not in o["cut"]:
            for m in range(0, 4, 1 + o["hcut"]):
                self.load(G + 4 * m, 25 if o["h2"] and m & 1 else 26, "ws", "s%d" % (sC + m), 0, o["hpol2"])
        a("s_waitcnt vmcnt(0)")
        self.untag(G, 4, 3, vt=28 if o["h2"] else None)
        if not o["cut"]:
            self.again("L_hg")
        for b in (G, U):
            a("v_pk_add_f32 v[%d:%d], v[%d:%d], v[%d:%d]" % (b, b + 1, b, b + 1, b + 4, b + 5))
            a("v_pk_add_f32 v[%d:%d], v[%d:%d], v[%d:%d]" % (b + 2, b + 3, b + 2, b + 3, b + 6, b + 7))
        for b in (G, U):
            a("v_permlane32_swap_b32 v%d, v%d\nv_permlane32_swap_b32 v%d, v%d" % (b, b + 2, b + 1, b + 3))
        for b in (G, U):
            a("v_pk_add_f32 v[%d:%d], v[%d:%d], v[%d:%d]" % (b, b + 1, b, b + 1, b + 2, b + 3))
        for r in (G, G + 1, U, U + 1):
            self.rnd(r, r)
        for op in ("v_mul_f32 v%d, " + "0x%x" % (LOG2E ^ 0x80000000) + ", v%d", "v_exp_f32 v%d, v%d", "v_add_f32 v%d, 1.0, v%d", "v_rcp_f32 v%d, v%d",
                   "v_cvt_pk_bf16_f32 v%d, 0, v%d"):
            for r in (G, G + 1):
                a(op % (r, r))
        a("v_mul_f32 v%d, v%d, v%d\nv_mul_f32 v%d, v%d, v%d" % (G, G, U, G + 1, G + 1, U + 1))
        a("v_cvt_pk_bf16_f32 v4, v%d, v%d" % (G, G + 1))
        a("ds_write_b16 v27, v4 offset:%d\nds_write_b16_d16_hi v27, v4 offset:%d\nds_write_b8 v22, v8 offset:%d" % (IM, IM + 32, F_IM))
        self.stamp(7)
        self.finish()

    def preread(self):
        a, o = self.a, self.o
        if o["pre"]:
            a("s_lshl_b32 s%d, s%d, 5\ns_add_u32 s%d, s%d, s%d\nv_lshlrev_b32 v40, 4, v1" % (sU, sX, sU, sU, sS))
        if "o" in o["pre"]:
            a("s_lshl2_add_u32 s%d, s%d, s%d\ns_lshl_b32 s%d, s%d, 10\ns_add_u32 s%d, s%d, 0x%x" % (sR, sU, sW, sR, sR, sR, sR, OX))
            self.load(192, 40, "ws", "s%d" % sR, 0, o["ppol"])
        if "h" in o["pre"]:
            a("s_cmp_lg_u32 s%d, 1\ns_cbranch_scc1 L_npre" % sW)
            a("s_lshr_b32 s%d, s%d, 2\ns_mul_i32 s%d, s%d, 28672\ns_mul_i32 s%d, s%d, 3584\ns_add_u32 s%d, s%d, s%d" % (sR, sS, sR, sR, sU, sX, sR, sR, sU))
            a("s_and_b32 s%d, s%d, 3\ns_mul_i32 s%d, s%d, 896\ns_add_u32 s%d, s%d, s%d\ns_add_u32 s%d, s%d, 0x%x" % (sU, sS, sU, sU, sR, sR, sU, sR, sR, HX))
            a("s_mov_b32 exec_hi, 0xffffff")
            self.load(48, 40, "ws", "s%d" % sR, 0, o["ppol"])
            a("s_mov_b32 exec_hi, -1\nL_npre:")

    def writeback(self, at):
        if at in self.o["wb"]:
            self.a("s_cmp_lg_u32 s%d, %d\ns_cbranch_scc1 L_nwb%s\nbuffer_wbl2 sc1\nL_nwb%s:" % (sS, self.o["wbs"], at, at))

    def finish(self):
        self.a("s_waitcnt lgkmcnt(0)")
        self.a("s_branch L_end" if self.o["stamps"] or self.o["hold"] else "s_endpgm")

    def f_waves(self):
        a, o = self.a, self.o
        W, pol = o["wf"], o["pol"]
        SEL, GU, WO, WD, Y, AO, DA, DB, VG = 56, 64, 128, 160, 188, 192, 224, 228, 232
        a("L_F:")
        for n in ("gw", "wg", "wu", "wo", "wd", "out"):
            self.ptr(n)
        self.desc("gw")
        if o["pf"] == 1:
            a("s_getpc_b64 s[%d:%d]\nL_pc:" % (sP, sP + 1))
            a("s_sub_u32 s%d, s%d, L_pc-%s_kernel\ns_subb_u32 s%d, s%d, 0" % (sP, sP, NAME, sP + 1, sP + 1))
            a("s_lshl_b32 s%d, s%d, 9\nv_lshl_add_u32 v250, v7, 2, s%d\nv_min_u32 v250, L_exit-%s_kernel, v250" % (sC, sS, sC, NAME))
            a("v_mov_b32 v251, s%d\nv_add_co_u32 v250, vcc, s%d, v250\ns_nop 1\nv_addc_co_u32 v251, vcc, 0, v251, vcc" % (sP + 1, sP))
            a("s_cmp_lg_u32 s%d, 0\ns_cbranch_scc1 L_nopf\nglobal_load_dword v252, v[250:251], off\nL_nopf:" % sW)
        a("v_and_b32 v3, 31, v1\nv_lshlrev_b32 v253, 4, v3\nv_lshrrev_b32 v4, 5, v1\nv_lshl_add_u32 v254, v4, 11, v253")
        a("v_mov_b32 v8, 1\nv_mov_b32 v9, 0\nv_mov_b32 v2, 0xff")
        a("s_waitcnt lgkmcnt(0)")
        a("s_load_dword s%d, s[%d:%d], 0" % (sT, SRD["ws"], SRD["ws"] + 1))
        self.stamp(1)
        self.desc("ws")
        if o["prepos"] == 0:
            self.preread()
        for n in ("wg", "wu", "wo", "wd", "out"):
            self.desc(n)
        a("v_lshlrev_b32 v3, 2, v1\nv_and_b32 v3, 31, v3\nds_write_b32 v3, v9")
        a("s_mov_b32 s%d, %d" % (sCNT, o["spin"]))
        a("s_lshl_b32 s%d, s%d, 2\nv_lshlrev_b32 v234, 4, v4\nv_add_u32 v235, s%d, v234" % (sA, sW, sA))
        self.gu_tile()
        if o["h2"]:
            a("s_cmp_eq_u32 s%d, 1\ns_cselect_b64 s[%d:%d], s[%d:%d], s[%d:%d]" % (sH, SRD["wg"], SRD["wg"] + 1, SRD["wu"], SRD["wu"] + 1, SRD["wg"], SRD["wg"] + 1))
            a("s_cmp_eq_u32 s%d, 8\ns_cselect_b32 s%d, 0x%x, 0\ns_mov_b32 s%d, 0" % (sE, sOK, OOB, sH))
            a("s_mov_b32 s%d, %d\ns_bitcmp1_b32 s%d, 0\ns_cselect_b32 s%d, %d, s%d" % (sR, 7168 * (256 - 14), sKS, sR, -7168 * (256 + 14), sR))
            a("s_xor_b32 s97, s%d, 4\ns_lshl_b32 s97, s97, 7" % sB)
        a("s_lshr_b32 s%d, s%d, 1\nv_mov_b32 v244, s%d\ns_add_u32 s%d, s%d, s%d\nv_mov_b32 v247, s%d" % (sC, sW, sC, sE, sE, sC, sE))
        L = o["gil"]
        if L:
            a("v_lshrrev_b32 v3, %d, v6\nv_or_b32 v6, v3, v5" % L)
        a("v_mul_u32_u24 v11, 7168, v6\nv_add_u32 v11, v11, v7")
        a("v_add_u32 v246, s%d, v11\nv_add_u32 v11, s%d, v11" % (sOK, sH))
        a("s_mul_i32 s%d, s%d, %d\ns_lshl_b32 s%d, s%d, 7\ns_add_u32 s%d, s%d, s%d" % (sB, sB, (64 >> L) * 7168, sC, sG, sB, sB, sC))
        self.q_block(sA, sC)
        a("s_lshr_b32 s%d, s%d, 2\ns_lshl_b32 s%d, s%d, 12\ns_and_b32 s%d, s%d, 3\ns_lshl_b32 s%d, s%d, 8" % (sF, sA, sF, sF, sA, sA, sA, sA))
        a("s_add_u32 s%d, s%d, s%d\ns_lshl_b32 s%d, s%d, 10\ns_add_u32 s%d, s%d, s%d\ns_add_u32 s%d, s%d, 0x%x" % (
            sF, sF, sA, sA, sKS, sF, sF, sA, sF, sF, QX))
        a("s_lshr_b32 s%d, s%d, 12" % (sA, sF))
        self.spread(sF, sA, min(o["qch"], 16), sA)
        a("s_lshl_b32 s%d, s%d, 3\ns_lshr_b32 s%d, s%d, 2\ns_add_u32 s%d, s%d, s%d" % (sRB, sX, sA, sS, sRB, sRB, sA))
        if o["colmap"]:
            a("s_and_b32 s%d, s%d, 3\ns_and_b32 s%d, s%d, 1" % (sH, sS, sOK, sW))
            a("s_lshl_b32 s%d, s%d, 1\ns_add_u32 s%d, s%d, s%d\ns_lshl_b32 s%d, s%d, 8" % (sC, sH, sC, sC, sOK, sC, sC))
        else:
            a("s_and_b32 s%d, s%d, 3\ns_xor_b32 s%d, s%d, 2\ns_and_b32 s%d, s%d, 1" % (sH, sS, sH, sH, sOK, sW))
            a("s_lshl_b32 s%d, s%d, 3\ns_add_u32 s%d, s%d, s%d\ns_lshl_b32 s%d, s%d, 7" % (sC, sOK, sC, sC, sH, sC, sC))
        a("s_lshl_b32 s%d, s%d, 1\ns_lshr_b32 s%d, s%d, 1\ns_add_u32 s%d, s%d, s%d" % (sE, sRB, sA, sW, sE, sE, sA))
        if o["cown"]:
            a("s_lshl2_add_u32 s%d, s%d, s%d" % (sE, sS, sW))
            if o["colmap"]:
                a("s_lshl_b32 s%d, s%d, 8" % (sC, sX))
            else:
                a("s_and_b32 s%d, s%d, 1\ns_lshr_b32 s%d, s%d, 1\ns_lshl3_add_u32 s%d, s%d, s%d\ns_lshl_b32 s%d, s%d, 7" % (sC, sX, sA, sX, sC, sC, sA, sC, sC))
        a("s_lshr_b32 s%d, s%d, 2\ns_lshl_b32 s%d, s%d, 18\ns_and_b32 s%d, s%d, 3\ns_lshl_b32 s%d, s%d, 12" % (sD, sE, sD, sD, sA, sE, sA, sA))
        a("s_add_u32 s%d, s%d, s%d\ns_add_u32 s%d, s%d, s%d" % (sD, sD, sA, sD, sD, sC))
        a("s_mul_i32 s%d, s%d, %d\ns_add_u32 s%d, s%d, s%d" % (sE, sE, 28 * 2048, sE, sE, sC))
        a("v_lshrrev_b32 v3, 4, v1\nv_lshl_add_u32 v6, v5, %d, v7" % (7 if o["colmap"] else 9))
        a("v_lshl_add_u32 v12, v3, 14, v6\nv_lshl_add_u32 v13, v3, 11, v6")
        if o["oil"]:
            a("s_lshr_b32 s%d, s%d, 2\ns_lshr_b32 s%d, s%d, 1\ns_lshl1_add_u32 s%d, s%d, s%d\ns_lshl_b32 s%d, s%d, 13" % (sD, sS, sA, sW, sD, sD, sA, sD, sD))
            a("s_add_u32 s%d, s%d, s%d\ns_mul_i32 s%d, s%d, %d\ns_add_u32 s%d, s%d, s%d" % (sD, sD, sC, sE, sX, 448 * 2048, sE, sE, sD))
            a("s_lshl_b32 s%d, s%d, 20\ns_add_u32 s%d, s%d, s%d\nv_mov_b32 v12, v13" % (sA, sX, sD, sD, sA))
        a("s_lshl_b32 s%d, s%d, 10\nv_lshlrev_b32 v236, 4, v1\nv_add_u32 v236, s%d, v236" % (sA, sW, sA))
        a("v_mov_b32 v240, s%d" % sW)
        a("v_and_b32 v5, 15, v1\nv_lshlrev_b32 v6, 4, v5\nv_lshl_add_u32 v239, v3, 16, v6")
        if o["qch"] == 32:
            a("v_lshl_add_u32 v239, v3, %d, v239" % (o["sh"] + 4))
        a("v_and_b32 v6, 1, v1\nv_lshl_add_u32 v237, v3, 1, v6\nv_lshlrev_b32 v237, 8, v237")
        a("v_lshrrev_b32 v5, 1, v5\nv_lshl_add_u32 v237, v5, 4, v237")
        a("v_lshlrev_b32 v255, 8, v6\nv_lshl_add_u32 v255, v4, 9, v255\nv_bfe_u32 v5, v1, 1, 4\nv_lshl_add_u32 v255, v5, 4, v255")
        own, fq = o["cown"], o["fq"] if o["cown"] else 2
        if not own:
            a("s_lshl_b32 s%d, s%d, 10\nv_add_u32 v255, s%d, v255" % (sA, sOK, sA))
        a("v_lshrrev_b32 v4, %d, v1\nv_and_b32 v5, %d, v1\nv_lshlrev_b32 v241, 4, v5\nv_lshl_add_u32 v241, v4, %d, v241" % (fq, (1 << fq) - 1, 9 + fq if own else 12))
        a("v_lshrrev_b32 v4, 3, v1\nv_lshlrev_b32 v243, 7, v%d\nv_lshl_add_u32 v243, v4, 4, v243" % (240 if own else 244))
        a("v_lshlrev_b32 v242, 4, v1\nv_lshlrev_b32 v245, 3, v5\nv_lshl_add_u32 v245, v3, 1, v245")
        if own:
            nr = (1 << (fq - 1)) - 1
            a("s_lshl_b32 s%d, s%d, 15\ns_add_u32 s%d, s%d, 0x%x\ns_lshl_b32 s%d, s%d, %d\ns_add_u32 s%d, s%d, s%d" % (sA, sX, sA, sA, FX, sC, sS, 4 + fq, sP, sA, sC))
            a("s_andn2_b32 s%d, s%d, %d\ns_lshl_b32 s%d, s%d, 10\ns_add_u32 s%d, s%d, s%d" % (sC, sS, nr, sC, sC, sP + 1, sA, sC))
            a("s_and_b32 s%d, s%d, %d\ns_xor_b32 s%d, s%d, %d" % (sOK, sS, nr, sOK, sOK, o["fsel"] & nr))
        else:
            a("s_lshl_b32 s%d, s%d, 2\nv_mov_b32 v10, s%d" % (sA, sOK, sA))
            a("s_lshl_b32 s%d, s%d, 1\ns_add_u32 s%d, s%d, s%d\ns_lshl_b32 s%d, s%d, 16" % (sA, sH, sA, sA, sOK, sA, sA))
            a("s_lshl_b32 s%d, s%d, 6\ns_add_u32 s%d, s%d, s%d\ns_add_u32 s%d, s%d, 0x%x" % (sC, sRB, sA, sA, sC, sP, sA, FX))
            if o["floc"]:
                a("s_lshl1_add_u32 s%d, s%d, s%d\ns_lshl_b32 s%d, s%d, 6\ns_lshl_b32 s%d, s%d, 16\ns_add_u32 s%d, s%d, s%d\ns_add_u32 s%d, s%d, 0x%x" % (
                    sA, sS, sOK, sA, sA, sC, sX, sA, sA, sC, sP, sA, FX))
            a("s_and_b32 s%d, s%d, 1\ns_or_b32 s%d, s%d, s%d" % (sA, sS, sOK, sOK, sA))
            a("s_lshl_b32 s%d, s%d, 16\ns_lshl_b32 s%d, s%d, 11\ns_add_u32 s%d, s%d, s%d\ns_add_u32 s%d, s%d, 0x%x" % (sA, sX, sC, sS, sA, sA, sC, sP + 1, sA, FX))
        a("s_bfe_u32 s%d, s%d, 0x10003" % (sC, sS))
        if o["colmap"]:
            a("s_lshl_b32 s%d, s%d, 1\ns_add_u32 s%d, s%d, s%d" % (sA, sX, sA, sA, sC))
        else:
            a("s_lshl_b32 s%d, s%d, 2\ns_lshr_b32 s%d, s%d, 1\ns_add_u32 s%d, s%d, s%d" % (sC, sC, sA, sX, sA, sA, sC))
            a("s_and_b32 s%d, s%d, 1\ns_lshl_b32 s%d, s%d, 3\ns_add_u32 s%d, s%d, s%d" % (sC, sX, sC, sC, sA, sA, sC))
        a("s_and_b32 s%d, s%d, 16\ns_add_u32 s%d, s%d, s%d\ns_lshl_b32 s%d, s%d, 7" % (sC, sS, sA, sA, sC, sA, sA))
        a("s_and_b32 s%d, s%d, %d\ns_lshl_b32 s%d, s%d, 4\ns_add_u32 s%d, s%d, s%d" % (sC, sS, 8 - (1 << (fq - 1)), sC, sC, sKS, sA, sC))
        self.sel_x()
        a("v_lshlrev_b32 v4, 4, v1\nv_mov_b32 v3, 0x0c0c0100\nv_alignbit_b32 v5, v3, v3, v4")
        a("v_mov_b32 v3, 0x0c0c0302\nv_alignbit_b32 v6, v3, v3, v4\nv_bfe_u32 v7, v1, 1, 2\nv_mov_b32 v4, 0x0c0c0c0c")
        for j in range(4):
            a("v_cmp_eq_u32 vcc, %d, v7\nv_cndmask_b32 v%d, v4, v5, vcc\nv_cndmask_b32 v%d, v4, v6, vcc" % (j, SEL + j, SEL + 4 + j))
        a("s_lshl_b32 s%d, s%d, 9\ns_waitcnt lgkmcnt(0)" % (sC, sW))
        self.tags()
        a("s_cmp_lg_u32 s%d, 0\ns_cbranch_scc1 L_nodie" % sW)
        a("s_lshl_b32 s%d, s%d, 5\ns_add_u32 s%d, s%d, s%d\ns_lshl_b32 s%d, s%d, 2\ns_add_u32 s%d, s%d, 0x%x" % (sA, sX, sA, sA, sS, sA, sA, sA, sA, DX))
        a("s_xor_b32 s%d, s%d, s%d\nv_mov_b32 v3, s%d\ns_mov_b64 exec, 1" % (sU, sL, sT, sU))
        a("buffer_store_dword v3, v9, %s, s%d offen\ns_mov_b64 exec, -1" % (srd("ws"), sA))
        if "q" in o["xpre"]:
            a("s_mov_b32 exec_hi, 0")
            self.load(AO, 239, "ws", "s%d" % sF, 0, o["xppol"])
            a("s_mov_b32 exec_hi, -1")
        if o["qloc"]:
            a("s_waitcnt vmcnt(0)")
            self.die_read(25)
        a("L_nodie:\ns_barrier")
        a("s_cmp_lg_u32 s%d, 0\ns_cbranch_scc1 L_noq" % sW)
        for k in range(4):
            a("ds_read_b128 %s, v237 offset:%d" % (vr(GU + 4 * k), RQ + 1024 * k))
        a("s_waitcnt lgkmcnt(0)")
        self.sum4(GU)
        self.tag4(248, [GU, GU + 1, GU + 2, GU + 3])
        if o["qloc"]:
            a("s_mov_b32 s%d, 0xffff\ns_not_b32 s%d, s%d\ns_bitcmp1_b32 s%d, 0\ns_cselect_b32 s%d, s%d, s%d\ns_mov_b32 exec_lo, s%d\ns_mov_b32 exec_hi, 0" % (
                  sA, sU, sA, sX, sU, sA, sU, sU))
            if "Q" not in o["cut"]:
                a("buffer_store_dwordx4 v[248:251], v239, %s, s%d offen %s" % (srd("ws"), sF, o["qst"]))
            a("s_mov_b32 exec_lo, -1\ns_waitcnt vmcnt(%d)" % ("Q" not in o["cut"]))
            self.die_test(25)
            a("s_not_b32 exec_lo, s%d" % sU)
            if "Q" not in o["cut"]:
                self.publish("L_pq", 248, 239, sF)
            a("s_mov_b64 exec, -1")
        else:
            a("s_mov_b32 exec_hi, 0")
            if "Q" not in o["cut"]:
                a("buffer_store_dwordx4 v[248:251], v239, %s, s%d offen %s" % (srd("ws"), sF, o["qst"]))
            a("s_mov_b32 exec_hi, -1")
        a("L_noq:")
        self.stamp(2)
        if o["prepos"] == 1:
            self.preread()
        if o["fpre"] == "w":
            a("s_cmp_lt_u32 s%d, 2\ns_cbranch_scc1 L_nfp" % sW)
            self.load(40, 241, "ws", "s%d" % sP, 0, o["fppol"])
            a("L_nfp:")
        if o["fpre"] == "r":
            a("s_bitcmp1_b32 s%d, 0\ns_cbranch_scc1 L_nfp\ns_lshl_b32 s%d, s%d, 10\ns_add_u32 s%d, s%d, s%d" % (sS, sA, sW, sA, sA, sP + 1))
            self.load(40, 242, "ws", "s%d" % sA, 0, o["fppol"])
            a("L_nfp:")
        if "g" not in o["cut"]:
            self.load(GU, 254, "x", "s%d" % sC)
            self.load(GU + 4, 253, "gw", "s%d" % sC, 0, o["xpol"])
        if o["h2"]:
            self.load(AO + 16, 10, "x", "s97", 0)
            self.load(AO + 20, 10, "x", "s97", 16)
        a("ds_read_b128 v[16:19], v236 offset:%d\nds_read_b128 v[20:23], v236 offset:%d\ns_waitcnt lgkmcnt(0)" % (XS, XS + 4096))
        self.x_operands()
        a("s_waitcnt vmcnt(0)")
        if o["h2"]:
            self.x_operands(AO, AO + 16)
        self.ack(1)
        self.stamp(1, True)
        t = GU + 8
        for j in range(4):
            a("v_lshlrev_b32 v%d, 16, v%d\nv_lshlrev_b32 v%d, 16, v%d" % (t + j, GU + j, t + 4 + j, GU + 4 + j))
            a("v_and_b32 v%d, 0xffff0000, v%d\nv_and_b32 v%d, 0xffff0000, v%d" % (GU + j, GU + j, GU + 4 + j, GU + 4 + j))
        for j in range(4):
            a("v_mul_f32 v%d, v%d, v%d\nv_mul_f32 v%d, v%d, v%d" % (t + j, t + j, t + 4 + j, GU + j, GU + j, GU + 4 + j))
        for j in range(4):
            self.rnd(t + j, t + j); self.rnd(GU + j, GU + j)
        for j in range(4):
            a("v_add_f32 v%d, v%d, v%d" % (t + j, t + j, GU + j))
        a("v_add_f32 v%d, v%d, v%d\nv_add_f32 v%d, v%d, v%d\nv_add_f32 v4, v%d, v%d" % (t, t, t + 1, t + 2, t + 2, t + 3, t, t + 2))
        for n in (8, 4, 2, 1):
            self.dpp("v_add_f32", 4, 4, 4, "row_ror:%d" % n)
        self.rows_allreduce("v_add_f32", 4, 3, (16,))
        a("ds_write_b32 v235, v4 offset:%d" % GP)
        a("s_waitcnt lgkmcnt(0)")
        a("s_barrier")
        self.stamp(3)

        def issue(i):
            if i < 16 and o["ilv"]:
                self.load(GU + 4 * i, 246 if i & 1 else 11, "wu" if i & 1 else "wg", "s%d" % sB, 0, pol)
                if i & 1 and i < 15:
                    a("s_add_u32 s%d, s%d, %d" % (sB, sB, 7168 * (krow(i // 2 + 1, L) - krow(i // 2, L))))
            elif i < 16:
                self.load(GU + 4 * i, 246 if i >= 8 else 11, "wu" if i >= 8 and not o["h2"] else "wg", "s%d" % sB, 0, pol)
                if i == 7 and o["h2"]:
                    a("s_add_u32 s%d, s%d, s%d" % (sB, sB, sR))
                elif i == 7:
                    a("s_sub_u32 s%d, s%d, %d" % (sB, sB, 7168 * krow(7, L)))
                elif i < 15:
                    a("s_add_u32 s%d, s%d, %d" % (sB, sB, 7168 * (krow((i & 7) + 1, L) - krow(i & 7, L))))
            elif i < 24:
                k = i - 16
                m = (k >> 1) + 4 * (k & 1)
                self.load(WO + 4 * m, 12, "wo", "s%d" % sD, 0 if o["oil"] else 2048 * (k & 1), pol)
                if o["oil"]:
                    a("s_add_u32 s%d, s%d, 0x20000" % (sD, sD))
                elif k & 1 and k < 7:
                    a("s_add_u32 s%d, s%d, 0x10000" % (sD, sD))
            else:
                m = i - 24
                self.load(WD + 4 * m, 13, "wd", "s%d" % sE, 0, pol)
                if m < 6:
                    a("s_add_u32 s%d, s%d, 0x%x" % (sE, sE, 0x20000 if o["oil"] else 0x2000))

        if o["prepos"] == 2:
            self.preread()
        for i in range(W):
            issue(i)
        a("ds_read_b128 v[4:7], v234 offset:%d\ns_waitcnt lgkmcnt(0)" % GP)
        a("v_add_f32 v4, v4, v5\nv_add_f32 v6, v6, v7\nv_add_f32 v4, v4, v6")
        self.rnd(4, 4)
        self.sigmoid(VG, 4)
        a("v_sub_f32 v%d, 1.0, v%d" % (VG + 1, VG))
        self.rnd(VG + 1, VG + 1)
        if o["wef"]:
            a("s_cmp_ge_u32 s%d, 2\ns_cselect_b64 vcc, -1, 0" % sX)
        nis = W
        steps = max(31 - W, 16)
        if o["wt"] < 99:
            steps = min(steps, max(o["th"] + o["thl"], o["t2"] + o["t2l"]) + 1)
        for i in range(steps):
            if i >= o["wt"]:
                a("s_waitcnt vmcnt(%d)" % (nis - 1 - i))
                while nis < min(31, i + W + 1 + (i + 1 - o["wt"]) * o["wr"]) or i == steps - 1 and nis < 31:
                    issue(nis)
                    nis += 1
            elif i + W < 31:
                nis += 1
                a("s_waitcnt vmcnt(%d)" % (W - 1))
                if i < o["wef"]:
                    a("s_cbranch_vccnz L_we%d\ns_waitcnt vmcnt(%d)\nL_we%d:" % (i, W - 2, i))
                if i in (0, 4, 8, 12, 20):
                    self.stamp({0: 6, 4: 7, 8: 8, 12: 9, 20: 10}[i], True)
                issue(i + W)
            else:
                a("s_waitcnt vmcnt(%d)" % (30 - i))
            if i < 16 and o["h2"]:
                xo = 24 + 2 * i if i < 8 else AO + 2 * (i - 8)
                self.mf16(40, xo, GU + 4 * i, i == 0)
                self.mf16(44, xo, GU + 4 * i + 2, i == 0)
            elif i < 16:
                gu, m = (i & 1, i >> 1) if o["ilv"] else (i >> 3, i & 7)
                self.mf16(40 + 8 * gu, 24 + 2 * m, GU + 4 * i, m == 0)
                self.mf16(44 + 8 * gu, 24 + 2 * m, GU + 4 * i + 2, m == 0)
            last = steps - 1
            for flag, step, dl in ((F_T, o["to"], o["tol"]), (F_T + 2, o["th"], o["thl"])) + (((F_T + 4, o["t2"], o["t2l"]),) if o["t2"] else ()):
                if i == min(step + (0 if o["ilv"] else dl), last):
                    a("ds_write_b8 v244, v8 offset:%d" % flag)
                elif i == step:
                    a("ds_write_b8 v247, v8 offset:%d" % flag)
            if i == 15:
                for r in range(4):
                    a("v_permlane16_swap_b32 v%d, v%d" % (40 + r, 44 + r))
                for r in range(0 if o["h2"] else 4):
                    a("v_permlane16_swap_b32 v%d, v%d" % (48 + r, 52 + r))
                for r in range(4):
                    self.dpp("v_add_f32", 40 + r, 44 + r, 40 + r, "row_ror:8", 0x3)
                for r in range(0 if o["h2"] else 4):
                    self.dpp("v_add_f32", 40 + r, 48 + r, 52 + r, "row_ror:8", 0xc)
                a("ds_write_b128 v236, v[40:43] offset:%d" % RH)
                a("ds_write_b8 v240, v8 offset:%d" % C_H)
                self.stamp(4)
        self.stamp(5)

        def image(lbl, flag, img, Y=Y):
            a("%s:" % lbl)
            self.guard()
            a("ds_read_u8 v3, v244 offset:%d\nds_read_b128 %s, v243 offset:%d" % (flag, vr(Y), img))
            a("s_waitcnt lgkmcnt(0)\nv_cmp_ne_u32 vcc, 1, v3\ns_cbranch_vccnz %s" % lbl)

        def operands(m, Y=Y):
            for j in range(4):
                a("v_perm_b32 v%d, v%d, v%d, v%d" % (AO + 4 * m + j, Y + (m >> 1), Y + (m >> 1), SEL + 4 * (m & 1) + j))

        if o["adap"]:
            YH = 16
            def chain(d, n, Yr, Wr, wait, fill=None):
                operands(0, Yr)
                for m in range(n):
                    if m < n - 1:
                        operands(m + 1, Yr)
                    elif fill:
                        for r in range(4):
                            a("v_mul_f32 v%d, v%d, v%d" % (fill[0] + r, fill[1], fill[0] + r))
                    if wait(m) is not None:
                        a("s_waitcnt vmcnt(%d)" % wait(m))
                    self.mf32(d, AO + 4 * m, Wr + 4 * m, m == 0)
            a("L_im:")
            self.guard()
            a("ds_read_u8 v3, v244 offset:%d\nds_read_u8 v4, v244 offset:%d" % (F_IM, F_IM + 2))
            a("ds_read_b128 %s, v243 offset:%d\nds_read_b128 %s, v243 offset:%d" % (vr(Y), IM, vr(YH), IM + 512))
            a("s_waitcnt lgkmcnt(0)\nv_cmp_eq_u32 vcc, 1, v3\ns_cbranch_vccnz L_of\nv_cmp_ne_u32 vcc, 1, v4\ns_cbranch_vccnz L_im")
            self.stamp(7)
            chain(DB, 7, YH, WD, lambda m: 6 - m)
            image("L_oi", F_IM, IM)
            self.stamp(6)
            chain(DA, 8, Y, WO, lambda m: None)
            for r in range(4):
                a("v_mul_f32 v%d, v%d, v%d" % (DA + r, VG, DA + r))
            a("s_branch L_mix\nL_of:")
            self.stamp(6)
            a("v_cmp_eq_u32 vcc, 1, v4")
            chain(DA, 8, Y, WO, lambda m: None if m else 7)
            a("s_cbranch_vccnz L_hok")
            image("L_hi", F_IM + 2, IM + 512, YH)
            a("L_hok:")
            self.stamp(7)
            chain(DB, 7, YH, WD, lambda m: 6 - m, (DA, VG))
            a("s_nop 7\nL_mix:")
            for r in range(4):
                a("v_fmac_f32 v%d, v%d, v%d" % (DA + r, VG + 1, DB + r))
        else:
            image("L_oi", F_IM, IM)
            self.stamp(6)
            operands(0)
            a("s_waitcnt vmcnt(7)")
            for m in range(8):
                if m < 7:
                    operands(m + 1)
                self.mf32(DA, AO + 4 * m, WO + 4 * m, m == 0)
            image("L_hi", F_IM + 2, IM + (512 if own else 256))
            self.stamp(7)
            operands(0)
            for m in range(7):
                if m < 6:
                    operands(m + 1)
                else:
                    for r in range(4):
                        a("v_mul_f32 v%d, v%d, v%d" % (DA + r, VG, DA + r))
                a("s_waitcnt vmcnt(%d)" % (6 - m))
                self.mf32(DB, AO + 4 * m, WD + 4 * m, m == 0)
            for r in range(4):
                a("v_fmac_f32 v%d, v%d, v%d" % (DA + r, VG + 1, DB + r))
        a("ds_write_b128 v236, %s offset:%d" % (vr(DA), RF))
        self.stamp(8)
        if own:
            return self.final_local(DA, AO, fq)
        a("s_mov_b64 exec, 1\nds_add_rtn_u32 v3, v10, v8 offset:%d\ns_mov_b64 exec, -1" % C_F)
        a("ds_read_b128 %s, v255 offset:%d\nds_read_b128 %s, v255 offset:%d" % (vr(DA), RF, vr(DB), RF + 2048))
        a("s_waitcnt lgkmcnt(0)\nv_readfirstlane_b32 s%d, v3" % sA)
        for r in range(4):
            a("v_add_f32 v%d, v%d, v%d" % (DA + r, DA + r, DB + r))
        a("s_cmp_lg_u32 s%d, 1\ns_cbranch_scc1 L_end" % sA)
        self.tag4(DA, [DA + r for r in range(4)])
        if o["fcut"]:
            a("s_mov_b64 exec, 0x%x" % ((1 << (32 >> (o["fcut"] - 1))) - 1) if o["fcut"] > 1 else "s_mov_b32 exec_hi, 0")
        a("buffer_store_dwordx4 %s, v241, %s, s%d offen %s" % (vr(DA), srd("ws"), sP, o["fst"]))
        if o["fcut"]:
            a("s_mov_b64 exec, -1\ns_cmp_ge_u32 s%d, %d\ns_cselect_b32 s%d, 1, s%d" % (sS, 32 >> o["fcut"], sOK, sOK))
        self.stamp(9)
        self.writeback("F")
        a("s_cmp_lg_u32 s%d, 0\ns_cbranch_scc1 L_end" % sOK)
        if o["lag"] & 1:
            a("s_waitcnt vmcnt(0)")
        if o["lagx"]:
            a("s_cmp_ge_u32 s%d, %d\ns_cbranch_scc1 L_fin" % (sX, o["lagx"]))
            self.load(40, 241, "ws", "s%d" % sP, 0, "sc1")
            a("s_waitcnt vmcnt(0)")
        a("L_fin:")
        self.guard()
        for m in range(4):
            self.load(40 + 4 * m, 242, "ws", "s%d" % (sP + 1), 1024 * m, o["fld"])
        a("s_waitcnt vmcnt(0)")
        self.untag(40, 4, 3)
        self.again("L_fin")
        self.stamp(10)
        self.writeback("R")
        self.sum4(40)
        self.rows_scatter_sum([40])
        for n in (8, 4):
            self.dpp("v_add_f32", 40, 40, 40, "row_ror:%d" % n)
        self.rnd(40, 40)
        a("s_mov_b32 exec_lo, 0x000f000f\ns_mov_b32 exec_hi, 0x000f000f")
        a("buffer_store_short_d16_hi v40, v245, %s, s%d offen %s" % (srd("out"), sKS, o["outpol"]))
        self.last(0)

    def final_local(self, DA, R, fq):
        a, o = self.a, self.o
        n = 1 << (fq - 1)
        a("s_mov_b64 exec, 1\nds_add_rtn_u32 v3, v9, v8 offset:%d\nds_read_b32 v4, v9 offset:%d\ns_mov_b64 exec, -1" % (C_F, F_L))
        for k in range(4):
            a("ds_read_b128 %s, v255 offset:%d" % (vr(R + 4 * k), RF + 1024 * k))
        a("s_waitcnt lgkmcnt(4)\nv_readfirstlane_b32 s%d, v3\nv_readfirstlane_b32 s%d, v4" % (sA, sL))
        a("s_cmp_lg_u32 s%d, 3\ns_waitcnt lgkmcnt(0)\ns_cbranch_scc1 L_end" % sA)
        self.sumq(R, 4)
        self.tag4(R, [R + r for r in range(4)])
        self.publish("L_pf", R, 241, sP)
        self.stamp(9)
        if n > 1:
            a("s_cmp_lg_u32 s%d, 0\ns_cbranch_scc1 L_end" % sOK)
        if o["lag"] & 1:
            a("s_waitcnt vmcnt(0)")
        a("L_fin:")
        self.guard()
        for m in range(n):
            self.load(40 + 4 * m, 242, "ws", "s%d" % (sP + 1), 1024 * m, o["fld"])
        a("s_waitcnt vmcnt(0)")
        self.untag(40, n, 3)
        self.again("L_fin")
        self.stamp(10)
        self.sumq(40, n)
        self.rows_scatter_sum([40])
        for k in range(3, fq - 1, -1):
            self.dpp("v_add_f32", 40, 40, 40, "row_ror:%d" % (1 << k))
        self.rnd(40, 40)
        m = ((1 << (1 << fq)) - 1) * 0x10001
        a("s_mov_b32 exec_lo, 0x%x\ns_mov_b32 exec_hi, 0x%x" % (m, m))
        a("buffer_store_short_d16_hi v40, v245, %s, s%d offen %s" % (srd("out"), sKS, o["outpol"]))
        self.last(8 * (o["fsel"] & (n - 1)))

    def sumq(self, b, n):
        st = 4
        while st < 4 * n:
            for q in range(b, b + 4 * n, 2 * st):
                for r in (0, 2):
                    self.a("v_pk_add_f32 v[%d:%d], v[%d:%d], v[%d:%d]" % (q + r, q + r + 1, q + r, q + r + 1, q + st + r, q + st + r + 1))
            st *= 2

    def last(self, wg):
        a, o = self.a, self.o
        a("s_cmp_lg_u32 s2, %d\ns_cbranch_scc1 %s" % (wg, "L_amp" if o["ampend"] else "L_end"))
        a("s_mov_b64 exec, 1\nv_mov_b32 v3, s%d\nbuffer_store_dword v3, v9, %s, 0 offen sc1" % (sT, srd("ws")))
        if o["ampend"]:
            a("L_amp:\ns_waitcnt vmcnt(0)\ns_memrealtime s[%d:%d]\ns_waitcnt lgkmcnt(0)" % (sD, sD + 1))
            a("s_sub_u32 s%d, s%d, s%d\ns_lshl_b32 s%d, s%d, 2\ns_and_b32 s%d, s%d, 0x3fff" % (sA, sD, sST, sA, sA, sA, sA))
            a("L_amp2:\ns_memrealtime s[%d:%d]\ns_waitcnt lgkmcnt(0)\ns_sub_u32 s%d, s%d, s%d\ns_cmp_lt_u32 s%d, s%d\ns_cbranch_scc1 L_amp2" % (
                sD, sD + 1, sD, sD, sST, sD, sA))

    def epilogue(self):
        a = self.a
        a("L_end:")
        if self.o["stamps"]:
            a("s_mov_b64 exec, 1\ns_waitcnt vmcnt(0)")
            self.stamp(NST - 1)
            a("s_waitcnt lgkmcnt(0)")
            a("s_lshl_b32 s%d, s3, 8\ns_add_u32 s%d, s%d, s2\ns_mul_i32 s%d, s%d, %d\ns_add_u32 s%d, s%d, 0x%x" % (
                sA, sA, sA, sA, sA, NST * 8, sA, sA, STAMP_OFF))
            a("v_mov_b32 v1, s%d" % sA)
            for i in range(NST):
                a("v_mov_b32 v4, s%d\nv_mov_b32 v5, s%d" % (sST + 2 * i, sST + 2 * i + 1))
                a("buffer_store_dwordx2 v[4:5], v1, %s, 0 offen offset:%d\ns_nop 1" % (srd("ws"), 8 * i))
        if self.o["hold"]:
            a("s_cmp_lg_u32 s3, %d\ns_cbranch_scc1 L_exit" % self.o["ampwave"])
            if self.o["ampwg"] is not None:
                a("s_cmp_lg_u32 s2, %d\ns_cbranch_scc1 L_exit" % self.o["ampwg"])
            a("s_waitcnt lgkmcnt(0)\ns_mov_b32 s%d, %d" % (sA, self.o["hold"]))
            if self.o["amp"]:
                a("s_sub_u32 s%d, s%d, s%d\ns_lshl_b32 s%d, s%d, 2\ns_and_b32 s%d, s%d, 0x3fff\ns_add_u32 s%d, s%d, s%d" % (
                    sB, sST + 2 * self.o["amp"], sST, sB, sB, sB, sB, sA, sA, sB))
            a("L_hold:\ns_memrealtime s[%d:%d]\ns_waitcnt lgkmcnt(0)\ns_sub_u32 s%d, s%d, s%d\ns_cmp_lt_u32 s%d, s%d\ns_cbranch_scc1 L_hold" % (
                sD, sD + 1, sD, sD, sST, sD, sA))
        a("L_exit:\ns_endpgm")

    def build(self):
        if self.o["stamps"]:
            for i in range(1, NST):
                self.a("s_mov_b64 s[%d:%d], 0" % (sST + 2 * i, sST + 2 * i + 1))
        self.prologue()
        self.a_waves()
        self.f_waves()
        self.epilogue()
        lab = NAME + "_kernel"
        lines = [l[:-3] + self.o["spol"] if "buffer_store_dwordx4" in l and l.endswith("sc1") and "v241" not in l else l for l in self.a.lines]
        body = "\n".join(hazard.pad(lines)) + "\n"
        return (header(["; @launch grid=(256,1,1) block=(512,1,1) lds=%d" % LDS_BYTES]) + kernel_open(lab) + body
                + RODATA + descriptor(lab, 256))


def main():
    out = sys.argv[1]
    kw = {}
    for s in sys.argv[2:]:
        k, v = s.split("=")
        try:
            v = v if k == "stag" else int(v, 0)
        except ValueError:
            pass
        kw[k] = v.replace("+", " ") if isinstance(v, str) else v
    open(out, "w").write(Gen(**kw).build())


if __name__ == "__main__":
    main()
```

```python
import sys
from asmlib import *
import hazard

DEFAULTS = dict(wa=5, wf=5, pol="nt", stamps=False, spin=100000, outpol="", wa0=8, qpos=7, to=8, th=20, loc=1, umap=1, dpol="sc1 nt", qloc=0, o2loc=1, pf=2, tearly=1, ilv=0, colmap=0, mask=1, fine=0, sync=None, stag="102", stx=0, tol=3, thl=1, cut="", lag=1, gpol="sc1", twice=0, prio=0, wd=1, wea=0, wef=0, qst="sc1", fst="sc1", fld="sc1", xpol="", wb="", wbs=3, pre="", ppol="nt", lagx=0, fpre="", fppol="sc1", prepos=0, lpol="sc1 nt", fcut=0, floc=0, cown=0, ntst="", hskip=0, qlp="sc1", ex=0, exl=1, tlb="", tlbpos=0, tpol="sc1", gpos=1, h2=0, xpre="", xppol="sc1", wt=99, wr=1, gpol0="sc1", hcut=0, t2=0, t2l=1, adap=0, fq=2, fsel=0, hpol2="sc1", npol="", osrc="", kil=0, wil=0, gil=0, oil=0, qch=0, och=0, hch=0, fch=0, sb=2, sh=18, opol="sc1 nt", hpol="sc1 nt", rpol="sc1", spol="sc1", diag=0, hold=0, perm=0, ampend=0, amp=None, ampwave=0, ampwg=None)

V9 = dict(cown=1, lag=0, colmap=1, adap=1, fld="sc1", fpre="b", fppol="sc1", h2=1, th=22, t2=22, thl=2, t2l=2, ex=2, exl=0, to=8, tol=0, gpos=0, qloc=2, hskip=1, tpol="")

DX, QX, O2, HX, FX, OX = 0x8000, 0x10000, 0x30000, 0x40000, 0x80000, 0x100000
STAMP_OFF = 128 << 20
F_Q, F_O, C_H, F_IM, C_F, F_L, F_T = 0, 4, 8, 12, 16, 20, 24
GP, MLL, IM = 64, 256, 512
RQ, RH, RF, QI, OL = 2048, 6144, 10240, 14336, 16640
XS = OL + 4 * 4224
LDS_BYTES = XS + 8192
SRD = dict(x=4, wq=8, k=12, v=16, wg=20, wu=24, wo=28, wd=32, gw=36, ws=40, out=44)
sX, sS, sW, sT, sT0, sCNT = 48, 49, 50, 51, 52, 56
sA, sB, sC, sD, sE, sF, sG, sH, sRB, sKS = 57, 58, 59, 60, 61, 62, 63, 64, 65, 66
sOK, sP, sR, sL, sU = 67, 68, 94, 95, 96
sST = 70
NST = 12
OOB = 0x7f000000
LOG2E = 0x3fb8aa3b
SCALE = 0x3db504f3
KVBASE = (32768 - 4096) * 256


def srd(n):
    return "s[%d:%d]" % (SRD[n], SRD[n] + 3)


def vr(b, n=4):
    return "v[%d:%d]" % (b, b + n - 1)


def krow(i, L):
    return ((i >> (3 - L)) << (10 - L)) + ((i & ((8 >> L) - 1)) << 1)


class VM:
    def __init__(self, a):
        self.a, self.q = a, []

    def note(self, name):
        self.q.append(name)

    def wait(self, name):
        self.a("s_waitcnt vmcnt(%d)" % (len(self.q) - 1 - self.q.index(name)))


class Gen:
    def __init__(self, **kw):
        self.o = dict(DEFAULTS)
        if not kw.get("v8"):
            self.o.update(V9)
        self.o.update(kw)
        self.a = Asm()

    def spread(self, d, idx, n, t):
        if n:
            self.a("s_and_b32 s%d, s%d, %d\ns_lshl_b32 s%d, s%d, %d\ns_add_u32 s%d, s%d, s%d\ns_add_u32 s%d, s%d, 0x%x" % (
                t, idx, n - 1, t, t, self.o["sh"], d, d, t, d, d, self.o["sb"] << 20))

    def stamp(self, i, fine=False):
        if self.o["fine"] and i in (1, 6, 7, 8, 9, 10) and not fine or fine and not self.o["fine"]:
            return
        if self.o["stamps"] or (self.o["hold"] and i in (0, self.o["amp"])) or (self.o["ampend"] and i == 0):
            self.a("s_memrealtime s[%d:%d]" % (sST + 2 * i, sST + 2 * i + 1))

    def count(self, unit):
        if self.o["diag"]:
            self.a("s_add_u32 s%d, s%d, %d" % (sST + 2, sST + 2, 100 * unit))

    def ack(self, i):
        if self.o["diag"]:
            self.a("s_waitcnt vmcnt(0)")
            self.stamp(i)

    def ptr(self, n):
        self.a("s_load_dwordx2 s[%d:%d], s[0:1], %d" % (SRD[n], SRD[n] + 1, KARG[n]))

    def desc(self, n):
        self.a("s_mov_b32 s%d, 0x%x\ns_mov_b32 s%d, 0x20000" % (SRD[n] + 2, SIZE[n], SRD[n] + 3))

    def guard(self):
        self.a("s_sub_u32 s%d, s%d, 1\ns_cbranch_scc1 L_end" % (sCNT, sCNT))

    def load(self, dst, voff, buf, soff, imm=0, pol=""):
        self.a("buffer_load_dwordx4 %s, v%d, %s, %s offen%s%s" % (
            vr(dst), voff, srd(buf), soff, " offset:%d" % imm if imm else "", " " + pol if pol else ""))

    def flag_wait(self, lbl, vaddr, flag):
        self.a("%s:" % lbl)
        self.guard()
        self.a("ds_read_u8 v3, v%d offset:%d\ns_waitcnt lgkmcnt(0)\nv_cmp_ne_u32 vcc, 1, v3\ns_cbranch_vccnz %s" % (vaddr, flag, lbl))

    def tags(self):
        a = self.a
        a("s_add_u32 s%d, s%d, 0x01010101" % (sT, sT))
        a("s_and_b32 s%d, s%d, 0xff" % (sT0, sT))
        a("s_bfe_u32 s%d, s%d, 0x80008" % (sT0 + 1, sT))
        a("s_bfe_u32 s%d, s%d, 0x80010" % (sT0 + 2, sT))
        a("s_lshr_b32 s%d, s%d, 24" % (sT0 + 3, sT))

    def tag4(self, dst, src):
        for j in range(4):
            self.a("v_bfi_b32 v%d, v2, s%d, v%d" % (dst + j, sT0 + j, src[j]))

    def untag(self, base, n, acc, cmp=True, also=None, vt=None):
        a = self.a
        regs = list(range(base, base + 4 * n))
        for r in regs:
            a("v_xor_b32 v%d, %s, v%d" % (r, "v%d" % (vt + (r - base) % 4) if vt and (r - base) & 4 else "s%d" % (sT0 + (r - base) % 4), r))
        a("v_or_b32 v%d, v%d, v%d" % (acc, regs[0], regs[1]))
        for i in range(2, len(regs), 2):
            a("v_or3_b32 v%d, v%d, v%d, v%d" % (acc, acc, regs[i], regs[i + 1]))
        if also is not None:
            a("v_or_b32 v%d, v%d, v%d" % (acc, acc, also))
        if cmp:
            a("v_and_b32 v%d, v2, v%d" % (acc, acc))
            a("v_cmp_ne_u32 vcc, 0, v%d" % acc)

    def narrow(self):
        if self.o["mask"]:
            self.a("s_wqm_b64 exec, vcc")

    def widen(self):
        if self.o["mask"]:
            self.a("s_mov_b64 exec, -1")

    def again(self, lbl):
        self.narrow()
        self.a("s_cbranch_vccnz %s" % lbl)
        self.widen()

    def dpp(self, op, d, s0, s1, ctl, bank=0xf):
        self.a("%s_dpp v%d, v%d, %s%s row_mask:0xf bank_mask:0x%x" % (
            op, d, s0, "v%d " % s1 if s1 is not None else "", ctl, bank) if s1 is not None else
            "%s_dpp v%d, v%d %s row_mask:0xf bank_mask:0x%x" % (op, d, s0, ctl, bank))

    def rows_allreduce(self, op, x, t, which=(16, 32)):
        for n in which:
            self.a("v_mov_b32 v%d, v%d\nv_permlane%d_swap_b32 v%d, v%d\n%s v%d, v%d, v%d" % (t, x, n, x, t, op, x, x, t))

    def rows_scatter_sum(self, sets):
        a = self.a
        for b in sets:
            a("v_permlane32_swap_b32 v%d, v%d\nv_permlane32_swap_b32 v%d, v%d" % (b, b + 2, b + 1, b + 3))
        for b in sets:
            a("v_add_f32 v%d, v%d, v%d\nv_add_f32 v%d, v%d, v%d" % (b, b, b + 2, b + 1, b + 1, b + 3))
        for b in sets:
            a("v_permlane16_swap_b32 v%d, v%d" % (b, b + 1))
        for b in sets:
            a("v_add_f32 v%d, v%d, v%d" % (b, b, b + 1))

    def rnd(self, d, s):
        self.a("v_cvt_pk_bf16_f32 v%d, 0, v%d" % (d, s))

    def sigmoid(self, d, z):
        a = self.a
        a("v_mul_f32 v%d, 0x%x, v%d" % (d, LOG2E ^ 0x80000000, z))
        a("v_exp_f32 v%d, v%d\nv_add_f32 v%d, 1.0, v%d\nv_rcp_f32 v%d, v%d" % (d, d, d, d, d, d))
        self.rnd(d, d)

    def sel_x(self):
        a = self.a
        a("v_bfe_u32 v3, v1, 2, 1\nv_mul_u32_u24 v3, 0x202, v3\nv_add_u32 v3, 0x0c0c0100, v3")
        a("v_lshlrev_b32 v4, 4, v1\nv_alignbit_b32 v3, v3, v3, v4")
        a("v_and_b32 v4, 2, v1\nv_cmp_eq_u32 vcc, 0, v4\nv_mov_b32 v4, 0x0c0c0c0c")
        a("v_cndmask_b32 v14, v4, v3, vcc\nv_cndmask_b32 v15, v3, v4, vcc")

    def x_operands(self, d=24, s=16):
        for m in range(8):
            self.a("v_perm_b32 v%d, v%d, v%d, v14\nv_perm_b32 v%d, v%d, v%d, v15" % (
                d + 2 * m, s + m, s + m, d + 1 + 2 * m, s + m, s + m))

    def mf16(self, d, av, bv, first):
        self.a("v_mfma_f32_16x16x16_bf16 %s, %s, %s, %s" % (vr(d), vr(av, 2), vr(bv, 2), "0" if first else vr(d)))

    def mf32(self, d, av, bv, first):
        self.a("v_mfma_f32_16x16x32_bf16 %s, %s, %s, %s" % (vr(d), vr(av), vr(bv), "0" if first else vr(d)))

    def sum4(self, b):
        for r in range(4):
            self.a("v_add_f32 v%d, v%d, v%d\nv_add_f32 v%d, v%d, v%d" % (b + r, b + r, b + 4 + r, b + 8 + r, b + 8 + r, b + 12 + r))
        for r in range(4):
            self.a("v_add_f32 v%d, v%d, v%d" % (b + r, b + r, b + 8 + r))

    def prologue(self):
        a = self.a
        self.stamp(0)
        if self.o["sync"] is not None:
            a("s_waitcnt lgkmcnt(0)\ns_add_u32 s4, s%d, 300\ns_or_b32 s4, s4, 0x7ff\ns_and_b32 s5, s2, 6\ns_cselect_b32 s5, %d, 0\ns_add_u32 s4, s4, s5" % (sST, self.o["sync"]))
            a("L_sync:\ns_memrealtime s[%d:%d]\ns_waitcnt lgkmcnt(0)\ns_sub_u32 s5, s%d, s4\ns_cmp_lt_i32 s5, 0\ns_cbranch_scc1 L_sync" % (sST, sST + 1, sST))
        a("s_cmp_ge_u32 s2, 256\ns_cbranch_scc1 L_exit")
        if self.o["perm"] == 1:
            a("s_lshr_b32 s4, s2, 5\ns_lshl_b32 s2, s2, 3\ns_or_b32 s2, s2, s4\ns_and_b32 s2, s2, 255")
        if self.o["perm"] == 2:
            a("s_cmp_eq_u32 s2, 42\ns_cselect_b32 s4, 7, 0\ns_cmp_eq_u32 s2, 45\ns_cselect_b32 s4, 7, s4\ns_xor_b32 s2, s2, s4")
        for n in ("x", "wq", "ws"):
            self.ptr(n)
        a("s_lshr_b32 s%d, s2, 3" % sS)
        if self.o["pf"] == 2:
            a("s_getpc_b64 s[%d:%d]\nL_pc:" % (sP, sP + 1))
            a("s_lshl_b32 s%d, s%d, 9\ns_min_u32 s%d, s%d, L_exit-L_pc-512" % (sA, sS, sA, sA))
            a("s_add_u32 s%d, s%d, s%d\ns_addc_u32 s%d, s%d, 0" % (sP, sP, sA, sP + 1, sP + 1))
            a("v_add_co_u32 v250, vcc, s%d, v0\nv_mov_b32 v251, s%d\nv_lshrrev_b32 v3, 6, v0\nv_addc_co_u32 v251, vcc, 0, v251, vcc" % (sP, sP + 1))
            a("global_load_ubyte v252, v[250:251], off " + self.o["xpol"])
        else:
            a("v_lshrrev_b32 v3, 6, v0")
        a("v_and_b32 v1, 63, v0\ns_and_b32 s%d, s2, 7" % sX)
        a("v_readfirstlane_b32 s3, v3")
        a("s_lshr_b32 s%d, s%d, 3" % (sKS, sS))
        self.desc("x")
        a("v_bfe_u32 v5, v1, 3, 1\nv_and_b32 v6, 0x30, v1\nv_and_b32 v7, 7, v1")
        a("s_and_b32 s%d, s3, 3" % sW)
        a("v_lshlrev_b32 v10, 11, v5\nv_lshl_add_u32 v10, v6, 1, v10")
        a("v_or_b32 v6, v6, v5\nv_lshlrev_b32 v7, 4, v7")
        a("s_lshl_b32 s%d, s%d, 2\ns_add_u32 s%d, s%d, s%d" % (sB, sKS, sB, sB, sW))
        a("s_lshl_b32 s%d, s%d, 7" % (sA, sB))
        a("s_getreg_b32 s%d, hwreg(HW_REG_XCC_ID, 0, 4)" % sL)
        a("s_cmp_ge_u32 s3, 4\ns_cbranch_scc1 L_F")

    def die_read(self, v):
        self.a("s_lshl_b32 s%d, s%d, 7\ns_add_u32 s%d, s%d, 0x%x\nv_and_b32 v%d, 31, v1\nv_lshlrev_b32 v%d, 2, v%d" % (sA, sX, sA, sA, DX, v, v, v))
        self.a("buffer_load_dword v%d, v%d, %s, s%d offen %s" % (v, v, srd("ws"), sA, self.o["dpol"]))

    def die_test(self, v):
        self.a("s_xor_b32 s%d, s%d, s%d\nv_cmp_ne_u32 vcc, s%d, v%d\ns_mov_b32 s%d, vcc_lo" % (sL, sL, sT, sL, v, sL))
        if not self.o["loc"]:
            self.a("s_mov_b32 s%d, 1" % sL)

    def q_block(self, d, t):
        self.a("s_and_b32 s%d, s%d, 7\ns_lshl3_add_u32 s%d, s%d, s%d\ns_xor_b32 s%d, s%d, 2" % (t, sS, d, sX, t, d, d))

    def q_offsets(self, d, t, u, vst, vld):
        a = self.a
        self.q_block(t, u)
        a("s_lshr_b32 s%d, s%d, 2\ns_lshl_b32 s%d, s%d, 12\ns_and_b32 s%d, s%d, 3\ns_lshl_b32 s%d, s%d, 8" % (d, t, d, d, t, t, t, t))
        a("s_add_u32 s%d, s%d, s%d\ns_lshl_b32 s%d, s%d, 10\ns_add_u32 s%d, s%d, s%d\ns_add_u32 s%d, s%d, 0x%x" % (d, d, t, t, sKS, d, d, t, d, d, QX))
        a("v_lshrrev_b32 v3, 4, v1\nv_and_b32 v5, 15, v1\nv_lshlrev_b32 v6, 4, v5\nv_lshl_add_u32 v%d, v3, 16, v6" % vst)
        a("v_and_b32 v6, 1, v1\nv_lshl_add_u32 v%d, v3, 1, v6\nv_lshlrev_b32 v%d, 8, v%d" % (vld, vld, vld))
        a("v_lshrrev_b32 v5, 1, v5\nv_lshl_add_u32 v%d, v5, 4, v%d" % (vld, vld))

    def gu_tile(self):
        a = self.a
        a("s_and_b32 s%d, s%d, 7\ns_add_u32 s%d, s%d, 3\ns_and_b32 s%d, s%d, 7\ns_min_u32 s%d, s%d, 6" % (sC, sS, sE, sX, sE, sE, sE, sE))
        a("s_add_u32 s%d, s%d, 2\ns_lshr_b32 s%d, s%d, 2\ns_sub_u32 s%d, s%d, s%d" % (sG, sC, sG, sG, sG, sC, sG))
        a("s_cmp_ge_u32 s%d, s%d\ns_addc_u32 s%d, s%d, 0" % (sG, sE, sG, sG))
        a("s_and_b32 s%d, s%d, 3\ns_cmp_eq_u32 s%d, 1\ns_cselect_b32 s%d, s%d, s%d\ns_cselect_b32 s%d, 8, 0" % (sD, sS, sD, sG, sE, sG, sE))
        a("s_mul_i32 s%d, s%d, 7\ns_add_u32 s%d, s%d, s%d" % (sD, sX, sG, sG, sD))
        if self.o["h2"]:
            a("s_and_b32 s%d, s%d, 1\ns_lshr_b32 s%d, s%d, 1\ns_lshr_b32 s%d, s%d, 2" % (sH, sKS, sOK, sKS, sC, sC))
            a("s_cmp_eq_u32 s%d, 8\ns_cselect_b32 s%d, s%d, s%d\ns_cselect_b32 s%d, s%d, s%d" % (sE, sH, sC, sH, sOK, sKS, sOK))
            return
        a("s_cmp_eq_u32 s%d, 5\ns_cselect_b32 s%d, 0x%x, 0" % (sC, sH, OOB))
        a("s_cmp_eq_u32 s%d, 1\ns_cselect_b32 s%d, 0x%x, 0" % (sC, sOK, OOB))

    def publish(self, lbl, data, voff, soff, far=sL):
        st = "buffer_store_dwordx4 %s, v%d, %s, s%d offen" % (vr(data), voff, srd("ws"), soff)
        if far is None:
            return self.a(st + (" sc1 nt" if lbl[-1] in self.o["ntst"] else " sc1"))
        self.a("s_cmp_eq_u32 s%d, 0\ns_cbranch_scc1 %s_near\n%s sc1\ns_branch %s_out\n%s_near:\n%s\n%s_out:" % (far, lbl, st, lbl, lbl, st + " " + self.o["npol"], lbl))

    def a_waves(self):
        a, o = self.a, self.o
        W, pol = o["wa"], o["pol"]
        WQ, KD, VD, VT, PV, QG, QB, SD = 48, 80, 112, 144, 176, 208, 224, 232
        kil = min(o["kil"], 1)
        HI = 0x80000 if kil else 0x1000
        self.ptr("k"); self.ptr("v")
        self.desc("wq")
        L = o["wil"]
        if L:
            a("v_lshrrev_b32 v3, %d, v6\nv_or_b32 v6, v3, v5" % L)
        a("v_lshl_add_u32 v11, v6, 13, v7")
        self.q_block(sC, sD)
        a("s_lshl_b32 s%d, s%d, 7\ns_lshl_b32 s%d, s%d, %d\ns_add_u32 s%d, s%d, s%d" % (sC, sC, sB, sB, 19 - L, sB, sB, sC))
        a("s_waitcnt lgkmcnt(0)")
        vm = VM(a)
        if o["tearly"]:
            a("s_load_dword s%d, s[%d:%d], 0" % (sT, SRD["ws"], SRD["ws"] + 1))
        self.load(16, 10, "x", "s%d" % sA, 0, o["xpol"])
        self.load(20, 10, "x", "s%d" % sA, 16, o["xpol"])
        vm.note("x0"); vm.note("x1")

        def q_loads(v, p=o["gpol0"], lbl="L_q0"):
            if o["qloc"] and o["qlp"] != p:
                a("s_lshr_b32 s%d, s%d, 1\ns_xor_b32 s%d, s%d, s%d\ns_bitcmp1_b32 s%d, 0\ns_cbranch_scc1 %s_far" % (sA, sW, sA, sA, sX, sA, lbl))
                for ks in range(4):
                    self.load(QG + 4 * ks, v, "ws", "s%d" % sF, ks * 1024, o["qlp"])
                a("s_branch %s_out\n%s_far:" % (lbl, lbl))
            for ks in range(4):
                self.load(QG + 4 * ks, v, "ws", "s%d" % sF, ks * 1024, p)
            a("%s_out:" % lbl)

        def issue(i):
            if i < 8:
                self.load(WQ + 4 * i, 11, "wq", "s%d" % sB, 0, pol)
                if i < 7:
                    a("s_add_u32 s%d, s%d, 0x%x" % (sB, sB, 8192 * (krow(i + 1, L) - krow(i, L))))
            elif i < 16:
                oc, hh = (i - 8) >> 1, (i - 8) & 1
                a("s_xor_b32 s%d, s%d, 0x%x" % (sC, sD, (oc >> 1) * HI + (oc & 1) * 512 + hh * 128))
                self.load(KD + 4 * (i - 8), 12, "k", "s%d" % sC, 0, pol)
            else:
                a("s_xor_b32 s%d, s%d, 0x%x" % (sC, sE, (i & 3) * 1024 + ((i - 16) >> 2) * HI))
                self.load(VD + 4 * (i - 16), 10, "v", "s%d" % sC, 0, pol)
            vm.note(i)
            if i == 16 + o["qpos"]:
                self.die_read(25)
            if i == 16 + o["qpos"] and "q" not in o["cut"]:
                q_loads(13)
                for ks in range(4):
                    vm.note("q%d" % ks)

        W0 = o["wa0"]
        assert W0 <= 8
        for i in range(W0):
            issue(i)
        if o["diag"]:
            a("s_mov_b64 s[%d:%d], s[%d:%d]" % (sST + 2, sST + 3, sST, sST + 1))
        else:
            self.stamp(1)
        if not o["tearly"]:
            a("s_load_dword s%d, s[%d:%d], 0" % (sT, SRD["ws"], SRD["ws"] + 1))
        self.desc("k"); self.desc("v"); self.desc("ws")
        a("s_and_b32 s%d, s%d, 1\ns_lshr_b32 s%d, s%d, 1\ns_lshl2_add_u32 s%d, s%d, s%d" % (sU, sX, sD, sX, sU, sU, sD))
        if not o["umap"]:
            a("s_mov_b32 s%d, s%d" % (sU, sX))
        a("s_lshl_b32 s%d, s%d, 23\ns_lshl_b32 s%d, s%d, %d\ns_add_u32 s%d, s%d, s%d" % (sD, sU, sE, sS, 15 - kil, sD, sD, sE))
        a("s_lshl_b32 s%d, s%d, %d\ns_add_u32 s%d, s%d, s%d\ns_add_u32 s%d, s%d, 0x%x" % (sE, sW, 13 - kil, sD, sD, sE, sD, sD, KVBASE))
        a("s_lshl2_add_u32 s%d, s%d, s%d" % (sA, sS, sW))
        if o["stx"]:
            a("s_add_u32 s%d, s%d, s%d" % (sA, sA, sX))
        a("s_mov_b32 s%d, 0" % sR)
        stag = o["stag"]
        if stag == "r":
            a("s_lshl_b32 s%d, s%d, 7\ns_add_u32 s%d, s%d, s%d\ns_add_u32 s%d, s%d, 2173\ns_mul_i32 s%d, s%d, s%d" % (sE, sX, sA, sA, sE, sA, sA, sA, sA, sA))
            a("s_mul_i32 s%d, s%d, 1099492015\ns_lshr_b32 s%d, s%d, 29" % (sA, sA, sA, sA))
            stag = "012"
        if stag[0] == "x":
            a("s_lshr_b32 s%d, s%d, %s\ns_xor_b32 s%d, s%d, s%d" % (sE, sA, stag[1], sA, sA, sE))
            stag = stag[2:]
        if stag[0] == "g":
            def gf(x, y):
                p = 0
                for k in range(3):
                    p ^= (x << k) * (y >> k & 1)
                for k in (4, 3):
                    p ^= (0xb << (k - 3)) * (p >> k & 1)
                return p
            if stag == "gx":
                a("s_lshl3_add_u32 s%d, s%d, s%d" % (sA, sX, sA))
            for c, bits in zip((1, 0, 2), (HI, 0x880, 0x600)):
                m = sum((gf(i & 7, max(i >> 3, 1)) >> c & 1) << i for i in range(64))
                a("s_mov_b32 s%d, 0x%x\ns_mov_b32 s%d, 0x%x\ns_bitcmp1_b64 s[%d:%d], s%d" % (sP, m & 0xffffffff, sP + 1, m >> 32, sP, sP + 1, sA))
                a("s_cselect_b32 s%d, 0x%x, 0\ns_or_b32 s%d, s%d, s%d" % (sE, bits, sR, sR, sE))
            stag = "---"
        for c, bits in zip(stag, (HI, 0x880, 0x600)):
            if c != "-":
                a("s_bitcmp1_b32 s%d, %s\ns_cselect_b32 s%d, 0x%x, 0\ns_or_b32 s%d, s%d, s%d" % (sA, c, sE, bits, sR, sR, sE))
        a("s_and_b32 s%d, s%d, 0x%x\ns_or_b32 s%d, s%d, s%d" % (sE, sR, HI + 0xc00, sE, sE, sD))
        a("s_and_b32 s%d, s%d, 0x%x\ns_or_b32 s%d, s%d, s%d" % (sA, sR, HI + 0x280, sD, sD, sA))
        a("v_and_b32 v3, 3, v1\nv_bfe_u32 v4, v1, 2, 1\nv_lshl_add_u32 v3, v3, 2, v4")
        a("v_lshrrev_b32 v4, 3, v1\nv_lshlrev_b32 v4, 4, v4\nv_lshl_add_u32 v12, v3, 8, v4")
        a("s_and_b32 s%d, s%d, 0xc00\nv_xor_b32 v12, s%d, v12" % (sA, sR, sA))
        a("v_lshlrev_b32 v13, 4, v1\ns_and_b32 s%d, s%d, 0x200\nv_xor_b32 v10, s%d, v13" % (sA, sR, sA))
        a("v_mov_b32 v2, 0xff\nv_mov_b32 v8, 1\nv_mov_b32 v9, 0\ns_mov_b32 s%d, %d" % (sCNT, o["spin"]))
        self.sel_x()
        a("s_lshl_b32 s%d, s%d, 3\ns_lshr_b32 s%d, s%d, 2\ns_add_u32 s%d, s%d, s%d" % (sRB, sX, sA, sS, sRB, sRB, sA))
        a("s_lshl_b32 s%d, s%d, 10\nv_add_u32 v5, s%d, v13" % (sA, sW, sA))
        a("s_lshl_b32 s%d, s%d, 14\ns_lshl_b32 s%d, s%d, 12\ns_add_u32 s%d, s%d, s%d\ns_add_u32 s%d, s%d, 0x%x" % (
            sF, sU, sA, sW, sF, sF, sA, sF, sF, QX))
        a("s_lshl2_add_u32 s%d, s%d, s%d" % (sA, sU, sW))
        self.spread(sF, sA, min(o["qch"], 16), sA)
        if o["qch"] == 32:
            a("s_lshr_b32 s%d, s%d, 2\ns_lshl_b32 s%d, s%d, %d\ns_add_u32 s%d, s%d, s%d" % (sA, sU, sA, sA, o["sh"] + 4, sF, sF, sA))
        a("s_mov_b32 s%d, 0x05040100\ns_mov_b32 s%d, 0x07060302" % (sG, sH))
        vm.wait("x1")
        a("ds_write_b128 v5, v[16:19] offset:%d\nds_write_b128 v5, v[20:23] offset:%d" % (XS, XS + 4096))
        self.x_operands()
        if o["wd"]:
            a("s_and_b32 s%d, s%d, 7\ns_cmp_eq_u32 s%d, 1\ns_cselect_b64 vcc, -1, 0" % (sA, sS, sA))
        n = W0
        for i in range(24 - W):
            if i >= 8 and o["wd"]:
                vm.wait(i - o["wd"])
                a("s_cbranch_vccnz L_wd%d" % i)
                vm.wait(i)
                if o["wea"]:
                    a("s_cmp_ge_u32 s%d, 2\ns_cbranch_scc1 L_wd%d" % (sX, i))
                    vm.wait(i + 1)
                a("L_wd%d:" % i)
            elif i < 8 or n < i + 1 + W:
                vm.wait(i)
                if i in (0, 8, 10, 12, 15, 18):
                    self.stamp({0: 1, 8: 6, 10: 7, 12: 8, 15: 9, 18: 10}[i], True)
            while n < i + 1 + W:
                issue(n)
                n += 1
            if i < 8:
                self.mf16(40, 24 + 2 * i, WQ + 4 * i, i == 0)
                self.mf16(44, 24 + 2 * i, WQ + 4 * i + 2, i == 0)
            if i == 7:
                for r in range(4):
                    a("v_permlane16_swap_b32 v%d, v%d" % (40 + r, 44 + r))
                for r in range(4):
                    self.dpp("v_add_f32", 40 + r, 44 + r, 40 + r, "row_ror:8")
                a("ds_write_b128 v5, v[40:43] offset:%d" % RQ)
                a("s_waitcnt lgkmcnt(0)\ns_barrier")
                self.stamp(2)
                self.tags()
        a("s_barrier")
        if o["prio"]:
            a("s_setprio %d" % o["prio"])
        self.stamp(3)
        a("v_lshrrev_b32 v3, 5, v1\ns_lshl_b32 s%d, s%d, 1\nv_add_u32 v3, s%d, v3" % (sA, sW, sA))
        a("v_and_b32 v4, 31, v1\nv_mul_u32_u24 v16, 272, v3\nv_lshl_add_u32 v16, v4, 3, v16")
        a("v_mul_u32_u24 v20, 528, v3\nv_lshl_add_u32 v20, v4, 4, v20\nv_lshlrev_b32 v21, 5, v3")
        a("v_lshrrev_b32 v4, 3, v4\nv_lshl_add_u32 v23, v3, 2, v4\nv_lshl_add_u32 v23, v23, 12, v7")
        a("v_and_b32 v3, 7, v1\nv_lshrrev_b32 v4, 3, v1\nv_mul_u32_u24 v17, 272, v3\nv_lshl_add_u32 v17, v4, 4, v17")
        a("v_mul_u32_u24 v18, 528, v3\nv_and_b32 v5, 0x30, v1\ns_mul_i32 s%d, s%d, 4224\nv_add3_u32 v18, v18, v5, s%d" % (sA, sW, sA))
        a("s_lshl_b32 s%d, s%d, 3\nv_lshlrev_b32 v19, 5, v3\nv_add_u32 v19, s%d, v19" % (sA, sW, sA))
        a("v_mov_b32 v22, s%d" % sW)
        a("s_andn2_b32 s%d, 0x80, s%d\nv_add_u32 v24, s%d, v17\ns_and_b32 s%d, s%d, 0x80\nv_add_u32 v17, s%d, v17" % (sA, sR, sA, sA, sR, sA))
        def transpose(j):
            vm.wait(16 + 2 * j + 1)
            for e in range(8):
                a("v_perm_b32 v%d, v%d, v%d, s%d" % (VT + 4 * e + j, VD + 8 * j + 4 + (e >> 1), VD + 8 * j + (e >> 1), sH if e & 1 else sG))
        early = (o["qpos"] + 1) // 2
        for j in range(early):
            transpose(j)
        vm.wait("die" if "q" in o["cut"] else "q3")
        self.die_test(25)
        if o["qloc"] == 2:
            a("s_cmp_eq_u32 s%d, 0\ns_cbranch_scc1 L_qchk\ns_cmp_lg_u32 s%d, 0\ns_cbranch_scc1 L_qchk" % (sL, sW))
            self.q_offsets(sB, sA, sC, PV + 16, PV + 17)
            for k in range(4):
                a("ds_read_b128 %s, v%d offset:%d" % (vr(PV + 4 * k), PV + 17, RQ + 1024 * k))
            a("s_waitcnt lgkmcnt(0)")
            self.sum4(PV)
            self.tag4(PV, [PV + r for r in range(4)])
            a("s_mov_b32 exec_hi, 0\nbuffer_store_dwordx4 %s, v%d, %s, s%d offen sc1\ns_mov_b32 exec_hi, -1" % (vr(PV), PV + 16, srd("ws"), sB))
        if o["diag"]:
            a("s_cmp_lg_u32 s%d, 0\ns_cselect_b32 s%d, 1600, 0\ns_add_u32 s%d, s%d, s%d" % (sL, sA, sST + 2, sST + 2, sA))
        a("L_qchk:")
        self.untag(QG, 4, 3)
        a("s_branch L_qok" if o["cut"] else "s_cbranch_vccz L_qok")
        self.narrow()
        self.guard()
        q_loads(13, o["gpol"], "L_q1")
        self.count(1)
        a("s_waitcnt vmcnt(0)\ns_branch L_qchk\nL_qok:")
        self.widen()
        self.stamp(4)
        if o["twice"]:
            a("s_mov_b32 s97, 0\nL_twice:")
        self.sum4(QG)
        a("v_cvt_pk_bf16_f32 v4, v%d, v%d\nv_cvt_pk_bf16_f32 v5, v%d, v%d" % (QG, QG + 1, QG + 2, QG + 3))
        a("ds_write_b64 v16, v[4:5] offset:%d\nds_write_b8 v22, v8 offset:%d" % (QI, F_Q))
        a("s_mov_b32 s%d, 0x01010101" % sA)
        a("L_qi:")
        self.guard()
        a("ds_read_b32 v3, v9 offset:%d" % F_Q)
        a("ds_read_b128 %s, v17 offset:%d\nds_read_b128 %s, v24 offset:%d" % (vr(QB), QI, vr(QB + 4), QI))
        a("s_waitcnt lgkmcnt(0)\nv_cmp_ne_u32 vcc, s%d, v3\ns_cbranch_vccnz L_qi" % sA)
        for hh in range(2):
            for oc in range(4):
                self.mf32(SD + 4 * oc, KD + 8 * oc + 4 * hh, QB + 4 * hh, hh == 0)
        for p in range(2):
            for r in range(4):
                a("v_permlane32_swap_b32 v%d, v%d" % (SD + 8 * p + r, SD + 8 * p + 4 + r))
        for r in range(4):
            self.dpp("v_add_f32", 28 + r, SD + 4 + r, SD + r, "row_ror:8", 0x3)
        for r in range(4):
            self.dpp("v_add_f32", 28 + r, SD + 8 + r, SD + 12 + r, "row_ror:8", 0xc)
        for r in range(4):
            self.rnd(28 + r, 28 + r)
        for r in range(4):
            a("v_mul_f32 v%d, 0x%x, v%d" % (28 + r, SCALE, 28 + r))
        for r in range(4):
            self.rnd(28 + r, 28 + r)
        a("v_max3_f32 v32, v28, v29, v30\nv_max_f32 v32, v32, v31")
        self.dpp("v_max_f32", 32, 32, 32, "row_ror:8")
        self.rows_allreduce("v_max_f32", 32, 3)
        a("s_mov_b32 s%d, 0x%x" % (sB, LOG2E))
        for r in range(4):
            a("v_sub_f32 v%d, v%d, v32" % (28 + r, 28 + r))
        for r in range(4):
            a("v_mul_f32 v%d, s%d, v%d" % (28 + r, sB, 28 + r))
        for r in range(4):
            a("v_exp_f32 v%d, v%d" % (28 + r, 28 + r))
        a("v_cvt_pk_bf16_f32 v36, v28, v29\nv_cvt_pk_bf16_f32 v37, v30, v31")
        a("v_add_f32 v33, v28, v29\nv_add_f32 v30, v30, v31")
        self.dpp("v_mov_b32", 38, 36, None, "row_ror:8")
        self.dpp("v_mov_b32", 39, 37, None, "row_ror:8")
        a("v_add_f32 v33, v33, v30")
        self.dpp("v_add_f32", 33, 33, 33, "row_ror:8")
        self.rows_allreduce("v_add_f32", 33, 3)
        for j in range(early, 4):
            transpose(j)
        for e in range(8):
            self.mf32(PV + 4 * e, VT + 4 * e, 36, True)
        a("s_mov_b32 exec_lo, 0x00ff00ff\ns_mov_b32 exec_hi, 0x00ff00ff")
        for e in range(8):
            a("ds_write_b128 v18, %s offset:%d" % (vr(PV + 4 * e), OL + 64 * e))
        a("ds_write_b64 v19, v[32:33] offset:%d" % MLL)
        a("ds_write_b8 v22, v8 offset:%d" % F_O)
        a("s_mov_b64 exec, -1")
        a("s_lshl_b32 s%d, s%d, 17\ns_lshl_b32 s%d, s%d, 7\ns_add_u32 s%d, s%d, 0x%x\ns_add_u32 s%d, s%d, s%d" % (sG, sX, sD, sS, sG, sG, OX, sC, sG, sD))
        a("s_mov_b32 s%d, 0x07060501\ns_mov_b32 s%d, 0x07060502\ns_mov_b32 s%d, 0x07060503" % (sD, sE, sF))
        a("L_ox:")
        self.guard()
        a("ds_read_b32 v3, v9 offset:%d" % F_O)
        a("ds_read_b128 v[28:31], v21 offset:%d\nds_read_b128 v[32:35], v21 offset:%d" % (MLL, MLL + 16))
        for k in range(4):
            a("ds_read_b128 %s, v20 offset:%d" % (vr(QG + 4 * k), OL + 4224 * k))
        a("s_waitcnt lgkmcnt(0)\nv_cmp_ne_u32 vcc, s%d, v3\ns_cbranch_vccnz L_ox" % sA)
        a("v_max3_f32 v36, v28, v30, v32\nv_max_f32 v36, v36, v34")
        for k in range(4):
            a("v_sub_f32 v%d, v%d, v36" % (28 + 2 * k, 28 + 2 * k))
        for k in range(4):
            a("v_mul_f32 v%d, s%d, v%d" % (28 + 2 * k, sB, 28 + 2 * k))
        for k in range(4):
            a("v_exp_f32 v%d, v%d" % (28 + 2 * k, 28 + 2 * k))
        a("v_mul_f32 v37, v28, v29")
        for k in range(1, 4):
            a("v_fmac_f32 v37, v%d, v%d" % (28 + 2 * k, 29 + 2 * k))
        a("v_log_f32 v38, v37\nv_rcp_f32 v37, v37")
        for r in range(4):
            a("v_mul_f32 v%d, v28, v%d" % (QG + r, QG + r))
        a("v_fmac_f32 v38, s%d, v36" % sB)
        for k in range(1, 4):
            for r in range(4):
                a("v_fmac_f32 v%d, v%d, v%d" % (QG + r, 28 + 2 * k, QG + 4 * k + r))
        for r in range(4):
            a("v_mul_f32 v%d, v37, v%d" % (QG + r, QG + r))
        a("v_bfi_b32 v%d, v2, s%d, v%d" % (QG, sT0, QG))
        for r in range(1, 4):
            a("v_perm_b32 v%d, v%d, v38, s%d" % (QG + r, QG + r, sD + r - 1))
        if "O" not in o["cut"]:
            self.publish("L_po", QG, 23, sC)
        if o["twice"]:
            a("s_cmp_lg_u32 s97, 0\ns_cbranch_scc1 L_tw2\ns_mov_b32 s97, 1")
            self.stamp(5)
            a("s_branch L_twice\nL_tw2:")
            self.stamp(10)
        else:
            self.stamp(5)
        self.ack(10)
        a("s_cmp_ge_u32 s%d, 2\ns_cbranch_scc1 L_H\ns_cmp_eq_u32 s%d, 1\ns_cbranch_scc1 L_HP" % (sW, sW))
        a("s_lshl_b32 s%d, s%d, 12\ns_add_u32 s%d, s%d, s%d\ns_mov_b32 s%d, 0x0c04000c" % (sC, sS, sC, sC, sG, sE))
        a("s_and_b32 s%d, s%d, 3\ns_lshl_b32 s%d, s%d, 5\ns_add_u32 s%d, s%d, s%d" % (sD, sU, sD, sD, sD, sD, sS))
        a("s_lshr_b32 s%d, s%d, 2\ns_lshl1_add_u32 s%d, s%d, s%d\ns_lshl_b32 s%d, s%d, 7\ns_add_u32 s%d, s%d, 0x%x" % (sA, sU, sD, sD, sA, sD, sD, sD, sD, O2))
        if o["cown"]:
            a("v_mov_b32 v3, s%d\nds_write_b32 v9, v3 offset:%d" % (sL, F_L))
            a("s_lshl_b32 s%d, s%d, 10" % (sF, sS))
        else:
            a("s_lshr_b32 s%d, s%d, 4\ns_xor_b32 s%d, s%d, s%d\ns_or_b32 s%d, s%d, s%d" % (sB, sS, sA, sA, sB, sL, sL, sA) if o["o2loc"] else "s_mov_b32 s%d, 1" % sL)
            a("s_lshl_b32 s%d, s%d, 9" % (sF, sRB))
        a("s_add_u32 s%d, s%d, 0x%x\ns_and_b32 s%d, s%d, 0xffff\ns_mov_b32 s%d, 0xffff" % (sF, sF, O2, sG, sT, sH))
        a("s_lshr_b32 s%d, s%d, 9" % (sA, sD))
        self.spread(sD, sA, o["och"], sA)
        self.spread(sF, sRB, o["och"], sA)
        a("v_and_b32 v3, 15, v1\nv_lshrrev_b32 v4, 4, v1\nv_lshlrev_b32 v27, 1, v3\nv_lshl_add_u32 v27, v4, 7, v27\nv_mov_b32 v26, 0x101")
        if o["osrc"] == "x":
            a("s_mov_b32 s%d, 0" % sC)
        if "o" in o["xpre"]:
            a("s_mov_b64 exec, 0xff")
            self.load(VT, 13, "ws", "s%d" % sD, 0, o["xppol"])
            a("s_mov_b64 exec, -1")
        self.flag_wait("L_to", 9, F_T)
        self.stamp(6)
        def o_loads(p):
            self.count(32)
            for m in range(0 if "o" in o["cut"] else 4):
                self.load(WQ + 4 * m, 13, o["osrc"][:1] or "ws", "s%d" % sC, m * 1024, p)
        if o["opol"] != o["lpol"]:
            o_loads(o["opol"])
            a("s_branch L_ogc")
        a("L_og:")
        self.guard()
        o_loads(o["lpol"])
        a("L_ogc:")
        a("s_waitcnt vmcnt(0)")
        for m in range(4):
            d = WQ + 4 * m
            a("v_xor_b32 v%d, s%d, v%d\nv_perm_b32 v%d, v%d, v%d, s%d" % (d, sT0, d, 28 + m, d + 2, d + 1, sE))
            a("v_lshl_or_b32 v%d, v%d, 24, v%d" % (28 + m, d + 3, 28 + m))
        a("v_or3_b32 v3, v%d, v%d, v%d\nv_or_b32 v3, v3, v%d\nv_and_b32 v3, v2, v3\nv_cmp_ne_u32 vcc, 0, v3" % tuple(WQ + 4 * m for m in range(4)))
        a("v_max3_f32 v36, v28, v29, v30\nv_max_f32 v36, v36, v31")
        if not o["cut"]:
            self.again("L_og")
        self.dpp("v_max_f32", 36, 36, 36, "row_ror:8")
        self.rows_allreduce("v_max_f32", 36, 3)
        for m in range(4):
            a("v_sub_f32 v%d, v%d, v36" % (28 + m, 28 + m))
        for m in range(4):
            a("v_exp_f32 v%d, v%d" % (28 + m, 28 + m))
        for r in range(4):
            a("v_mul_f32 v%d, v28, v%d" % (40 + r, WQ + r))
        a("v_add_f32 v36, v28, v29\nv_add_f32 v37, v30, v31")
        for m in range(1, 4):
            for r in range(4):
                a("v_fmac_f32 v%d, v%d, v%d" % (40 + r, 28 + m, WQ + 4 * m + r))
            if m == 1:
                a("v_add_f32 v36, v36, v37")
            if m == 2:
                self.dpp("v_add_f32", 36, 36, 36, "row_ror:8")
        self.rows_allreduce("v_add_f32", 36, 3)
        a("v_rcp_f32 v36, v36")
        self.rows_scatter_sum([40])
        self.dpp("v_add_f32", 40, 40, 40, "row_ror:8")
        a("v_mul_f32 v40, v36, v40")
        self.rnd(40, 40)
        a("v_or_b32 v40, s%d, v40\nv_mov_b32 v41, v40\nv_permlane16_swap_b32 v40, v41" % sG)
        a("v_mov_b32 v42, v40\nv_mov_b32 v43, v41\nv_permlane32_swap_b32 v40, v42\nv_permlane32_swap_b32 v41, v43")
        a("s_mov_b64 exec, 0xff")
        if "2" not in o["cut"]:
            self.publish("L_p2", 40, 13, sD, None if o["cown"] else sL)
        self.stamp(8)
        a("s_mov_b64 exec, -1" if o["cown"] else "s_mov_b32 exec_lo, -1\ns_and_b32 s%d, s%d, 1\ns_lshl_b32 s%d, s%d, 3\ns_lshr_b32 s%d, 0xff00ff00, s%d" % (sE, sX, sE, sE, sE, sE))
        if o["lag"] & 2:
            a("s_waitcnt vmcnt(0)")
        if o["t2"]:
            self.flag_wait("L_t2", 9, F_T + 4)
        self.stamp(9)
        a("L_o2:")
        self.guard()
        self.count(32 * 8)
        if "2" not in o["cut"] and o["o2loc"] and not o["cown"]:
            a("s_mov_b32 exec_lo, s%d" % sE)
            self.load(44, 13, "ws", "s%d" % sF, 0, o["rpol"])
            a("s_not_b32 exec_lo, s%d" % sE)
            self.load(44, 13, "ws", "s%d" % sF, 0, o["lpol"])
            a("s_mov_b32 exec_lo, -1")
        elif "2" not in o["cut"]:
            self.load(44, 13, "ws", "s%d" % sF, 0, o["rpol"])
        a("s_waitcnt vmcnt(0)")
        for r in range(4):
            a("v_xor_b32 v%d, s%d, v%d" % (44 + r, sG, 44 + r))
        a("v_or3_b32 v3, v44, v45, v46\nv_or_b32 v3, v3, v47\nv_and_b32 v3, s%d, v3\nv_cmp_ne_u32 vcc, 0, v3" % sH)
        if not o["cut"]:
            a("s_cbranch_vccnz L_o2")
        for r in range(4):
            a("ds_write_b16_d16_hi v27, v%d offset:%d" % (44 + r, IM + 32 * r))
        a("ds_write_b16 v9, v26 offset:%d" % F_IM)
        self.writeback("O")
        self.stamp(7)
        self.finish()
        a("L_HP:")
        def fpre():
            a("s_lshl_b32 s%d, s%d, %d\ns_lshl_b32 s%d, s%d, %d\ns_add_u32 s%d, s%d, s%d\ns_add_u32 s%d, s%d, 0x%x" % (
                sA, sX, 16 - o["cown"], sC, sS, 11 - o["cown"], sA, sA, sC, sA, sA, FX))
            for m in range(2 - o["cown"]):
                self.load(VT + 4 * m, 13, "ws", "s%d" % sA, 1024 * m, o["fppol"])
        if o["fpre"] == "a":
            fpre()
        self.gu_tile()
        if o["h2"]:
            a("s_lshl1_add_u32 s%d, s%d, s%d\ns_mul_i32 s%d, s%d, 28672\ns_lshl_b32 s%d, s%d, 9" % (sC, sOK, sH, sC, sC, sG, sG))
            a("s_add_u32 s%d, s%d, s%d\ns_add_u32 s%d, s%d, 0x%x\nv_mov_b32 v26, v13" % (sG, sG, sC, sG, sG, HX))
            a("v_and_b32 v6, 1, v1\nv_lshlrev_b32 v27, 3, v6\nv_bfe_u32 v5, v1, 1, 1\nv_lshl_add_u32 v27, v5, 8, v27")
        else:
            a("s_lshl_b32 s%d, s%d, 9\ns_mul_i32 s%d, s%d, 57344\ns_add_u32 s%d, s%d, s%d\ns_add_u32 s%d, s%d, 0x%x" % (
                sG, sG, sC, sKS, sG, sG, sC, sG, sG, HX))
            a("v_mov_b32 v5, s%d\nv_mov_b32 v6, s%d\nv_cmp_gt_u32 vcc, 32, v1\nv_lshrrev_b32 v4, 5, v1\nv_cndmask_b32 v5, v6, v5, vcc" % (sH, sOK))
            a("v_mul_u32_u24 v26, %d, v4\nv_add3_u32 v26, v26, v13, v5" % (28672 - 512))
            a("v_and_b32 v6, 1, v1\nv_lshlrev_b32 v27, 3, v6\nv_lshl_add_u32 v27, v4, 7, v27\nv_bfe_u32 v5, v1, 1, 1\nv_lshl_add_u32 v27, v5, 8, v27")
        a("v_bfe_u32 v5, v1, 2, 3\nv_lshl_add_u32 v27, v5, 4, v27\ns_mov_b32 s%d, 0x01010101" % sA)
        if "h" in o["xpre"]:
            self.load(VT + 8, 26, "ws", "s%d" % sG, 0, o["xppol"])
        a("L_hp:")
        self.guard()
        a("ds_read_b32 v3, v9 offset:%d" % C_H)
        for k in range(4):
            a("ds_read2st64_b64 %s, v27 offset0:%d offset1:%d" % (vr(WQ + 4 * k), RH // 512 + 2 * k, RH // 512 + 2 * k + 1))
        a("s_waitcnt lgkmcnt(0)\nv_cmp_ne_u32 vcc, s%d, v3\ns_cbranch_vccnz L_hp" % sA)
        self.sum4(WQ)
        self.tag4(WQ, [WQ, WQ + 1, WQ + 2, WQ + 3])
        if o["h2"]:
            a("s_mov_b32 exec_hi, 0")
        if "H" not in o["cut"]:
            self.publish("L_ph", WQ, 26, sG, None if o["cown"] else sL)
        if o["h2"]:
            a("s_mov_b32 exec_hi, -1")
        if o["fpre"] == "c":
            self.flag_wait("L_tp", 9, F_T + 4)
        if o["fpre"] in ("b", "c"):
            fpre()
        if o["fpre"] or o["xpre"]:
            a("s_waitcnt vmcnt(0)")
        self.stamp(7)
        self.finish()
        a("L_H:")
        if o["cown"]:
            return self.h_gather()
        a("s_lshl_b32 s%d, s%d, 1\ns_add_u32 s%d, s%d, s%d\ns_mul_i32 s%d, s%d, 224" % (sF, sRB, sF, sF, sW, sF, sF))
        a("s_add_u32 s%d, s%d, 0x%x\ns_add_u32 s%d, s%d, 28672" % (sF, sF, HX - 448, sG, sF))
        a("v_and_b32 v3, 15, v1\nv_min_u32 v3, 13, v3\nv_lshrrev_b32 v5, 4, v1")
        a("v_mul_u32_u24 v26, 57344, v5\nv_lshl_add_u32 v26, v3, 4, v26")
        a("v_and_b32 v4, 1, v3\nv_and_b32 v6, 1, v5\nv_lshl_add_u32 v4, v4, 1, v6\nv_and_b32 v3, 14, v3")
        a("v_lshl_add_u32 v27, v4, 5, v3\nv_lshrrev_b32 v5, 1, v5\nv_lshl_add_u32 v27, v5, 4, v27")
        a("s_lshl_b32 s%d, s%d, 7\nv_add_u32 v27, s%d, v27" % (sA, sW, sA))
        self.flag_wait("L_th", 22, F_T)
        self.stamp(6)
        def h_loads(p):
            self.count(1024)
            if "h" not in o["cut"]:
                self.load(QB, 26, "ws", "s%d" % sF, 0, p)
                self.load(QB + 4, 26, "ws", "s%d" % sG, 0, p)
        if o["hpol"] != o["lpol"]:
            h_loads(o["hpol"])
            a("s_branch L_hgc")
        a("L_hg:")
        self.guard()
        h_loads(o["lpol"])
        a("L_hgc:")
        a("s_waitcnt vmcnt(0)")
        self.untag(QB, 2, 3)
        if not o["cut"]:
            self.again("L_hg")
        self.rows_scatter_sum([QB, QB + 4])
        self.rnd(4, QB)
        self.rnd(5, QB + 4)
        self.sigmoid(4, 4)
        a("v_mul_f32 v4, v4, v5")
        self.rnd(4, 4)
        a("ds_write_b16_d16_hi v27, v4 offset:%d\nds_write_b8 v22, v8 offset:%d" % (IM, F_IM))
        self.stamp(7)
        self.finish()

    def h_gather(self):
        a, o = self.a, self.o
        G, U = 48, 56
        a("s_lshl1_add_u32 s%d, s%d, s%d\ns_mul_i32 s%d, s%d, 448\ns_add_u32 s%d, s%d, 0x%x" % (sC, sS, sW, sC, sC, sC, sC, HX - 896))
        a("s_add_u32 s%d, s%d, %d\ns_add_u32 s%d, s%d, %d\ns_add_u32 s%d, s%d, %d" % (sD, sC, 2 * 57344, sE, sC, 28672, sF, sD, 28672))
        a("v_and_b32 v3, 31, v1\nv_min_u32 v3, 27, v3\nv_lshrrev_b32 v5, 5, v1")
        a("v_mul_u32_u24 v26, 57344, v5\nv_lshl_add_u32 v26, v3, 4, v26")
        if o["h2"]:
            mask = sum(1 << (7 * x + min((x + 3) & 7, 6)) for x in range(8))
            a("s_lshl1_add_u32 s%d, s%d, s%d\ns_mul_i32 s%d, s%d, 28\ns_sub_u32 s%d, s%d, 56\nv_add_u32 v4, s%d, v3\nv_lshrrev_b32 v4, 5, v4" % (sA, sS, sW, sA, sA, sA, sA, sA))
            a("s_mov_b32 s%d, 0x%x\ns_mov_b32 s%d, 0x%x\nv_lshrrev_b64 v[6:7], v4, s[%d:%d]" % (sP, mask & 0xffffffff, sP + 1, mask >> 32, sP, sP + 1))
            a("v_bfe_i32 v6, v6, 0, 1\nv_mov_b32 v7, 0x%x\nv_bfi_b32 v25, v6, v26, v7" % OOB)
            for j in range(4):
                a("v_and_b32 v%d, s%d, v6" % (28 + j, sT0 + j))
            if o["hskip"]:
                a("v_cmp_ne_u32 s[%d:%d], 0, v6" % (sP, sP + 1))
        a("v_cmp_lt_u32 vcc, 13, v3\nv_add_u32 v4, %d, v3\nv_cndmask_b32 v4, v3, v4, vcc" % (128 - 14))
        a("v_and_b32 v3, 1, v3\nv_and_b32 v4, -2, v4\nv_lshl_add_u32 v27, v3, 6, v4\nv_lshl_add_u32 v27, v5, 4, v27")
        a("s_lshl_b32 s%d, s%d, 8\nv_add_u32 v27, s%d, v27" % (sA, sW, sA))
        self.flag_wait("L_th", 22, F_T)
        self.stamp(6)
        if o["hskip"]:
            a("s_cmp_lg_u64 s[%d:%d], 0\ns_cbranch_scc1 L_hg\nL_hs:" % (sP, sP + 1))
            self.guard()
            for m in (0, 2):
                self.load(G + 4 * m, 26, "ws", "s%d" % (sC + m), 0, o["hpol2"])
            a("s_waitcnt vmcnt(0)")
            for b in (G, U):
                for r in range(4):
                    a("v_xor_b32 v%d, s%d, v%d" % (b + r, sT0 + r, b + r))
            a("v_or3_b32 v3, v%d, v%d, v%d\nv_or3_b32 v4, v%d, v%d, v%d\nv_or3_b32 v3, v3, v%d, v%d\nv_bitop3_b32 v3, v3, v4, v2 bitop3:0xa8\nv_cmp_ne_u32 vcc, 0, v3" % (
                G, G + 1, G + 2, U, U + 1, U + 2, G + 3, U + 3))
            self.again("L_hs")
            a("s_branch L_hc")
        a("L_hg:")
        self.guard()
        self.count(1024)
        if "h" not in o["cut"]:
            for m in range(0, 4, 1 + o["hcut"]):
                self.load(G + 4 * m, 25 if o["h2"] and m & 1 else 26, "ws", "s%d" % (sC + m), 0, o["hpol2"])
        a("s_waitcnt vmcnt(0)")
        self.untag(G, 4, 3, vt=28 if o["h2"] else None)
        if not o["cut"]:
            self.again("L_hg")
        for b in (G, U):
            a("v_pk_add_f32 v[%d:%d], v[%d:%d], v[%d:%d]" % (b, b + 1, b, b + 1, b + 4, b + 5))
            a("v_pk_add_f32 v[%d:%d], v[%d:%d], v[%d:%d]" % (b + 2, b + 3, b + 2, b + 3, b + 6, b + 7))
        if o["hskip"]:
            a("s_nop 1\nL_hc:")
        for b in (G, U):
            a("v_permlane32_swap_b32 v%d, v%d\nv_permlane32_swap_b32 v%d, v%d" % (b, b + 2, b + 1, b + 3))
        for b in (G, U):
            a("v_pk_add_f32 v[%d:%d], v[%d:%d], v[%d:%d]" % (b, b + 1, b, b + 1, b + 2, b + 3))
        for r in (G, G + 1, U, U + 1):
            self.rnd(r, r)
        for op in ("v_mul_f32 v%d, " + "0x%x" % (LOG2E ^ 0x80000000) + ", v%d", "v_exp_f32 v%d, v%d", "v_add_f32 v%d, 1.0, v%d", "v_rcp_f32 v%d, v%d",
                   "v_cvt_pk_bf16_f32 v%d, 0, v%d"):
            for r in (G, G + 1):
                a(op % (r, r))
        a("v_mul_f32 v%d, v%d, v%d\nv_mul_f32 v%d, v%d, v%d" % (G, G, U, G + 1, G + 1, U + 1))
        a("v_cvt_pk_bf16_f32 v4, v%d, v%d" % (G, G + 1))
        a("ds_write_b16 v27, v4 offset:%d\nds_write_b16_d16_hi v27, v4 offset:%d\nds_write_b8 v22, v8 offset:%d" % (IM, IM + 32, F_IM))
        self.stamp(7)
        self.finish()

    def preread(self):
        a, o = self.a, self.o
        if o["pre"]:
            a("s_lshl_b32 s%d, s%d, 5\ns_add_u32 s%d, s%d, s%d\nv_lshlrev_b32 v40, 4, v1" % (sU, sX, sU, sU, sS))
        if "o" in o["pre"]:
            a("s_lshl2_add_u32 s%d, s%d, s%d\ns_lshl_b32 s%d, s%d, 10\ns_add_u32 s%d, s%d, 0x%x" % (sR, sU, sW, sR, sR, sR, sR, OX))
            self.load(192, 40, "ws", "s%d" % sR, 0, o["ppol"])
        if "h" in o["pre"]:
            a("s_cmp_lg_u32 s%d, 1\ns_cbranch_scc1 L_npre" % sW)
            a("s_lshr_b32 s%d, s%d, 2\ns_mul_i32 s%d, s%d, 28672\ns_mul_i32 s%d, s%d, 3584\ns_add_u32 s%d, s%d, s%d" % (sR, sS, sR, sR, sU, sX, sR, sR, sU))
            a("s_and_b32 s%d, s%d, 3\ns_mul_i32 s%d, s%d, 896\ns_add_u32 s%d, s%d, s%d\ns_add_u32 s%d, s%d, 0x%x" % (sU, sS, sU, sU, sR, sR, sU, sR, sR, HX))
            a("s_mov_b32 exec_hi, 0xffffff")
            self.load(48, 40, "ws", "s%d" % sR, 0, o["ppol"])
            a("s_mov_b32 exec_hi, -1\nL_npre:")

    def writeback(self, at):
        if at in self.o["wb"]:
            self.a("s_cmp_lg_u32 s%d, %d\ns_cbranch_scc1 L_nwb%s\nbuffer_wbl2 sc1\nL_nwb%s:" % (sS, self.o["wbs"], at, at))

    def finish(self):
        self.a("s_waitcnt lgkmcnt(0)")
        self.a("s_branch L_end" if self.o["stamps"] or self.o["hold"] else "s_endpgm")

    def f_waves(self):
        a, o = self.a, self.o
        W, pol = o["wf"], o["pol"]
        SEL, GU, WO, WD, Y, AO, DA, DB, VG = 56, 64, 128, 160, 188, 192, 224, 228, 232
        a("L_F:")
        for n in ("gw", "wg", "wu", "wo", "wd", "out"):
            self.ptr(n)
        self.desc("gw")
        if o["pf"] == 1:
            a("s_getpc_b64 s[%d:%d]\nL_pc:" % (sP, sP + 1))
            a("s_sub_u32 s%d, s%d, L_pc-%s_kernel\ns_subb_u32 s%d, s%d, 0" % (sP, sP, NAME, sP + 1, sP + 1))
            a("s_lshl_b32 s%d, s%d, 9\nv_lshl_add_u32 v250, v7, 2, s%d\nv_min_u32 v250, L_exit-%s_kernel, v250" % (sC, sS, sC, NAME))
            a("v_mov_b32 v251, s%d\nv_add_co_u32 v250, vcc, s%d, v250\ns_nop 1\nv_addc_co_u32 v251, vcc, 0, v251, vcc" % (sP + 1, sP))
            a("s_cmp_lg_u32 s%d, 0\ns_cbranch_scc1 L_nopf\nglobal_load_dword v252, v[250:251], off\nL_nopf:" % sW)
        a("v_and_b32 v3, 31, v1\nv_lshlrev_b32 v253, 4, v3\nv_lshrrev_b32 v4, 5, v1\nv_lshl_add_u32 v254, v4, 11, v253")
        a("v_mov_b32 v8, 1\nv_mov_b32 v9, 0\nv_mov_b32 v2, 0xff")
        a("s_waitcnt lgkmcnt(0)")
        a("s_load_dword s%d, s[%d:%d], 0" % (sT, SRD["ws"], SRD["ws"] + 1))
        self.stamp(1)
        self.desc("ws")
        if o["prepos"] == 0:
            self.preread()
        for n in ("wg", "wu", "wo", "wd", "out"):
            self.desc(n)
        a("v_lshlrev_b32 v3, 2, v1\nv_and_b32 v3, 31, v3\nds_write_b32 v3, v9")
        a("s_mov_b32 s%d, %d" % (sCNT, o["spin"]))
        a("s_lshl_b32 s%d, s%d, 2\nv_lshlrev_b32 v234, 4, v4\nv_add_u32 v235, s%d, v234" % (sA, sW, sA))
        self.gu_tile()
        if o["h2"]:
            a("s_cmp_eq_u32 s%d, 1\ns_cselect_b64 s[%d:%d], s[%d:%d], s[%d:%d]" % (sH, SRD["wg"], SRD["wg"] + 1, SRD["wu"], SRD["wu"] + 1, SRD["wg"], SRD["wg"] + 1))
            a("s_cmp_eq_u32 s%d, 8\ns_cselect_b32 s%d, 0x%x, 0\ns_mov_b32 s%d, 0" % (sE, sOK, OOB, sH))
            a("s_mov_b32 s%d, %d\ns_bitcmp1_b32 s%d, 0\ns_cselect_b32 s%d, %d, s%d" % (sR, 7168 * (256 - 14), sKS, sR, -7168 * (256 + 14), sR))
            a("s_xor_b32 s97, s%d, 4\ns_lshl_b32 s97, s97, 7" % sB)
        a("s_lshr_b32 s%d, s%d, 1\nv_mov_b32 v244, s%d\ns_add_u32 s%d, s%d, s%d\nv_mov_b32 v247, s%d" % (sC, sW, sC, sE, sE, sC, sE))
        if o["ex"]:
            a("s_add_u32 s%d, s%d, 8\ns_cmp_lt_u32 s%d, %d\ns_cselect_b32 s%d, s%d, s%d\nv_mov_b32 v238, s%d" % (sD, sC, sX, o["ex"], sD, sD, sE if o["exl"] else sC, sD))
        L = o["gil"]
        if L:
            a("v_lshrrev_b32 v3, %d, v6\nv_or_b32 v6, v3, v5" % L)
        a("v_mul_u32_u24 v11, 7168, v6\nv_add_u32 v11, v11, v7")
        a("v_add_u32 v246, s%d, v11\nv_add_u32 v11, s%d, v11" % (sOK, sH))
        a("s_mul_i32 s%d, s%d, %d\ns_lshl_b32 s%d, s%d, 7\ns_add_u32 s%d, s%d, s%d" % (sB, sB, (64 >> L) * 7168, sC, sG, sB, sB, sC))
        self.q_block(sA, sC)
        a("s_lshr_b32 s%d, s%d, 2\ns_lshl_b32 s%d, s%d, 12\ns_and_b32 s%d, s%d, 3\ns_lshl_b32 s%d, s%d, 8" % (sF, sA, sF, sF, sA, sA, sA, sA))
        a("s_add_u32 s%d, s%d, s%d\ns_lshl_b32 s%d, s%d, 10\ns_add_u32 s%d, s%d, s%d\ns_add_u32 s%d, s%d, 0x%x" % (
            sF, sF, sA, sA, sKS, sF, sF, sA, sF, sF, QX))
        a("s_lshr_b32 s%d, s%d, 12" % (sA, sF))
        self.spread(sF, sA, min(o["qch"], 16), sA)
        a("s_lshl_b32 s%d, s%d, 3\ns_lshr_b32 s%d, s%d, 2\ns_add_u32 s%d, s%d, s%d" % (sRB, sX, sA, sS, sRB, sRB, sA))
        if o["colmap"]:
            a("s_and_b32 s%d, s%d, 3\ns_and_b32 s%d, s%d, 1" % (sH, sS, sOK, sW))
            a("s_lshl_b32 s%d, s%d, 1\ns_add_u32 s%d, s%d, s%d\ns_lshl_b32 s%d, s%d, 8" % (sC, sH, sC, sC, sOK, sC, sC))
        else:
            a("s_and_b32 s%d, s%d, 3\ns_xor_b32 s%d, s%d, 2\ns_and_b32 s%d, s%d, 1" % (sH, sS, sH, sH, sOK, sW))
            a("s_lshl_b32 s%d, s%d, 3\ns_add_u32 s%d, s%d, s%d\ns_lshl_b32 s%d, s%d, 7" % (sC, sOK, sC, sC, sH, sC, sC))
        a("s_lshl_b32 s%d, s%d, 1\ns_lshr_b32 s%d, s%d, 1\ns_add_u32 s%d, s%d, s%d" % (sE, sRB, sA, sW, sE, sE, sA))
        if o["cown"]:
            a("s_lshl2_add_u32 s%d, s%d, s%d" % (sE, sS, sW))
            if o["colmap"]:
                a("s_lshl_b32 s%d, s%d, 8" % (sC, sX))
            else:
                a("s_and_b32 s%d, s%d, 1\ns_lshr_b32 s%d, s%d, 1\ns_lshl3_add_u32 s%d, s%d, s%d\ns_lshl_b32 s%d, s%d, 7" % (sC, sX, sA, sX, sC, sC, sA, sC, sC))
        a("s_lshr_b32 s%d, s%d, 2\ns_lshl_b32 s%d, s%d, 18\ns_and_b32 s%d, s%d, 3\ns_lshl_b32 s%d, s%d, 12" % (sD, sE, sD, sD, sA, sE, sA, sA))
        a("s_add_u32 s%d, s%d, s%d\ns_add_u32 s%d, s%d, s%d" % (sD, sD, sA, sD, sD, sC))
        a("s_mul_i32 s%d, s%d, %d\ns_add_u32 s%d, s%d, s%d" % (sE, sE, 28 * 2048, sE, sE, sC))
        a("v_lshrrev_b32 v3, 4, v1\nv_lshl_add_u32 v6, v5, %d, v7" % (7 if o["colmap"] else 9))
        a("v_lshl_add_u32 v12, v3, 14, v6\nv_lshl_add_u32 v13, v3, 11, v6")
        if o["oil"]:
            a("s_lshr_b32 s%d, s%d, 2\ns_lshr_b32 s%d, s%d, 1\ns_lshl1_add_u32 s%d, s%d, s%d\ns_lshl_b32 s%d, s%d, 13" % (sD, sS, sA, sW, sD, sD, sA, sD, sD))
            a("s_add_u32 s%d, s%d, s%d\ns_mul_i32 s%d, s%d, %d\ns_add_u32 s%d, s%d, s%d" % (sD, sD, sC, sE, sX, 448 * 2048, sE, sE, sD))
            a("s_lshl_b32 s%d, s%d, 20\ns_add_u32 s%d, s%d, s%d\nv_mov_b32 v12, v13" % (sA, sX, sD, sD, sA))
        a("s_lshl_b32 s%d, s%d, 10\nv_lshlrev_b32 v236, 4, v1\nv_add_u32 v236, s%d, v236" % (sA, sW, sA))
        a("v_mov_b32 v240, s%d" % sW)
        a("v_and_b32 v5, 15, v1\nv_lshlrev_b32 v6, 4, v5\nv_lshl_add_u32 v239, v3, 16, v6")
        if o["qch"] == 32:
            a("v_lshl_add_u32 v239, v3, %d, v239" % (o["sh"] + 4))
        a("v_and_b32 v6, 1, v1\nv_lshl_add_u32 v237, v3, 1, v6\nv_lshlrev_b32 v237, 8, v237")
        a("v_lshrrev_b32 v5, 1, v5\nv_lshl_add_u32 v237, v5, 4, v237")
        a("v_lshlrev_b32 v255, 8, v6\nv_lshl_add_u32 v255, v4, 9, v255\nv_bfe_u32 v5, v1, 1, 4\nv_lshl_add_u32 v255, v5, 4, v255")
        own, fq = o["cown"], o["fq"] if o["cown"] else 2
        if not own:
            a("s_lshl_b32 s%d, s%d, 10\nv_add_u32 v255, s%d, v255" % (sA, sOK, sA))
        a("v_lshrrev_b32 v4, %d, v1\nv_and_b32 v5, %d, v1\nv_lshlrev_b32 v241, 4, v5\nv_lshl_add_u32 v241, v4, %d, v241" % (fq, (1 << fq) - 1, 9 + fq if own else 12))
        a("v_lshrrev_b32 v4, 3, v1\nv_lshlrev_b32 v243, 7, v%d\nv_lshl_add_u32 v243, v4, 4, v243" % (240 if own else 244))
        a("v_lshlrev_b32 v242, 4, v1\nv_lshlrev_b32 v245, 3, v5\nv_lshl_add_u32 v245, v3, 1, v245")
        if own:
            nr = (1 << (fq - 1)) - 1
            a("s_lshl_b32 s%d, s%d, 15\ns_add_u32 s%d, s%d, 0x%x\ns_lshl_b32 s%d, s%d, %d\ns_add_u32 s%d, s%d, s%d" % (sA, sX, sA, sA, FX, sC, sS, 4 + fq, sP, sA, sC))
            a("s_andn2_b32 s%d, s%d, %d\ns_lshl_b32 s%d, s%d, 10\ns_add_u32 s%d, s%d, s%d" % (sC, sS, nr, sC, sC, sP + 1, sA, sC))
            a("s_and_b32 s%d, s%d, %d\ns_xor_b32 s%d, s%d, %d" % (sOK, sS, nr, sOK, sOK, o["fsel"] & nr))
        else:
            a("s_lshl_b32 s%d, s%d, 2\nv_mov_b32 v10, s%d" % (sA, sOK, sA))
            a("s_lshl_b32 s%d, s%d, 1\ns_add_u32 s%d, s%d, s%d\ns_lshl_b32 s%d, s%d, 16" % (sA, sH, sA, sA, sOK, sA, sA))
            a("s_lshl_b32 s%d, s%d, 6\ns_add_u32 s%d, s%d, s%d\ns_add_u32 s%d, s%d, 0x%x" % (sC, sRB, sA, sA, sC, sP, sA, FX))
            if o["floc"]:
                a("s_lshl1_add_u32 s%d, s%d, s%d\ns_lshl_b32 s%d, s%d, 6\ns_lshl_b32 s%d, s%d, 16\ns_add_u32 s%d, s%d, s%d\ns_add_u32 s%d, s%d, 0x%x" % (
                    sA, sS, sOK, sA, sA, sC, sX, sA, sA, sC, sP, sA, FX))
            a("s_and_b32 s%d, s%d, 1\ns_or_b32 s%d, s%d, s%d" % (sA, sS, sOK, sOK, sA))
            a("s_lshl_b32 s%d, s%d, 16\ns_lshl_b32 s%d, s%d, 11\ns_add_u32 s%d, s%d, s%d\ns_add_u32 s%d, s%d, 0x%x" % (sA, sX, sC, sS, sA, sA, sC, sP + 1, sA, FX))
        a("s_bfe_u32 s%d, s%d, 0x10003" % (sC, sS))
        if o["colmap"]:
            a("s_lshl_b32 s%d, s%d, 1\ns_add_u32 s%d, s%d, s%d" % (sA, sX, sA, sA, sC))
        else:
            a("s_lshl_b32 s%d, s%d, 2\ns_lshr_b32 s%d, s%d, 1\ns_add_u32 s%d, s%d, s%d" % (sC, sC, sA, sX, sA, sA, sC))
            a("s_and_b32 s%d, s%d, 1\ns_lshl_b32 s%d, s%d, 3\ns_add_u32 s%d, s%d, s%d" % (sC, sX, sC, sC, sA, sA, sC))
        a("s_and_b32 s%d, s%d, 16\ns_add_u32 s%d, s%d, s%d\ns_lshl_b32 s%d, s%d, 7" % (sC, sS, sA, sA, sC, sA, sA))
        a("s_and_b32 s%d, s%d, %d\ns_lshl_b32 s%d, s%d, 4\ns_add_u32 s%d, s%d, s%d" % (sC, sS, 8 - (1 << (fq - 1)), sC, sC, sKS, sA, sC))
        self.sel_x()
        a("v_lshlrev_b32 v4, 4, v1\nv_mov_b32 v3, 0x0c0c0100\nv_alignbit_b32 v5, v3, v3, v4")
        a("v_mov_b32 v3, 0x0c0c0302\nv_alignbit_b32 v6, v3, v3, v4\nv_bfe_u32 v7, v1, 1, 2\nv_mov_b32 v4, 0x0c0c0c0c")
        for j in range(4):
            a("v_cmp_eq_u32 vcc, %d, v7\nv_cndmask_b32 v%d, v4, v5, vcc\nv_cndmask_b32 v%d, v4, v6, vcc" % (j, SEL + j, SEL + 4 + j))
        a("s_lshl_b32 s%d, s%d, 9\ns_waitcnt lgkmcnt(0)" % (sC, sW))
        def g_loads():
            if "g" not in o["cut"]:
                self.load(GU, 254, "x", "s%d" % sC)
                self.load(GU + 4, 253, "gw", "s%d" % sC, 0, o["xpol"])
            if o["h2"]:
                self.load(AO + 16, 10, "x", "s97", 0)
                self.load(AO + 20, 10, "x", "s97", 16)
        def touch():
            if not o["tlb"]:
                return
            a("s_mov_b64 exec, 1\ns_add_u32 s%d, s%d, s%d" % (sA, sB, sR))
            for c, v, buf, so in (("g", 11, "wg", sB), ("g", 246, "wg", sA), ("o", 12, "wo", sD), ("d", 13, "wd", sE), ("r", 9, "out", sKS)):
                if c in o["tlb"]:
                    a("buffer_load_uBYTE v41, v%d, %s, s%d offen".replace("uBYTE", "ubyte") % (v, srd(buf), so))
            a("s_mov_b64 exec, -1")
        if o["tlbpos"] == 0:
            touch()
        if o["gpos"] == 0:
            g_loads()
        self.tags()
        a("s_cmp_lg_u32 s%d, 0\ns_cbranch_scc1 L_nodie" % sW)
        a("s_lshl_b32 s%d, s%d, 5\ns_add_u32 s%d, s%d, s%d\ns_lshl_b32 s%d, s%d, 2\ns_add_u32 s%d, s%d, 0x%x" % (sA, sX, sA, sA, sS, sA, sA, sA, sA, DX))
        a("s_xor_b32 s%d, s%d, s%d\nv_mov_b32 v3, s%d\ns_mov_b64 exec, 1" % (sU, sL, sT, sU))
        a("buffer_store_dword v3, v9, %s, s%d offen\ns_mov_b64 exec, -1" % (srd("ws"), sA))
        if "q" in o["xpre"]:
            a("s_mov_b32 exec_hi, 0")
            self.load(AO, 239, "ws", "s%d" % sF, 0, o["xppol"])
            a("s_mov_b32 exec_hi, -1")
        if o["qloc"] == 1:
            a("s_waitcnt vmcnt(0)")
            self.die_read(25)
        if o["gpos"] == 2:
            g_loads()
        a("L_nodie:\ns_barrier")
        if o["gpos"] == 0:
            a("s_waitcnt vmcnt(0)")
        a("s_cmp_lg_u32 s%d, 0\ns_cbranch_scc1 L_noq" % sW)
        QR = GU if o["gpos"] == 1 else GU + 16
        for k in range(4):
            a("ds_read_b128 %s, v237 offset:%d" % (vr(QR + 4 * k), RQ + 1024 * k))
        a("s_waitcnt lgkmcnt(0)")
        self.sum4(QR)
        self.tag4(248, [QR, QR + 1, QR + 2, QR + 3])
        if o["gpos"] == 2:
            a("s_waitcnt vmcnt(0)")
        if o["qloc"]:
            a("s_mov_b32 s%d, 0xffff\ns_not_b32 s%d, s%d\ns_bitcmp1_b32 s%d, 0\ns_cselect_b32 s%d, s%d, s%d\ns_mov_b32 exec_lo, s%d\ns_mov_b32 exec_hi, 0" % (
                  sA, sU, sA, sX, sU, sA, sU, sU))
            if "Q" not in o["cut"]:
                a("buffer_store_dwordx4 v[248:251], v239, %s, s%d offen %s" % (srd("ws"), sF, o["qst"]))
            if o["qloc"] == 1:
                a("s_mov_b32 exec_lo, -1\ns_waitcnt vmcnt(%d)" % ("Q" not in o["cut"]))
                self.die_test(25)
            a("s_not_b32 exec_lo, s%d" % sU)
            if o["qloc"] == 2:
                a("buffer_store_dwordx4 v[248:251], v239, %s, s%d offen" % (srd("ws"), sF))
            elif "Q" not in o["cut"]:
                self.publish("L_pq", 248, 239, sF)
            a("s_mov_b64 exec, -1")
        else:
            a("s_mov_b32 exec_hi, 0")
            if "Q" not in o["cut"]:
                a("buffer_store_dwordx4 v[248:251], v239, %s, s%d offen %s" % (srd("ws"), sF, o["qst"]))
            a("s_mov_b32 exec_hi, -1")
        a("L_noq:")
        self.stamp(2)
        if o["prepos"] == 1:
            self.preread()
        if o["fpre"] == "w":
            a("s_cmp_lt_u32 s%d, 2\ns_cbranch_scc1 L_nfp" % sW)
            self.load(40, 241, "ws", "s%d" % sP, 0, o["fppol"])
            a("L_nfp:")
        if o["fpre"] == "r":
            a("s_bitcmp1_b32 s%d, 0\ns_cbranch_scc1 L_nfp\ns_lshl_b32 s%d, s%d, 10\ns_add_u32 s%d, s%d, s%d" % (sS, sA, sW, sA, sA, sP + 1))
            self.load(40, 242, "ws", "s%d" % sA, 0, o["fppol"])
            a("L_nfp:")
        if o["gpos"] == 2:
            a("s_cmp_eq_u32 s%d, 0\ns_cbranch_scc1 L_g0" % sW)
        if o["tlbpos"] == 1:
            touch()
        if o["gpos"]:
            g_loads()
        if o["gpos"] == 2:
            a("s_waitcnt vmcnt(0)\nL_g0:")
        a("ds_read_b128 v[16:19], v236 offset:%d\nds_read_b128 v[20:23], v236 offset:%d\ns_waitcnt lgkmcnt(0)" % (XS, XS + 4096))
        self.x_operands()
        if o["gpos"] == 1:
            a("s_waitcnt vmcnt(0)")
        if o["h2"]:
            self.x_operands(AO, AO + 16)
        self.ack(1)
        self.stamp(1, True)
        t = GU + 8
        for j in range(4):
            a("v_lshlrev_b32 v%d, 16, v%d\nv_lshlrev_b32 v%d, 16, v%d" % (t + j, GU + j, t + 4 + j, GU + 4 + j))
            a("v_and_b32 v%d, 0xffff0000, v%d\nv_and_b32 v%d, 0xffff0000, v%d" % (GU + j, GU + j, GU + 4 + j, GU + 4 + j))
        for j in range(4):
            a("v_mul_f32 v%d, v%d, v%d\nv_mul_f32 v%d, v%d, v%d" % (t + j, t + j, t + 4 + j, GU + j, GU + j, GU + 4 + j))
        for j in range(4):
            self.rnd(t + j, t + j); self.rnd(GU + j, GU + j)
        for j in range(4):
            a("v_add_f32 v%d, v%d, v%d" % (t + j, t + j, GU + j))
        a("v_add_f32 v%d, v%d, v%d\nv_add_f32 v%d, v%d, v%d\nv_add_f32 v4, v%d, v%d" % (t, t, t + 1, t + 2, t + 2, t + 3, t, t + 2))
        for n in (8, 4, 2, 1):
            self.dpp("v_add_f32", 4, 4, 4, "row_ror:%d" % n)
        self.rows_allreduce("v_add_f32", 4, 3, (16,))
        a("ds_write_b32 v235, v4 offset:%d" % GP)
        a("s_waitcnt lgkmcnt(0)")
        a("s_barrier")
        self.stamp(3)

        def issue(i):
            if i < 16 and o["ilv"]:
                self.load(GU + 4 * i, 246 if i & 1 else 11, "wu" if i & 1 else "wg", "s%d" % sB, 0, pol)
                if i & 1 and i < 15:
                    a("s_add_u32 s%d, s%d, %d" % (sB, sB, 7168 * (krow(i // 2 + 1, L) - krow(i // 2, L))))
            elif i < 16:
                self.load(GU + 4 * i, 246 if i >= 8 else 11, "wu" if i >= 8 and not o["h2"] else "wg", "s%d" % sB, 0, pol)
                if i == 7 and o["h2"]:
                    a("s_add_u32 s%d, s%d, s%d" % (sB, sB, sR))
                elif i == 7:
                    a("s_sub_u32 s%d, s%d, %d" % (sB, sB, 7168 * krow(7, L)))
                elif i < 15:
                    a("s_add_u32 s%d, s%d, %d" % (sB, sB, 7168 * (krow((i & 7) + 1, L) - krow(i & 7, L))))
            elif i < 24:
                k = i - 16
                m = (k >> 1) + 4 * (k & 1)
                self.load(WO + 4 * m, 12, "wo", "s%d" % sD, 0 if o["oil"] else 2048 * (k & 1), pol)
                if o["oil"]:
                    a("s_add_u32 s%d, s%d, 0x20000" % (sD, sD))
                elif k & 1 and k < 7:
                    a("s_add_u32 s%d, s%d, 0x10000" % (sD, sD))
            else:
                m = i - 24
                self.load(WD + 4 * m, 13, "wd", "s%d" % sE, 0, pol)
                if m < 6:
                    a("s_add_u32 s%d, s%d, 0x%x" % (sE, sE, 0x20000 if o["oil"] else 0x2000))

        if o["prepos"] == 2:
            self.preread()
        for i in range(W):
            issue(i)
        a("ds_read_b128 v[4:7], v234 offset:%d\ns_waitcnt lgkmcnt(0)" % GP)
        a("v_add_f32 v4, v4, v5\nv_add_f32 v6, v6, v7\nv_add_f32 v4, v4, v6")
        self.rnd(4, 4)
        self.sigmoid(VG, 4)
        a("v_sub_f32 v%d, 1.0, v%d" % (VG + 1, VG))
        self.rnd(VG + 1, VG + 1)
        if o["wef"]:
            a("s_cmp_ge_u32 s%d, 2\ns_cselect_b64 vcc, -1, 0" % sX)
        nis = W
        steps = max(31 - W, 16)
        if o["wt"] < 99:
            steps = min(steps, max(o["th"] + o["thl"], o["t2"] + o["t2l"]) + 1)
        for i in range(steps):
            if i >= o["wt"]:
                a("s_waitcnt vmcnt(%d)" % (nis - 1 - i))
                while nis < min(31, i + W + 1 + (i + 1 - o["wt"]) * o["wr"]) or i == steps - 1 and nis < 31:
                    issue(nis)
                    nis += 1
            elif i + W < 31:
                nis += 1
                a("s_waitcnt vmcnt(%d)" % (W - 1))
                if i < o["wef"]:
                    a("s_cbranch_vccnz L_we%d\ns_waitcnt vmcnt(%d)\nL_we%d:" % (i, W - 2, i))
                if i in (0, 4, 8, 12, 20):
                    self.stamp({0: 6, 4: 7, 8: 8, 12: 9, 20: 10}[i], True)
                issue(i + W)
            else:
                a("s_waitcnt vmcnt(%d)" % (30 - i))
            if i < 16 and o["h2"]:
                xo = 24 + 2 * i if i < 8 else AO + 2 * (i - 8)
                self.mf16(40, xo, GU + 4 * i, i == 0)
                self.mf16(44, xo, GU + 4 * i + 2, i == 0)
            elif i < 16:
                gu, m = (i & 1, i >> 1) if o["ilv"] else (i >> 3, i & 7)
                self.mf16(40 + 8 * gu, 24 + 2 * m, GU + 4 * i, m == 0)
                self.mf16(44 + 8 * gu, 24 + 2 * m, GU + 4 * i + 2, m == 0)
            last = steps - 1
            for flag, step, dl in ((F_T, o["to"], o["tol"]), (F_T + 2, o["th"], o["thl"])) + (((F_T + 4, o["t2"], o["t2l"]),) if o["t2"] else ()):
                if i == min(step + (0 if o["ilv"] else dl), last):
                    a("ds_write_b8 v244, v8 offset:%d" % flag)
                elif i == step:
                    a("ds_write_b8 v%d, v8 offset:%d" % (238 if o["ex"] and flag != F_T else 247, flag))
            if i == 15:
                for r in range(4):
                    a("v_permlane16_swap_b32 v%d, v%d" % (40 + r, 44 + r))
                for r in range(0 if o["h2"] else 4):
                    a("v_permlane16_swap_b32 v%d, v%d" % (48 + r, 52 + r))
                for r in range(4):
                    self.dpp("v_add_f32", 40 + r, 44 + r, 40 + r, "row_ror:8", 0x3)
                for r in range(0 if o["h2"] else 4):
                    self.dpp("v_add_f32", 40 + r, 48 + r, 52 + r, "row_ror:8", 0xc)
                a("ds_write_b128 v236, v[40:43] offset:%d" % RH)
                a("ds_write_b8 v240, v8 offset:%d" % C_H)
                self.stamp(4)
        self.stamp(5)

        def image(lbl, flag, img, Y=Y):
            a("%s:" % lbl)
            self.guard()
            a("ds_read_u8 v3, v244 offset:%d\nds_read_b128 %s, v243 offset:%d" % (flag, vr(Y), img))
            a("s_waitcnt lgkmcnt(0)\nv_cmp_ne_u32 vcc, 1, v3\ns_cbranch_vccnz %s" % lbl)

        def operands(m, Y=Y):
            for j in range(4):
                a("v_perm_b32 v%d, v%d, v%d, v%d" % (AO + 4 * m + j, Y + (m >> 1), Y + (m >> 1), SEL + 4 * (m & 1) + j))

        if o["adap"]:
            YH = 16
            def chain(d, n, Yr, Wr, wait, fill=None):
                operands(0, Yr)
                for m in range(n):
                    if m < n - 1:
                        operands(m + 1, Yr)
                    elif fill:
                        for r in range(4):
                            a("v_mul_f32 v%d, v%d, v%d" % (fill[0] + r, fill[1], fill[0] + r))
                    if wait(m) is not None:
                        a("s_waitcnt vmcnt(%d)" % wait(m))
                    self.mf32(d, AO + 4 * m, Wr + 4 * m, m == 0)
            a("L_im:")
            self.guard()
            a("ds_read_u8 v3, v244 offset:%d\nds_read_u8 v4, v244 offset:%d" % (F_IM, F_IM + 2))
            a("ds_read_b128 %s, v243 offset:%d\nds_read_b128 %s, v243 offset:%d" % (vr(Y), IM, vr(YH), IM + 512))
            a("s_waitcnt lgkmcnt(0)\nv_cmp_eq_u32 vcc, 1, v3\ns_cbranch_vccnz L_of\nv_cmp_ne_u32 vcc, 1, v4\ns_cbranch_vccnz L_im")
            self.stamp(7)
            chain(DB, 7, YH, WD, lambda m: 6 - m)
            image("L_oi", F_IM, IM)
            self.stamp(6)
            chain(DA, 8, Y, WO, lambda m: None)
            for r in range(4):
                a("v_mul_f32 v%d, v%d, v%d" % (DA + r, VG, DA + r))
            a("s_branch L_mix\nL_of:")
            self.stamp(6)
            a("v_cmp_eq_u32 vcc, 1, v4")
            chain(DA, 8, Y, WO, lambda m: None if m else 7)
            a("s_cbranch_vccnz L_hok")
            image("L_hi", F_IM + 2, IM + 512, YH)
            a("L_hok:")
            self.stamp(7)
            chain(DB, 7, YH, WD, lambda m: 6 - m, (DA, VG))
            a("s_nop 7\nL_mix:")
            for r in range(4):
                a("v_fmac_f32 v%d, v%d, v%d" % (DA + r, VG + 1, DB + r))
        else:
            image("L_oi", F_IM, IM)
            self.stamp(6)
            operands(0)
            a("s_waitcnt vmcnt(7)")
            for m in range(8):
                if m < 7:
                    operands(m + 1)
                self.mf32(DA, AO + 4 * m, WO + 4 * m, m == 0)
            image("L_hi", F_IM + 2, IM + (512 if own else 256))
            self.stamp(7)
            operands(0)
            for m in range(7):
                if m < 6:
                    operands(m + 1)
                else:
                    for r in range(4):
                        a("v_mul_f32 v%d, v%d, v%d" % (DA + r, VG, DA + r))
                a("s_waitcnt vmcnt(%d)" % (6 - m))
                self.mf32(DB, AO + 4 * m, WD + 4 * m, m == 0)
            for r in range(4):
                a("v_fmac_f32 v%d, v%d, v%d" % (DA + r, VG + 1, DB + r))
        a("ds_write_b128 v236, %s offset:%d" % (vr(DA), RF))
        self.stamp(8)
        if own:
            return self.final_local(DA, AO, fq)
        a("s_mov_b64 exec, 1\nds_add_rtn_u32 v3, v10, v8 offset:%d\ns_mov_b64 exec, -1" % C_F)
        a("ds_read_b128 %s, v255 offset:%d\nds_read_b128 %s, v255 offset:%d" % (vr(DA), RF, vr(DB), RF + 2048))
        a("s_waitcnt lgkmcnt(0)\nv_readfirstlane_b32 s%d, v3" % sA)
        for r in range(4):
            a("v_add_f32 v%d, v%d, v%d" % (DA + r, DA + r, DB + r))
        a("s_cmp_lg_u32 s%d, 1\ns_cbranch_scc1 L_end" % sA)
        self.tag4(DA, [DA + r for r in range(4)])
        if o["fcut"]:
            a("s_mov_b64 exec, 0x%x" % ((1 << (32 >> (o["fcut"] - 1))) - 1) if o["fcut"] > 1 else "s_mov_b32 exec_hi, 0")
        a("buffer_store_dwordx4 %s, v241, %s, s%d offen %s" % (vr(DA), srd("ws"), sP, o["fst"]))
        if o["fcut"]:
            a("s_mov_b64 exec, -1\ns_cmp_ge_u32 s%d, %d\ns_cselect_b32 s%d, 1, s%d" % (sS, 32 >> o["fcut"], sOK, sOK))
        self.stamp(9)
        self.writeback("F")
        a("s_cmp_lg_u32 s%d, 0\ns_cbranch_scc1 L_end" % sOK)
        if o["lag"] & 1:
            a("s_waitcnt vmcnt(0)")
        if o["lagx"]:
            a("s_cmp_ge_u32 s%d, %d\ns_cbranch_scc1 L_fin" % (sX, o["lagx"]))
            self.load(40, 241, "ws", "s%d" % sP, 0, "sc1")
            a("s_waitcnt vmcnt(0)")
        a("L_fin:")
        self.guard()
        for m in range(4):
            self.load(40 + 4 * m, 242, "ws", "s%d" % (sP + 1), 1024 * m, o["fld"])
        a("s_waitcnt vmcnt(0)")
        self.untag(40, 4, 3)
        self.again("L_fin")
        self.stamp(10)
        self.writeback("R")
        self.sum4(40)
        self.rows_scatter_sum([40])
        for n in (8, 4):
            self.dpp("v_add_f32", 40, 40, 40, "row_ror:%d" % n)
        self.rnd(40, 40)
        a("s_mov_b32 exec_lo, 0x000f000f\ns_mov_b32 exec_hi, 0x000f000f")
        a("buffer_store_short_d16_hi v40, v245, %s, s%d offen %s" % (srd("out"), sKS, o["outpol"]))
        self.last(0)

    def final_local(self, DA, R, fq):
        a, o = self.a, self.o
        n = 1 << (fq - 1)
        a("s_mov_b64 exec, 1\nds_add_rtn_u32 v3, v9, v8 offset:%d\nds_read_b32 v4, v9 offset:%d\ns_mov_b64 exec, -1" % (C_F, F_L))
        for k in range(4):
            a("ds_read_b128 %s, v255 offset:%d" % (vr(R + 4 * k), RF + 1024 * k))
        a("s_waitcnt lgkmcnt(4)\nv_readfirstlane_b32 s%d, v3\nv_readfirstlane_b32 s%d, v4" % (sA, sL))
        a("s_cmp_lg_u32 s%d, 3\ns_waitcnt lgkmcnt(0)\ns_cbranch_scc1 L_end" % sA)
        self.sumq(R, 4)
        self.tag4(R, [R + r for r in range(4)])
        self.publish("L_pf", R, 241, sP)
        self.stamp(9)
        if n > 1:
            a("s_cmp_lg_u32 s%d, 0\ns_cbranch_scc1 L_end" % sOK)
        if o["lag"] & 1:
            a("s_waitcnt vmcnt(0)")
        a("L_fin:")
        self.guard()
        for m in range(n):
            self.load(40 + 4 * m, 242, "ws", "s%d" % (sP + 1), 1024 * m, o["fld"])
        a("s_waitcnt vmcnt(0)")
        self.untag(40, n, 3)
        self.again("L_fin")
        self.stamp(10)
        self.sumq(40, n)
        self.rows_scatter_sum([40])
        for k in range(3, fq - 1, -1):
            self.dpp("v_add_f32", 40, 40, 40, "row_ror:%d" % (1 << k))
        self.rnd(40, 40)
        m = ((1 << (1 << fq)) - 1) * 0x10001
        a("s_mov_b32 exec_lo, 0x%x\ns_mov_b32 exec_hi, 0x%x" % (m, m))
        a("buffer_store_short_d16_hi v40, v245, %s, s%d offen %s" % (srd("out"), sKS, o["outpol"]))
        self.last(8 * (o["fsel"] & (n - 1)))

    def sumq(self, b, n):
        st = 4
        while st < 4 * n:
            for q in range(b, b + 4 * n, 2 * st):
                for r in (0, 2):
                    self.a("v_pk_add_f32 v[%d:%d], v[%d:%d], v[%d:%d]" % (q + r, q + r + 1, q + r, q + r + 1, q + st + r, q + st + r + 1))
            st *= 2

    def last(self, wg):
        a, o = self.a, self.o
        a("s_cmp_lg_u32 s2, %d\ns_cbranch_scc1 %s" % (wg, "L_amp" if o["ampend"] else "L_end"))
        a("s_mov_b64 exec, 1\nv_mov_b32 v3, s%d\nbuffer_store_dword v3, v9, %s, 0 offen %s" % (sT, srd("ws"), o["tpol"]))
        if o["ampend"]:
            a("L_amp:\ns_waitcnt vmcnt(0)\ns_memrealtime s[%d:%d]\ns_waitcnt lgkmcnt(0)" % (sD, sD + 1))
            a("s_sub_u32 s%d, s%d, s%d\ns_lshl_b32 s%d, s%d, 2\ns_and_b32 s%d, s%d, 0x3fff" % (sA, sD, sST, sA, sA, sA, sA))
            a("L_amp2:\ns_memrealtime s[%d:%d]\ns_waitcnt lgkmcnt(0)\ns_sub_u32 s%d, s%d, s%d\ns_cmp_lt_u32 s%d, s%d\ns_cbranch_scc1 L_amp2" % (
                sD, sD + 1, sD, sD, sST, sD, sA))

    def epilogue(self):
        a = self.a
        a("L_end:")
        if self.o["stamps"]:
            a("s_mov_b64 exec, 1\ns_waitcnt vmcnt(0)")
            self.stamp(NST - 1)
            a("s_waitcnt lgkmcnt(0)")
            a("s_lshl_b32 s%d, s3, 8\ns_add_u32 s%d, s%d, s2\ns_mul_i32 s%d, s%d, %d\ns_add_u32 s%d, s%d, 0x%x" % (
                sA, sA, sA, sA, sA, NST * 8, sA, sA, STAMP_OFF))
            a("v_mov_b32 v1, s%d" % sA)
            for i in range(NST):
                a("v_mov_b32 v4, s%d\nv_mov_b32 v5, s%d" % (sST + 2 * i, sST + 2 * i + 1))
                a("buffer_store_dwordx2 v[4:5], v1, %s, 0 offen offset:%d\ns_nop 1" % (srd("ws"), 8 * i))
        if self.o["hold"]:
            a("s_cmp_lg_u32 s3, %d\ns_cbranch_scc1 L_exit" % self.o["ampwave"])
            if self.o["ampwg"] is not None:
                a("s_cmp_lg_u32 s2, %d\ns_cbranch_scc1 L_exit" % self.o["ampwg"])
            a("s_waitcnt lgkmcnt(0)\ns_mov_b32 s%d, %d" % (sA, self.o["hold"]))
            if self.o["amp"]:
                a("s_sub_u32 s%d, s%d, s%d\ns_lshl_b32 s%d, s%d, 2\ns_and_b32 s%d, s%d, 0x3fff\ns_add_u32 s%d, s%d, s%d" % (
                    sB, sST + 2 * self.o["amp"], sST, sB, sB, sB, sB, sA, sA, sB))
            a("L_hold:\ns_memrealtime s[%d:%d]\ns_waitcnt lgkmcnt(0)\ns_sub_u32 s%d, s%d, s%d\ns_cmp_lt_u32 s%d, s%d\ns_cbranch_scc1 L_hold" % (
                sD, sD + 1, sD, sD, sST, sD, sA))
        a("L_exit:\ns_endpgm")

    def build(self):
        if self.o["stamps"]:
            for i in range(1, NST):
                self.a("s_mov_b64 s[%d:%d], 0" % (sST + 2 * i, sST + 2 * i + 1))
        self.prologue()
        self.a_waves()
        self.f_waves()
        self.epilogue()
        lab = NAME + "_kernel"
        lines = [l[:-3] + self.o["spol"] if "buffer_store_dwordx4" in l and l.endswith("sc1") and "v241" not in l else l for l in self.a.lines]
        body = "\n".join(hazard.pad(lines)) + "\n"
        return (header(["; @launch grid=(256,1,1) block=(512,1,1) lds=%d" % LDS_BYTES]) + kernel_open(lab) + body
                + RODATA + descriptor(lab, 256))


def main():
    out = sys.argv[1]
    kw = {}
    for s in sys.argv[2:]:
        k, v = s.split("=")
        try:
            v = v if k == "stag" else int(v, 0)
        except ValueError:
            pass
        kw[k] = v.replace("+", " ") if isinstance(v, str) else v
    open(out, "w").write(Gen(**kw).build())


if __name__ == "__main__":
    main()
```

```python
import sys
from asmlib import *
import hazard

DEFAULTS = dict(wa=5, wf=5, pol="nt", stamps=False, spin=100000, outpol="", wa0=8, qpos=7, to=8, th=20, loc=1, umap=1, dpol="sc1 nt", qloc=0, o2loc=1, pf=2, tearly=1, ilv=0, colmap=0, mask=1, fine=0, sync=None, stag="102", stx=0, tol=3, thl=1, cut="", lag=1, gpol="sc1", twice=0, prio=0, wd=1, wea=0, wef=0, qst="sc1", fst="sc1", fld="sc1", xpol="", wb="", wbs=3, pre="", ppol="nt", lagx=0, fpre="", fppol="sc1", prepos=0, lpol="sc1 nt", fcut=0, floc=0, cown=0, slim=0, pk=0, sp="", spo=0, ld=0, lt=0, lw=5, lw2=5, lo=7, lh=19, l2=19, ntst="", hskip=0, qlp="sc1", ex=0, exl=1, tlb="", tlbpos=0, tpol="sc1", gpos=1, h2=0, xpre="", xppol="sc1", wt=99, wr=1, gpol0="sc1", hcut=0, t2=0, t2l=1, adap=0, fq=2, fsel=0, hpol2="sc1", npol="", osrc="", kil=0, wil=0, gil=0, oil=0, qch=0, och=0, hch=0, fch=0, sb=2, sh=18, opol="sc1 nt", hpol="sc1 nt", rpol="sc1", spol="sc1", diag=0, hold=0, perm=0, ampend=0, amp=None, ampwave=0, ampwg=None)

V9 = dict(cown=1, lag=0, colmap=1, adap=1, fld="sc1", fpre="b", fppol="sc1", h2=1, th=22, t2=22, thl=2, t2l=2, ex=2, exl=0, to=8, tol=0, gpos=0, qloc=2, hskip=1, pk=1, sp="oq", tpol="")

DX, QX, O2, HX, FX, OX = 0x8000, 0x10000, 0x30000, 0x40000, 0x80000, 0x100000
STAMP_OFF = 128 << 20
F_Q, F_O, C_H, F_IM, C_F, F_L, F_T = 0, 4, 8, 12, 16, 20, 24
GP, MLL, IM = 64, 256, 512
RQ, RH, RF, QI, OL = 2048, 6144, 10240, 14336, 16640
XS = OL + 4 * 4224
LDS_BYTES = XS + 8192
SRD = dict(x=4, wq=8, k=12, v=16, wg=20, wu=24, wo=28, wd=32, gw=36, ws=40, out=44)
sX, sS, sW, sT, sT0, sCNT = 48, 49, 50, 51, 52, 56
sA, sB, sC, sD, sE, sF, sG, sH, sRB, sKS = 57, 58, 59, 60, 61, 62, 63, 64, 65, 66
sOK, sP, sR, sL, sU = 67, 68, 94, 95, 96
sST = 70
NST = 12
OOB = 0x7f000000
LOG2E = 0x3fb8aa3b
SCALE = 0x3db504f3
KVBASE = (32768 - 4096) * 256


def srd(n):
    return "s[%d:%d]" % (SRD[n], SRD[n] + 3)


def vr(b, n=4):
    return "v[%d:%d]" % (b, b + n - 1)


def krow(i, L):
    return ((i >> (3 - L)) << (10 - L)) + ((i & ((8 >> L) - 1)) << 1)


class VM:
    def __init__(self, a):
        self.a, self.q = a, []

    def note(self, name):
        self.q.append(name)

    def wait(self, name):
        self.a("s_waitcnt vmcnt(%d)" % (len(self.q) - 1 - self.q.index(name)))


class Gen:
    def __init__(self, **kw):
        self.o = dict(DEFAULTS)
        if not kw.get("v8"):
            self.o.update(V9)
        self.o.update(kw)
        self.a = Asm()
        self.so, self.sq, self.sh, self.s2 = (int(c in self.o["sp"]) for c in "oqh2")
        d = self.o["spo"]
        self.OX, self.O2 = OX + d * self.so, O2 + d * self.s2
        self.QX, self.HX = 0x500000 + d if self.sq else QX, 0x400000 + d if self.sh else HX

    def spread(self, d, idx, n, t):
        if n:
            self.a("s_and_b32 s%d, s%d, %d\ns_lshl_b32 s%d, s%d, %d\ns_add_u32 s%d, s%d, s%d\ns_add_u32 s%d, s%d, 0x%x" % (
                t, idx, n - 1, t, t, self.o["sh"], d, d, t, d, d, self.o["sb"] << 20))

    def stamp(self, i, fine=False):
        if self.o["fine"] and i in (1, 6, 7, 8, 9, 10) and not fine or fine and not self.o["fine"]:
            return
        if self.o["stamps"] or (self.o["hold"] and i in (0, self.o["amp"])) or (self.o["ampend"] and i == 0):
            self.a("s_memrealtime s[%d:%d]" % (sST + 2 * i, sST + 2 * i + 1))

    def count(self, unit):
        if self.o["diag"]:
            self.a("s_add_u32 s%d, s%d, %d" % (sST + 2, sST + 2, 100 * unit))

    def ack(self, i):
        if self.o["diag"]:
            self.a("s_waitcnt vmcnt(0)")
            self.stamp(i)

    def ptr(self, n):
        self.a("s_load_dwordx2 s[%d:%d], s[0:1], %d" % (SRD[n], SRD[n] + 1, KARG[n]))

    def desc(self, n):
        self.a("s_mov_b32 s%d, 0x%x\ns_mov_b32 s%d, 0x20000" % (SRD[n] + 2, SIZE[n], SRD[n] + 3))

    def guard(self):
        self.a("s_sub_u32 s%d, s%d, 1\ns_cbranch_scc1 L_end" % (sCNT, sCNT))

    def load(self, dst, voff, buf, soff, imm=0, pol=""):
        self.a("buffer_load_dwordx4 %s, v%d, %s, %s offen%s%s" % (
            vr(dst), voff, srd(buf), soff, " offset:%d" % imm if imm else "", " " + pol if pol else ""))

    def flag_wait(self, lbl, vaddr, flag):
        self.a("%s:" % lbl)
        self.guard()
        self.a("ds_read_u8 v3, v%d offset:%d\ns_waitcnt lgkmcnt(0)\nv_cmp_ne_u32 vcc, 1, v3\ns_cbranch_vccnz %s" % (vaddr, flag, lbl))

    def tags(self):
        a = self.a
        a("s_add_u32 s%d, s%d, 0x01010101" % (sT, sT))
        a("s_and_b32 s%d, s%d, 0xff" % (sT0, sT))
        a("s_bfe_u32 s%d, s%d, 0x80008" % (sT0 + 1, sT))
        a("s_bfe_u32 s%d, s%d, 0x80010" % (sT0 + 2, sT))
        a("s_lshr_b32 s%d, s%d, 24" % (sT0 + 3, sT))

    def tag4(self, dst, src):
        for j in range(4):
            self.a("v_bfi_b32 v%d, v2, s%d, v%d" % (dst + j, sT0 + j, src[j]))

    def untag(self, base, n, acc, cmp=True, also=None, vt=None):
        a = self.a
        regs = list(range(base, base + 4 * n))
        for r in regs:
            a("v_xor_b32 v%d, %s, v%d" % (r, "v%d" % (vt + (r - base) % 4) if vt and (r - base) & 4 else "s%d" % (sT0 + (r - base) % 4), r))
        if self.o["pk"] and cmp and also is None:
            a("v_or3_b32 v%d, v%d, v%d, v%d" % (acc, regs[0], regs[1], regs[2]))
            for i in range(3, len(regs) - 1, 2):
                a("v_or3_b32 v%d, v%d, v%d, v%d" % (acc, acc, regs[i], regs[i + 1]))
            a("v_bitop3_b32 v%d, v%d, v%d, v2 bitop3:0xa8\nv_cmp_ne_u32 vcc, 0, v%d" % (acc, acc, regs[-1], acc))
            return
        a("v_or_b32 v%d, v%d, v%d" % (acc, regs[0], regs[1]))
        for i in range(2, len(regs), 2):
            a("v_or3_b32 v%d, v%d, v%d, v%d" % (acc, acc, regs[i], regs[i + 1]))
        if also is not None:
            a("v_or_b32 v%d, v%d, v%d" % (acc, acc, also))
        if cmp:
            a("v_and_b32 v%d, v2, v%d" % (acc, acc))
            a("v_cmp_ne_u32 vcc, 0, v%d" % acc)

    def narrow(self):
        if self.o["mask"]:
            self.a("s_wqm_b64 exec, vcc")

    def widen(self):
        if self.o["mask"]:
            self.a("s_mov_b64 exec, -1")

    def again(self, lbl):
        self.narrow()
        self.a("s_cbranch_vccnz %s" % lbl)
        self.widen()

    def dpp(self, op, d, s0, s1, ctl, bank=0xf):
        self.a("%s_dpp v%d, v%d, %s%s row_mask:0xf bank_mask:0x%x" % (
            op, d, s0, "v%d " % s1 if s1 is not None else "", ctl, bank) if s1 is not None else
            "%s_dpp v%d, v%d %s row_mask:0xf bank_mask:0x%x" % (op, d, s0, ctl, bank))

    def rows_allreduce(self, op, x, t, which=(16, 32)):
        for n in which:
            self.a("v_mov_b32 v%d, v%d\nv_permlane%d_swap_b32 v%d, v%d\n%s v%d, v%d, v%d" % (t, x, n, x, t, op, x, x, t))

    def rows_scatter_sum(self, sets):
        a = self.a
        for b in sets:
            a("v_permlane32_swap_b32 v%d, v%d\nv_permlane32_swap_b32 v%d, v%d" % (b, b + 2, b + 1, b + 3))
        for b in sets:
            a("v_add_f32 v%d, v%d, v%d\nv_add_f32 v%d, v%d, v%d" % (b, b, b + 2, b + 1, b + 1, b + 3))
        for b in sets:
            a("v_permlane16_swap_b32 v%d, v%d" % (b, b + 1))
        for b in sets:
            a("v_add_f32 v%d, v%d, v%d" % (b, b, b + 1))

    def rnd(self, d, s):
        self.a("v_cvt_pk_bf16_f32 v%d, 0, v%d" % (d, s))

    def sigmoid(self, d, z):
        a = self.a
        a("v_mul_f32 v%d, 0x%x, v%d" % (d, LOG2E ^ 0x80000000, z))
        a("v_exp_f32 v%d, v%d\nv_add_f32 v%d, 1.0, v%d\nv_rcp_f32 v%d, v%d" % (d, d, d, d, d, d))
        self.rnd(d, d)

    def sel_x(self):
        a = self.a
        a("v_bfe_u32 v3, v1, 2, 1\nv_mul_u32_u24 v3, 0x202, v3\nv_add_u32 v3, 0x0c0c0100, v3")
        a("v_lshlrev_b32 v4, 4, v1\nv_alignbit_b32 v3, v3, v3, v4")
        a("v_and_b32 v4, 2, v1\nv_cmp_eq_u32 vcc, 0, v4\nv_mov_b32 v4, 0x0c0c0c0c")
        a("v_cndmask_b32 v14, v4, v3, vcc\nv_cndmask_b32 v15, v3, v4, vcc")

    def x_operands(self, d=24, s=16):
        for m in range(8):
            self.a("v_perm_b32 v%d, v%d, v%d, v14\nv_perm_b32 v%d, v%d, v%d, v15" % (
                d + 2 * m, s + m, s + m, d + 1 + 2 * m, s + m, s + m))

    def mf16(self, d, av, bv, first):
        self.a("v_mfma_f32_16x16x16_bf16 %s, %s, %s, %s" % (vr(d), vr(av, 2), vr(bv, 2), "0" if first else vr(d)))

    def mf32(self, d, av, bv, first):
        self.a("v_mfma_f32_16x16x32_bf16 %s, %s, %s, %s" % (vr(d), vr(av), vr(bv), "0" if first else vr(d)))

    def sum4(self, b):
        if self.o["pk"]:
            return self.sumq(b, 4)
        for r in range(4):
            self.a("v_add_f32 v%d, v%d, v%d\nv_add_f32 v%d, v%d, v%d" % (b + r, b + r, b + 4 + r, b + 8 + r, b + 8 + r, b + 12 + r))
        for r in range(4):
            self.a("v_add_f32 v%d, v%d, v%d" % (b + r, b + r, b + 8 + r))

    def prologue(self):
        a = self.a
        self.stamp(0)
        if self.o["sync"] is not None:
            a("s_waitcnt lgkmcnt(0)\ns_add_u32 s4, s%d, 300\ns_or_b32 s4, s4, 0x7ff\ns_and_b32 s5, s2, 6\ns_cselect_b32 s5, %d, 0\ns_add_u32 s4, s4, s5" % (sST, self.o["sync"]))
            a("L_sync:\ns_memrealtime s[%d:%d]\ns_waitcnt lgkmcnt(0)\ns_sub_u32 s5, s%d, s4\ns_cmp_lt_i32 s5, 0\ns_cbranch_scc1 L_sync" % (sST, sST + 1, sST))
        a("s_cmp_ge_u32 s2, 256\ns_cbranch_scc1 L_exit")
        if self.o["perm"] == 1:
            a("s_lshr_b32 s4, s2, 5\ns_lshl_b32 s2, s2, 3\ns_or_b32 s2, s2, s4\ns_and_b32 s2, s2, 255")
        if self.o["perm"] == 2:
            a("s_cmp_eq_u32 s2, 42\ns_cselect_b32 s4, 7, 0\ns_cmp_eq_u32 s2, 45\ns_cselect_b32 s4, 7, s4\ns_xor_b32 s2, s2, s4")
        for n in ("x", "wq", "ws"):
            self.ptr(n)
        a("s_lshr_b32 s%d, s2, 3" % sS)
        if self.o["pf"] == 2:
            a("s_getpc_b64 s[%d:%d]\nL_pc:" % (sP, sP + 1))
            a("s_lshl_b32 s%d, s%d, 9\ns_min_u32 s%d, s%d, L_exit-L_pc-512" % (sA, sS, sA, sA))
            a("s_add_u32 s%d, s%d, s%d\ns_addc_u32 s%d, s%d, 0" % (sP, sP, sA, sP + 1, sP + 1))
            a("v_add_co_u32 v250, vcc, s%d, v0\nv_mov_b32 v251, s%d\nv_lshrrev_b32 v3, 6, v0\nv_addc_co_u32 v251, vcc, 0, v251, vcc" % (sP, sP + 1))
            a("global_load_ubyte v252, v[250:251], off " + self.o["xpol"])
        else:
            a("v_lshrrev_b32 v3, 6, v0")
        a("v_and_b32 v1, 63, v0\ns_and_b32 s%d, s2, 7" % sX)
        a("v_readfirstlane_b32 s3, v3")
        a("s_lshr_b32 s%d, s%d, 3" % (sKS, sS))
        if self.o["slim"]:
            a("s_movk_i32 s6, 0x1000\ns_mov_b32 s7, 0x20000")
        else:
            self.desc("x")
        a("v_bfe_u32 v5, v1, 3, 1\nv_and_b32 v6, 0x30, v1\nv_and_b32 v7, 7, v1")
        a("s_and_b32 s%d, s3, 3" % sW)
        a("v_lshlrev_b32 v10, 11, v5\nv_lshl_add_u32 v10, v6, 1, v10")
        a("v_or_b32 v6, v6, v5\nv_lshlrev_b32 v7, 4, v7")
        if self.o["slim"]:
            a("s_lshl2_add_u32 s%d, s%d, s%d" % (sB, sKS, sW))
        else:
            a("s_lshl_b32 s%d, s%d, 2\ns_add_u32 s%d, s%d, s%d" % (sB, sKS, sB, sB, sW))
        a("s_lshl_b32 s%d, s%d, 7" % (sA, sB))
        if not self.o["slim"]:
            a("s_getreg_b32 s%d, hwreg(HW_REG_XCC_ID, 0, 4)" % sL)
        a("s_cmp_ge_u32 s3, 4\ns_cbranch_scc1 L_F")

    def die_read(self, v):
        self.a("s_lshl_b32 s%d, s%d, 7\ns_add_u32 s%d, s%d, 0x%x\nv_and_b32 v%d, 31, v1\nv_lshlrev_b32 v%d, 2, v%d" % (sA, sX, sA, sA, DX, v, v, v))
        self.a("buffer_load_dword v%d, v%d, %s, s%d offen %s" % (v, v, srd("ws"), sA, self.o["dpol"]))

    def die_test(self, v):
        self.a("s_xor_b32 s%d, s%d, s%d\nv_cmp_ne_u32 vcc, s%d, v%d\ns_mov_b32 s%d, vcc_lo" % (sL, sL, sT, sL, v, sL))
        if not self.o["loc"]:
            self.a("s_mov_b32 s%d, 1" % sL)

    def q_block(self, d, t):
        self.a("s_and_b32 s%d, s%d, 7\ns_lshl3_add_u32 s%d, s%d, s%d\ns_xor_b32 s%d, s%d, 2" % (t, sS, d, sX, t, d, d))

    def q_offsets(self, d, t, u, vst, vld):
        a = self.a
        self.q_block(t, u)
        a("s_lshr_b32 s%d, s%d, 2\ns_lshl_b32 s%d, s%d, 12\ns_and_b32 s%d, s%d, 3\ns_lshl_b32 s%d, s%d, 8" % (d, t, d, d, t, t, t, t))
        a("s_add_u32 s%d, s%d, s%d\ns_lshl_b32 s%d, s%d, 10\ns_add_u32 s%d, s%d, s%d\n%s s%d, s%d, 0x%x" % (d, d, t, t, sKS, d, d, t, "s_lshl1_add_u32" if self.sq else "s_add_u32", d, d, self.QX))
        a("v_lshrrev_b32 v3, 4, v1\nv_and_b32 v5, 15, v1\nv_lshlrev_b32 v6, 4, v5\nv_lshl_add_u32 v%d, v3, 16, v6" % vst)
        self.wide(vst, self.sq)
        a("v_and_b32 v6, 1, v1\nv_lshl_add_u32 v%d, v3, 1, v6\nv_lshlrev_b32 v%d, 8, v%d" % (vld, vld, vld))
        a("v_lshrrev_b32 v5, 1, v5\nv_lshl_add_u32 v%d, v5, 4, v%d" % (vld, vld))

    def wide(self, v, on):
        if on:
            self.a("v_and_b32 v6, 0xffffff80, v%d\nv_add_u32 v%d, v6, v%d" % (v, v, v))

    def gu_tile(self):
        a = self.a
        a("s_and_b32 s%d, s%d, 7\ns_add_u32 s%d, s%d, 3\ns_and_b32 s%d, s%d, 7\ns_min_u32 s%d, s%d, 6" % (sC, sS, sE, sX, sE, sE, sE, sE))
        a("s_add_u32 s%d, s%d, 2\ns_lshr_b32 s%d, s%d, 2\ns_sub_u32 s%d, s%d, s%d" % (sG, sC, sG, sG, sG, sC, sG))
        a("s_cmp_ge_u32 s%d, s%d\ns_addc_u32 s%d, s%d, 0" % (sG, sE, sG, sG))
        a("s_and_b32 s%d, s%d, 3\ns_cmp_eq_u32 s%d, 1\ns_cselect_b32 s%d, s%d, s%d\ns_cselect_b32 s%d, 8, 0" % (sD, sS, sD, sG, sE, sG, sE))
        a("s_mul_i32 s%d, s%d, 7\ns_add_u32 s%d, s%d, s%d" % (sD, sX, sG, sG, sD))
        if self.o["h2"]:
            a("s_and_b32 s%d, s%d, 1\ns_lshr_b32 s%d, s%d, 1\ns_lshr_b32 s%d, s%d, 2" % (sH, sKS, sOK, sKS, sC, sC))
            a("s_cmp_eq_u32 s%d, 8\ns_cselect_b32 s%d, s%d, s%d\ns_cselect_b32 s%d, s%d, s%d" % (sE, sH, sC, sH, sOK, sKS, sOK))
            return
        a("s_cmp_eq_u32 s%d, 5\ns_cselect_b32 s%d, 0x%x, 0" % (sC, sH, OOB))
        a("s_cmp_eq_u32 s%d, 1\ns_cselect_b32 s%d, 0x%x, 0" % (sC, sOK, OOB))

    def publish(self, lbl, data, voff, soff, far=sL):
        st = "buffer_store_dwordx4 %s, v%d, %s, s%d offen" % (vr(data), voff, srd("ws"), soff)
        if far is None:
            return self.a(st + (" sc1 nt" if lbl[-1] in self.o["ntst"] else " sc1"))
        self.a("s_cmp_eq_u32 s%d, 0\ns_cbranch_scc1 %s_near\n%s sc1\ns_branch %s_out\n%s_near:\n%s\n%s_out:" % (far, lbl, st, lbl, lbl, st + " " + self.o["npol"], lbl))

    def a_waves(self):
        a, o = self.a, self.o
        W, pol = o["wa"], o["pol"]
        WQ, KD, VD, VT, PV, QG, QB, SD = 48, 80, 112, 144, 176, 208, 224, 232
        kil = min(o["kil"], 1)
        HI = 0x80000 if kil else 0x1000
        if o["slim"]:
            a("s_mov_b32 s10, 0x%x\ns_mov_b32 s11, s7" % SIZE["wq"])
        else:
            self.ptr("k"); self.ptr("v")
            self.desc("wq")
        L = o["wil"]
        if L:
            a("v_lshrrev_b32 v3, %d, v6\nv_or_b32 v6, v3, v5" % L)
        a("v_lshl_add_u32 v11, v6, 13, v7")
        self.q_block(sC, sD)
        a("s_lshl_b32 s%d, s%d, 7\ns_lshl_b32 s%d, s%d, %d\ns_add_u32 s%d, s%d, s%d" % (sC, sC, sB, sB, 19 - L, sB, sB, sC))
        a("s_waitcnt lgkmcnt(0)")
        vm = VM(a)
        if o["tearly"] and not o["slim"]:
            a("s_load_dword s%d, s[%d:%d], 0" % (sT, SRD["ws"], SRD["ws"] + 1))
        self.load(16, 10, "x", "s%d" % sA, 0, o["xpol"])
        self.load(20, 10, "x", "s%d" % sA, 16, o["xpol"])
        vm.note("x0"); vm.note("x1")

        def q_loads(v, p=o["gpol0"], lbl="L_q0"):
            if o["qloc"] and o["qlp"] != p:
                a("s_lshr_b32 s%d, s%d, 1\ns_xor_b32 s%d, s%d, s%d\ns_bitcmp1_b32 s%d, 0\ns_cbranch_scc1 %s_far" % (sA, sW, sA, sA, sX, sA, lbl))
                for ks in range(4):
                    if self.sq:
                        self.load(QG + 4 * ks, 14, "ws", "s%d" % (97 if ks & 2 else sF), (ks & 1) * 2048, o["qlp"])
                    else:
                        self.load(QG + 4 * ks, v, "ws", "s%d" % sF, ks * 1024, o["qlp"])
                a("s_branch %s_out\n%s_far:" % (lbl, lbl))
            for ks in range(4):
                if self.sq:
                    self.load(QG + 4 * ks, 14, "ws", "s%d" % (97 if ks & 2 else sF), (ks & 1) * 2048, p)
                else:
                    self.load(QG + 4 * ks, v, "ws", "s%d" % sF, ks * 1024, p)
            a("%s_out:" % lbl)

        def issue(i):
            if i < 8:
                self.load(WQ + 4 * i, 11, "wq", "s%d" % sB, 0, pol)
                if i < 7 and o["slim"]:
                    a("s_addk_i32 s%d, 0x4000" % sB)
                elif i < 7:
                    a("s_add_u32 s%d, s%d, 0x%x" % (sB, sB, 8192 * (krow(i + 1, L) - krow(i, L))))
            elif i < 16:
                oc, hh = (i - 8) >> 1, (i - 8) & 1
                a("s_xor_b32 s%d, s%d, 0x%x" % (sC, sD, (oc >> 1) * HI + (oc & 1) * 512 + hh * 128))
                self.load(KD + 4 * (i - 8), 12, "k", "s%d" % sC, 0, pol)
            else:
                a("s_xor_b32 s%d, s%d, 0x%x" % (sC, sE, (i & 3) * 1024 + ((i - 16) >> 2) * HI))
                self.load(VD + 4 * (i - 16), 10, "v", "s%d" % sC, 0, pol)
            vm.note(i)
            if i == 16 + o["qpos"]:
                self.die_read(25)
            if i == 16 + o["qpos"] and "q" not in o["cut"]:
                q_loads(13)
                for ks in range(4):
                    vm.note("q%d" % ks)

        W0 = o["wa0"]
        assert W0 <= 8
        for i in range(W0):
            issue(i)
        if o["diag"]:
            a("s_mov_b64 s[%d:%d], s[%d:%d]" % (sST + 2, sST + 3, sST, sST + 1))
        else:
            self.stamp(1)
        if o["slim"]:
            self.ptr("k"); self.ptr("v")
            a("s_getreg_b32 s%d, hwreg(HW_REG_XCC_ID, 0, 4)" % sL)
        if not o["tearly"] or o["slim"]:
            a("s_load_dword s%d, s[%d:%d], 0" % (sT, SRD["ws"], SRD["ws"] + 1))
        self.desc("k"); self.desc("v"); self.desc("ws")
        a("s_and_b32 s%d, s%d, 1\ns_lshr_b32 s%d, s%d, 1\ns_lshl2_add_u32 s%d, s%d, s%d" % (sU, sX, sD, sX, sU, sU, sD))
        if not o["umap"]:
            a("s_mov_b32 s%d, s%d" % (sU, sX))
        a("s_lshl_b32 s%d, s%d, 23\ns_lshl_b32 s%d, s%d, %d\ns_add_u32 s%d, s%d, s%d" % (sD, sU, sE, sS, 15 - kil, sD, sD, sE))
        a("s_lshl_b32 s%d, s%d, %d\ns_add_u32 s%d, s%d, s%d\ns_add_u32 s%d, s%d, 0x%x" % (sE, sW, 13 - kil, sD, sD, sE, sD, sD, KVBASE))
        a("s_lshl2_add_u32 s%d, s%d, s%d" % (sA, sS, sW))
        if o["stx"]:
            a("s_add_u32 s%d, s%d, s%d" % (sA, sA, sX))
        a("s_mov_b32 s%d, 0" % sR)
        stag = o["stag"]
        if stag == "r":
            a("s_lshl_b32 s%d, s%d, 7\ns_add_u32 s%d, s%d, s%d\ns_add_u32 s%d, s%d, 2173\ns_mul_i32 s%d, s%d, s%d" % (sE, sX, sA, sA, sE, sA, sA, sA, sA, sA))
            a("s_mul_i32 s%d, s%d, 1099492015\ns_lshr_b32 s%d, s%d, 29" % (sA, sA, sA, sA))
            stag = "012"
        if stag[0] == "x":
            a("s_lshr_b32 s%d, s%d, %s\ns_xor_b32 s%d, s%d, s%d" % (sE, sA, stag[1], sA, sA, sE))
            stag = stag[2:]
        if stag[0] == "g":
            def gf(x, y):
                p = 0
                for k in range(3):
                    p ^= (x << k) * (y >> k & 1)
                for k in (4, 3):
                    p ^= (0xb << (k - 3)) * (p >> k & 1)
                return p
            if stag == "gx":
                a("s_lshl3_add_u32 s%d, s%d, s%d" % (sA, sX, sA))
            for c, bits in zip((1, 0, 2), (HI, 0x880, 0x600)):
                m = sum((gf(i & 7, max(i >> 3, 1)) >> c & 1) << i for i in range(64))
                a("s_mov_b32 s%d, 0x%x\ns_mov_b32 s%d, 0x%x\ns_bitcmp1_b64 s[%d:%d], s%d" % (sP, m & 0xffffffff, sP + 1, m >> 32, sP, sP + 1, sA))
                a("s_cselect_b32 s%d, 0x%x, 0\ns_or_b32 s%d, s%d, s%d" % (sE, bits, sR, sR, sE))
            stag = "---"
        for c, bits in zip(stag, (HI, 0x880, 0x600)):
            if c != "-":
                a("s_bitcmp1_b32 s%d, %s\ns_cselect_b32 s%d, 0x%x, 0\ns_or_b32 s%d, s%d, s%d" % (sA, c, sE, bits, sR, sR, sE))
        a("s_and_b32 s%d, s%d, 0x%x\ns_or_b32 s%d, s%d, s%d" % (sE, sR, HI + 0xc00, sE, sE, sD))
        a("s_and_b32 s%d, s%d, 0x%x\ns_or_b32 s%d, s%d, s%d" % (sA, sR, HI + 0x280, sD, sD, sA))
        a("v_and_b32 v3, 3, v1\nv_bfe_u32 v4, v1, 2, 1\nv_lshl_add_u32 v3, v3, 2, v4")
        a("v_lshrrev_b32 v4, 3, v1\nv_lshlrev_b32 v4, 4, v4\nv_lshl_add_u32 v12, v3, 8, v4")
        a("s_and_b32 s%d, s%d, 0xc00\nv_xor_b32 v12, s%d, v12" % (sA, sR, sA))
        a("v_lshlrev_b32 v13, 4, v1\ns_and_b32 s%d, s%d, 0x200\nv_xor_b32 v10, s%d, v13" % (sA, sR, sA))
        a("v_mov_b32 v2, 0xff\nv_mov_b32 v8, 1\nv_mov_b32 v9, 0\ns_mov_b32 s%d, %d" % (sCNT, o["spin"]))
        self.sel_x()
        a("s_lshl_b32 s%d, s%d, 3\ns_lshr_b32 s%d, s%d, 2\ns_add_u32 s%d, s%d, s%d" % (sRB, sX, sA, sS, sRB, sRB, sA))
        a("s_lshl_b32 s%d, s%d, 10\nv_add_u32 v5, s%d, v13" % (sA, sW, sA))
        a("s_lshl_b32 s%d, s%d, %d\ns_lshl_b32 s%d, s%d, %d\ns_add_u32 s%d, s%d, s%d\ns_add_u32 s%d, s%d, 0x%x" % (
            sF, sU, 14 + self.sq, sA, sW, 12 + self.sq, sF, sF, sA, sF, sF, self.QX))
        if self.sq:
            a("s_add_u32 s97, s%d, 4096" % sF)
        a("s_lshl2_add_u32 s%d, s%d, s%d" % (sA, sU, sW))
        self.spread(sF, sA, min(o["qch"], 16), sA)
        if o["qch"] == 32:
            a("s_lshr_b32 s%d, s%d, 2\ns_lshl_b32 s%d, s%d, %d\ns_add_u32 s%d, s%d, s%d" % (sA, sU, sA, sA, o["sh"] + 4, sF, sF, sA))
        a("s_mov_b32 s%d, 0x05040100\ns_mov_b32 s%d, 0x07060302" % (sG, sH))
        vm.wait("x1")
        a("ds_write_b128 v5, v[16:19] offset:%d\nds_write_b128 v5, v[20:23] offset:%d" % (XS, XS + 4096))
        self.x_operands()
        if o["sp"]:
            a("v_lshrrev_b32 v14, 3, v1\nv_lshl_add_u32 v14, v14, 8, v7")
        if o["wd"]:
            a("s_and_b32 s%d, s%d, 7\ns_cmp_eq_u32 s%d, 1\ns_cselect_b64 vcc, -1, 0" % (sA, sS, sA))
        n = W0
        for i in range(24 - W):
            if i >= 8 and o["wd"]:
                vm.wait(i - o["wd"])
                a("s_cbranch_vccnz L_wd%d" % i)
                vm.wait(i)
                if o["wea"]:
                    a("s_cmp_ge_u32 s%d, 2\ns_cbranch_scc1 L_wd%d" % (sX, i))
                    vm.wait(i + 1)
                a("L_wd%d:" % i)
            elif i < 8 or n < i + 1 + W:
                vm.wait(i)
                if i in (0, 8, 10, 12, 15, 18):
                    self.stamp({0: 1, 8: 6, 10: 7, 12: 8, 15: 9, 18: 10}[i], True)
            while n < i + 1 + W:
                if n == 8 and o["slim"]:
                    a("s_waitcnt lgkmcnt(0)")
                issue(n)
                n += 1
            if i < 8:
                self.mf16(40, 24 + 2 * i, WQ + 4 * i, i == 0)
                self.mf16(44, 24 + 2 * i, WQ + 4 * i + 2, i == 0)
            if i == 7:
                for r in range(4):
                    a("v_permlane16_swap_b32 v%d, v%d" % (40 + r, 44 + r))
                for r in range(4):
                    self.dpp("v_add_f32", 40 + r, 44 + r, 40 + r, "row_ror:8")
                a("ds_write_b128 v5, v[40:43] offset:%d" % RQ)
                a("s_waitcnt lgkmcnt(0)\ns_barrier")
                self.stamp(2)
                self.tags()
        a("s_barrier")
        if o["prio"]:
            a("s_setprio %d" % o["prio"])
        self.stamp(3)
        a("v_lshrrev_b32 v3, 5, v1\ns_lshl_b32 s%d, s%d, 1\nv_add_u32 v3, s%d, v3" % (sA, sW, sA))
        a("v_and_b32 v4, 31, v1\nv_mul_u32_u24 v16, 272, v3\nv_lshl_add_u32 v16, v4, 3, v16")
        a("v_mul_u32_u24 v20, 528, v3\nv_lshl_add_u32 v20, v4, 4, v20\nv_lshlrev_b32 v21, 5, v3")
        a("v_lshrrev_b32 v4, 3, v4\nv_lshl_add_u32 v23, v3, 2, v4\nv_lshl_add_u32 v23, v23, %d, v7" % (12 + self.so))
        a("v_and_b32 v3, 7, v1\nv_lshrrev_b32 v4, 3, v1\nv_mul_u32_u24 v17, 272, v3\nv_lshl_add_u32 v17, v4, 4, v17")
        a("v_mul_u32_u24 v18, 528, v3\nv_and_b32 v5, 0x30, v1\ns_mul_i32 s%d, s%d, 4224\nv_add3_u32 v18, v18, v5, s%d" % (sA, sW, sA))
        a("s_lshl_b32 s%d, s%d, 3\nv_lshlrev_b32 v19, 5, v3\nv_add_u32 v19, s%d, v19" % (sA, sW, sA))
        a("v_mov_b32 v22, s%d" % sW)
        a("s_andn2_b32 s%d, 0x80, s%d\nv_add_u32 v24, s%d, v17\ns_and_b32 s%d, s%d, 0x80\nv_add_u32 v17, s%d, v17" % (sA, sR, sA, sA, sR, sA))
        def transpose(j):
            vm.wait(16 + 2 * j + 1)
            for e in range(8):
                a("v_perm_b32 v%d, v%d, v%d, s%d" % (VT + 4 * e + j, VD + 8 * j + 4 + (e >> 1), VD + 8 * j + (e >> 1), sH if e & 1 else sG))
        early = (o["qpos"] + 1) // 2
        for j in range(early):
            transpose(j)
        vm.wait("die" if "q" in o["cut"] else "q3")
        self.die_test(25)
        if o["qloc"] == 2:
            a("s_cmp_eq_u32 s%d, 0\ns_cbranch_scc1 L_qchk\ns_cmp_lg_u32 s%d, 0\ns_cbranch_scc1 L_qchk" % (sL, sW))
            self.q_offsets(sB, sA, sC, PV + 16, PV + 17)
            for k in range(4):
                a("ds_read_b128 %s, v%d offset:%d" % (vr(PV + 4 * k), PV + 17, RQ + 1024 * k))
            a("s_waitcnt lgkmcnt(0)")
            self.sum4(PV)
            self.tag4(PV, [PV + r for r in range(4)])
            a("s_mov_b32 exec_hi, 0\nbuffer_store_dwordx4 %s, v%d, %s, s%d offen sc1\ns_mov_b32 exec_hi, -1" % (vr(PV), PV + 16, srd("ws"), sB))
        if o["diag"]:
            a("s_cmp_lg_u32 s%d, 0\ns_cselect_b32 s%d, 1600, 0\ns_add_u32 s%d, s%d, s%d" % (sL, sA, sST + 2, sST + 2, sA))
        a("L_qchk:")
        self.untag(QG, 4, 3)
        a("s_branch L_qok" if o["cut"] else "s_cbranch_vccz L_qok")
        self.narrow()
        self.guard()
        q_loads(13, o["gpol"], "L_q1")
        self.count(1)
        a("s_waitcnt vmcnt(0)\ns_branch L_qchk\nL_qok:")
        self.widen()
        self.stamp(4)
        if o["twice"]:
            a("s_mov_b32 s97, 0\nL_twice:")
        self.sum4(QG)
        a("v_cvt_pk_bf16_f32 v4, v%d, v%d\nv_cvt_pk_bf16_f32 v5, v%d, v%d" % (QG, QG + 1, QG + 2, QG + 3))
        a("ds_write_b64 v16, v[4:5] offset:%d\nds_write_b8 v22, v8 offset:%d" % (QI, F_Q))
        a("s_mov_b32 s%d, 0x01010101" % sA)
        a("L_qi:")
        self.guard()
        a("ds_read_b32 v3, v9 offset:%d" % F_Q)
        a("ds_read_b128 %s, v17 offset:%d\nds_read_b128 %s, v24 offset:%d" % (vr(QB), QI, vr(QB + 4), QI))
        a("s_waitcnt lgkmcnt(0)\nv_cmp_ne_u32 vcc, s%d, v3\ns_cbranch_vccnz L_qi" % sA)
        for hh in range(2):
            for oc in range(4):
                self.mf32(SD + 4 * oc, KD + 8 * oc + 4 * hh, QB + 4 * hh, hh == 0)
        for p in range(2):
            for r in range(4):
                a("v_permlane32_swap_b32 v%d, v%d" % (SD + 8 * p + r, SD + 8 * p + 4 + r))
        for r in range(4):
            self.dpp("v_add_f32", 28 + r, SD + 4 + r, SD + r, "row_ror:8", 0x3)
        for r in range(4):
            self.dpp("v_add_f32", 28 + r, SD + 8 + r, SD + 12 + r, "row_ror:8", 0xc)
        for r in range(4):
            self.rnd(28 + r, 28 + r)
        for r in range(4):
            a("v_mul_f32 v%d, 0x%x, v%d" % (28 + r, SCALE, 28 + r))
        for r in range(4):
            self.rnd(28 + r, 28 + r)
        a("v_max3_f32 v32, v28, v29, v30\nv_max_f32 v32, v32, v31")
        self.dpp("v_max_f32", 32, 32, 32, "row_ror:8")
        self.rows_allreduce("v_max_f32", 32, 3)
        a("s_mov_b32 s%d, 0x%x" % (sB, LOG2E))
        for r in range(4):
            a("v_sub_f32 v%d, v%d, v32" % (28 + r, 28 + r))
        for r in range(4):
            a("v_mul_f32 v%d, s%d, v%d" % (28 + r, sB, 28 + r))
        for r in range(4):
            a("v_exp_f32 v%d, v%d" % (28 + r, 28 + r))
        a("v_cvt_pk_bf16_f32 v36, v28, v29\nv_cvt_pk_bf16_f32 v37, v30, v31")
        a("v_add_f32 v33, v28, v29\nv_add_f32 v30, v30, v31")
        self.dpp("v_mov_b32", 38, 36, None, "row_ror:8")
        self.dpp("v_mov_b32", 39, 37, None, "row_ror:8")
        a("v_add_f32 v33, v33, v30")
        self.dpp("v_add_f32", 33, 33, 33, "row_ror:8")
        self.rows_allreduce("v_add_f32", 33, 3)
        for j in range(early, 4):
            transpose(j)
        for e in range(8):
            self.mf32(PV + 4 * e, VT + 4 * e, 36, True)
        a("s_mov_b32 exec_lo, 0x00ff00ff\ns_mov_b32 exec_hi, 0x00ff00ff")
        for e in range(8):
            a("ds_write_b128 v18, %s offset:%d" % (vr(PV + 4 * e), OL + 64 * e))
        a("ds_write_b64 v19, v[32:33] offset:%d" % MLL)
        a("ds_write_b8 v22, v8 offset:%d" % F_O)
        a("s_mov_b64 exec, -1")
        a("s_lshl_b32 s%d, s%d, %d\ns_lshl_b32 s%d, s%d, %d\ns_add_u32 s%d, s%d, 0x%x\ns_add_u32 s%d, s%d, s%d" % (
            sG, sX, 17 + self.so, sD, sS, 7 + self.so, sG, sG, self.OX, sC, sG, sD))
        a("s_mov_b32 s%d, 0x07060501\ns_mov_b32 s%d, 0x07060502\ns_mov_b32 s%d, 0x07060503" % (sD, sE, sF))
        a("L_ox:")
        self.guard()
        a("ds_read_b32 v3, v9 offset:%d" % F_O)
        a("ds_read_b128 v[28:31], v21 offset:%d\nds_read_b128 v[32:35], v21 offset:%d" % (MLL, MLL + 16))
        for k in range(4):
            a("ds_read_b128 %s, v20 offset:%d" % (vr(QG + 4 * k), OL + 4224 * k))
        a("s_waitcnt lgkmcnt(0)\nv_cmp_ne_u32 vcc, s%d, v3\ns_cbranch_vccnz L_ox" % sA)
        a("v_max3_f32 v36, v28, v30, v32\nv_max_f32 v36, v36, v34")
        for k in range(4):
            a("v_sub_f32 v%d, v%d, v36" % (28 + 2 * k, 28 + 2 * k))
        for k in range(4):
            a("v_mul_f32 v%d, s%d, v%d" % (28 + 2 * k, sB, 28 + 2 * k))
        for k in range(4):
            a("v_exp_f32 v%d, v%d" % (28 + 2 * k, 28 + 2 * k))
        a("v_mul_f32 v37, v28, v29")
        for k in range(1, 4):
            a("v_fmac_f32 v37, v%d, v%d" % (28 + 2 * k, 29 + 2 * k))
        a("v_log_f32 v38, v37\nv_rcp_f32 v37, v37")
        self.scale4(QG, 28, QG, False)
        a("v_fmac_f32 v38, s%d, v36" % sB)
        for k in range(1, 4):
            self.scale4(QG, 28 + 2 * k, QG + 4 * k, True)
        self.scale4(QG, 37, QG, False)
        a("v_bfi_b32 v%d, v2, s%d, v%d" % (QG, sT0, QG))
        for r in range(1, 4):
            a("v_perm_b32 v%d, v%d, v38, s%d" % (QG + r, QG + r, sD + r - 1))
        if "O" not in o["cut"]:
            self.publish("L_po", QG, 23, sC)
        if o["twice"]:
            a("s_cmp_lg_u32 s97, 0\ns_cbranch_scc1 L_tw2\ns_mov_b32 s97, 1")
            self.stamp(5)
            a("s_branch L_twice\nL_tw2:")
            self.stamp(10)
        else:
            self.stamp(5)
        self.ack(10)
        a("s_cmp_ge_u32 s%d, 2\ns_cbranch_scc1 L_H\ns_cmp_eq_u32 s%d, 1\ns_cbranch_scc1 L_HP" % (sW, sW))
        a("s_lshl_b32 s%d, s%d, %d\ns_add_u32 s%d, s%d, s%d\ns_mov_b32 s%d, 0x0c04000c" % (sC, sS, 12 + self.so, sC, sC, sG, sE))
        if self.so:
            a("s_add_u32 s97, s%d, 4096" % sC)
        a("s_and_b32 s%d, s%d, 3\ns_lshl_b32 s%d, s%d, 5\ns_add_u32 s%d, s%d, s%d" % (sD, sU, sD, sD, sD, sD, sS))
        a("s_lshr_b32 s%d, s%d, 2\ns_lshl1_add_u32 s%d, s%d, s%d\ns_lshl_b32 s%d, s%d, %d\ns_add_u32 s%d, s%d, 0x%x" % (sA, sU, sD, sD, sA, sD, sD, 7 + self.s2, sD, sD, self.O2))
        if o["cown"]:
            a("v_mov_b32 v3, s%d\nds_write_b32 v9, v3 offset:%d" % (sL, F_L))
            a("s_lshl_b32 s%d, s%d, %d" % (sF, sS, 10 + self.s2))
        else:
            a("s_lshr_b32 s%d, s%d, 4\ns_xor_b32 s%d, s%d, s%d\ns_or_b32 s%d, s%d, s%d" % (sB, sS, sA, sA, sB, sL, sL, sA) if o["o2loc"] else "s_mov_b32 s%d, 1" % sL)
            a("s_lshl_b32 s%d, s%d, 9" % (sF, sRB))
        a("s_add_u32 s%d, s%d, 0x%x\ns_and_b32 s%d, s%d, 0xffff\ns_mov_b32 s%d, 0xffff" % (sF, sF, self.O2, sG, sT, sH))
        a("s_lshr_b32 s%d, s%d, 9" % (sA, sD))
        self.spread(sD, sA, o["och"], sA)
        self.spread(sF, sRB, o["och"], sA)
        a("v_and_b32 v3, 15, v1\nv_lshrrev_b32 v4, 4, v1\nv_lshlrev_b32 v27, 1, v3\nv_lshl_add_u32 v27, v4, 7, v27\nv_mov_b32 v26, 0x101")
        if o["osrc"] == "x":
            a("s_mov_b32 s%d, 0" % sC)
        if "o" in o["xpre"]:
            a("s_mov_b64 exec, 0xff")
            self.load(VT, 13, "ws", "s%d" % sD, 0, o["xppol"])
            a("s_mov_b64 exec, -1")
        self.flag_wait("L_to", 9, F_T)
        self.stamp(6)
        def o_loads(p):
            self.count(32)
            for m in range(0 if "o" in o["cut"] else 4):
                if self.so:
                    self.load(WQ + 4 * m, 14, "ws", "s%d" % (97 if m & 2 else sC), (m & 1) * 2048, p)
                else:
                    self.load(WQ + 4 * m, 13, o["osrc"][:1] or "ws", "s%d" % sC, m * 1024, p)
        if o["opol"] != o["lpol"]:
            o_loads(o["opol"])
            a("s_branch L_ogc")
        a("L_og:")
        self.guard()
        o_loads(o["lpol"])
        a("L_ogc:")
        a("s_waitcnt vmcnt(0)")
        for m in range(4):
            d = WQ + 4 * m
            a("v_xor_b32 v%d, s%d, v%d\nv_perm_b32 v%d, v%d, v%d, s%d" % (d, sT0, d, 28 + m, d + 2, d + 1, sE))
            a("v_lshl_or_b32 v%d, v%d, 24, v%d" % (28 + m, d + 3, 28 + m))
        a("v_or3_b32 v3, v%d, v%d, v%d\nv_or_b32 v3, v3, v%d\nv_and_b32 v3, v2, v3\nv_cmp_ne_u32 vcc, 0, v3" % tuple(WQ + 4 * m for m in range(4)))
        a("v_max3_f32 v36, v28, v29, v30\nv_max_f32 v36, v36, v31")
        if not o["cut"]:
            self.again("L_og")
        self.dpp("v_max_f32", 36, 36, 36, "row_ror:8")
        self.rows_allreduce("v_max_f32", 36, 3)
        for m in range(4):
            a("v_sub_f32 v%d, v%d, v36" % (28 + m, 28 + m))
        for m in range(4):
            a("v_exp_f32 v%d, v%d" % (28 + m, 28 + m))
        self.scale4(40, 28, WQ, False)
        a("v_add_f32 v36, v28, v29\nv_add_f32 v37, v30, v31")
        for m in range(1, 4):
            self.scale4(40, 28 + m, WQ + 4 * m, True)
            if m == 1:
                a("v_add_f32 v36, v36, v37")
            if m == 2:
                self.dpp("v_add_f32", 36, 36, 36, "row_ror:8")
        self.rows_allreduce("v_add_f32", 36, 3)
        a("v_rcp_f32 v36, v36")
        self.rows_scatter_sum([40])
        self.dpp("v_add_f32", 40, 40, 40, "row_ror:8")
        a("v_mul_f32 v40, v36, v40")
        self.rnd(40, 40)
        a("v_or_b32 v40, s%d, v40\nv_mov_b32 v41, v40\nv_permlane16_swap_b32 v40, v41" % sG)
        a("v_mov_b32 v42, v40\nv_mov_b32 v43, v41\nv_permlane32_swap_b32 v40, v42\nv_permlane32_swap_b32 v41, v43")
        a("s_mov_b64 exec, 0xff")
        if "2" not in o["cut"]:
            self.publish("L_p2", 40, 13, sD, None if o["cown"] else sL)
        self.stamp(8)
        a("s_mov_b64 exec, -1" if o["cown"] else "s_mov_b32 exec_lo, -1\ns_and_b32 s%d, s%d, 1\ns_lshl_b32 s%d, s%d, 3\ns_lshr_b32 s%d, 0xff00ff00, s%d" % (sE, sX, sE, sE, sE, sE))
        if o["lag"] & 2:
            a("s_waitcnt vmcnt(0)")
        if o["t2"]:
            self.flag_wait("L_t2", 9, F_T + 4)
        self.stamp(9)
        a("L_o2:")
        self.guard()
        self.count(32 * 8)
        if "2" not in o["cut"] and o["o2loc"] and not o["cown"]:
            a("s_mov_b32 exec_lo, s%d" % sE)
            self.load(44, 13, "ws", "s%d" % sF, 0, o["rpol"])
            a("s_not_b32 exec_lo, s%d" % sE)
            self.load(44, 13, "ws", "s%d" % sF, 0, o["lpol"])
            a("s_mov_b32 exec_lo, -1")
        elif "2" not in o["cut"]:
            self.load(44, 14 if self.s2 else 13, "ws", "s%d" % sF, 0, o["rpol"])
        a("s_waitcnt vmcnt(0)")
        for r in range(4):
            a("v_xor_b32 v%d, s%d, v%d" % (44 + r, sG, 44 + r))
        a("v_or3_b32 v3, v44, v45, v46\nv_or_b32 v3, v3, v47\nv_and_b32 v3, s%d, v3\nv_cmp_ne_u32 vcc, 0, v3" % sH)
        if not o["cut"]:
            a("s_cbranch_vccnz L_o2")
        for r in range(4):
            a("ds_write_b16_d16_hi v27, v%d offset:%d" % (44 + r, IM + 32 * r))
        a("ds_write_b16 v9, v26 offset:%d" % F_IM)
        self.writeback("O")
        self.stamp(7)
        self.finish()
        a("L_HP:")
        def fpre():
            a("s_lshl_b32 s%d, s%d, %d\ns_lshl_b32 s%d, s%d, %d\ns_add_u32 s%d, s%d, s%d\ns_add_u32 s%d, s%d, 0x%x" % (
                sA, sX, 16 - o["cown"], sC, sS, 11 - o["cown"], sA, sA, sC, sA, sA, FX))
            for m in range(2 - o["cown"]):
                self.load(VT + 4 * m, 13, "ws", "s%d" % sA, 1024 * m, o["fppol"])
        if o["fpre"] == "a":
            fpre()
        self.gu_tile()
        if o["h2"]:
            a("s_lshl1_add_u32 s%d, s%d, s%d\ns_mul_i32 s%d, s%d, 28672\ns_lshl_b32 s%d, s%d, 9" % (sC, sOK, sH, sC, sC, sG, sG))
            a("s_add_u32 s%d, s%d, s%d\n%s s%d, s%d, 0x%x\nv_mov_b32 v26, v%d" % (
                sG, sG, sC, "s_lshl1_add_u32" if self.sh else "s_add_u32", sG, sG, self.HX, 13 + self.sh))
            a("v_and_b32 v6, 1, v1\nv_lshlrev_b32 v27, 3, v6\nv_bfe_u32 v5, v1, 1, 1\nv_lshl_add_u32 v27, v5, 8, v27")
        else:
            a("s_lshl_b32 s%d, s%d, 9\ns_mul_i32 s%d, s%d, 57344\ns_add_u32 s%d, s%d, s%d\ns_add_u32 s%d, s%d, 0x%x" % (
                sG, sG, sC, sKS, sG, sG, sC, sG, sG, HX))
            a("v_mov_b32 v5, s%d\nv_mov_b32 v6, s%d\nv_cmp_gt_u32 vcc, 32, v1\nv_lshrrev_b32 v4, 5, v1\nv_cndmask_b32 v5, v6, v5, vcc" % (sH, sOK))
            a("v_mul_u32_u24 v26, %d, v4\nv_add3_u32 v26, v26, v13, v5" % (28672 - 512))
            a("v_and_b32 v6, 1, v1\nv_lshlrev_b32 v27, 3, v6\nv_lshl_add_u32 v27, v4, 7, v27\nv_bfe_u32 v5, v1, 1, 1\nv_lshl_add_u32 v27, v5, 8, v27")
        a("v_bfe_u32 v5, v1, 2, 3\nv_lshl_add_u32 v27, v5, 4, v27\ns_mov_b32 s%d, 0x01010101" % sA)
        if "h" in o["xpre"]:
            self.load(VT + 8, 26, "ws", "s%d" % sG, 0, o["xppol"])
        a("L_hp:")
        self.guard()
        a("ds_read_b32 v3, v9 offset:%d" % C_H)
        for k in range(4):
            a("ds_read2st64_b64 %s, v27 offset0:%d offset1:%d" % (vr(WQ + 4 * k), RH // 512 + 2 * k, RH // 512 + 2 * k + 1))
        a("s_waitcnt lgkmcnt(0)\nv_cmp_ne_u32 vcc, s%d, v3\ns_cbranch_vccnz L_hp" % sA)
        self.sum4(WQ)
        self.tag4(WQ, [WQ, WQ + 1, WQ + 2, WQ + 3])
        if o["h2"]:
            a("s_mov_b32 exec_hi, 0")
        if "H" not in o["cut"]:
            self.publish("L_ph", WQ, 26, sG, None if o["cown"] else sL)
        if o["h2"]:
            a("s_mov_b32 exec_hi, -1")
        if o["fpre"] == "c":
            self.flag_wait("L_tp", 9, F_T + 4)
        if o["fpre"] in ("b", "c"):
            fpre()
        if o["fpre"] or o["xpre"]:
            a("s_waitcnt vmcnt(0)")
        self.stamp(7)
        self.finish()
        a("L_H:")
        if o["cown"]:
            return self.h_gather()
        a("s_lshl_b32 s%d, s%d, 1\ns_add_u32 s%d, s%d, s%d\ns_mul_i32 s%d, s%d, 224" % (sF, sRB, sF, sF, sW, sF, sF))
        a("s_add_u32 s%d, s%d, 0x%x\ns_add_u32 s%d, s%d, 28672" % (sF, sF, HX - 448, sG, sF))
        a("v_and_b32 v3, 15, v1\nv_min_u32 v3, 13, v3\nv_lshrrev_b32 v5, 4, v1")
        a("v_mul_u32_u24 v26, 57344, v5\nv_lshl_add_u32 v26, v3, 4, v26")
        a("v_and_b32 v4, 1, v3\nv_and_b32 v6, 1, v5\nv_lshl_add_u32 v4, v4, 1, v6\nv_and_b32 v3, 14, v3")
        a("v_lshl_add_u32 v27, v4, 5, v3\nv_lshrrev_b32 v5, 1, v5\nv_lshl_add_u32 v27, v5, 4, v27")
        a("s_lshl_b32 s%d, s%d, 7\nv_add_u32 v27, s%d, v27" % (sA, sW, sA))
        self.flag_wait("L_th", 22, F_T)
        self.stamp(6)
        def h_loads(p):
            self.count(1024)
            if "h" not in o["cut"]:
                self.load(QB, 26, "ws", "s%d" % sF, 0, p)
                self.load(QB + 4, 26, "ws", "s%d" % sG, 0, p)
        if o["hpol"] != o["lpol"]:
            h_loads(o["hpol"])
            a("s_branch L_hgc")
        a("L_hg:")
        self.guard()
        h_loads(o["lpol"])
        a("L_hgc:")
        a("s_waitcnt vmcnt(0)")
        self.untag(QB, 2, 3)
        if not o["cut"]:
            self.again("L_hg")
        self.rows_scatter_sum([QB, QB + 4])
        self.rnd(4, QB)
        self.rnd(5, QB + 4)
        self.sigmoid(4, 4)
        a("v_mul_f32 v4, v4, v5")
        self.rnd(4, 4)
        a("ds_write_b16_d16_hi v27, v4 offset:%d\nds_write_b8 v22, v8 offset:%d" % (IM, F_IM))
        self.stamp(7)
        self.finish()

    def h_gather(self):
        a, o = self.a, self.o
        G, U = 48, 56
        a("s_lshl1_add_u32 s%d, s%d, s%d\ns_mul_i32 s%d, s%d, 448\ns_add_u32 s%d, s%d, 0x%x" % (sC, sS, sW, sC, sC, sC, sC, HX - 896))
        a("s_add_u32 s%d, s%d, %d\ns_add_u32 s%d, s%d, %d\ns_add_u32 s%d, s%d, %d" % (sD, sC, 2 * 57344, sE, sC, 28672, sF, sD, 28672))
        a("v_and_b32 v3, 31, v1\nv_min_u32 v3, 27, v3\nv_lshrrev_b32 v5, 5, v1")
        a("v_mul_u32_u24 v26, 57344, v5\nv_lshl_add_u32 v26, v3, 4, v26")
        if self.sh:
            a("s_sub_u32 s%d, s%d, 0x%x\nv_add_u32 v26, s%d, v26" % (sC, sC, HX, sC))
            self.wide(26, 1)
            for m in range(4):
                a("s_mov_b32 s%d, 0x%x" % (sC + m, self.HX + (m & 1) * 4 * 57344 + (m >> 1) * 57344))
        if o["h2"]:
            mask = sum(1 << (7 * x + min((x + 3) & 7, 6)) for x in range(8))
            a("s_lshl1_add_u32 s%d, s%d, s%d\ns_mul_i32 s%d, s%d, 28\ns_sub_u32 s%d, s%d, 56\nv_add_u32 v4, s%d, v3\nv_lshrrev_b32 v4, 5, v4" % (sA, sS, sW, sA, sA, sA, sA, sA))
            a("s_mov_b32 s%d, 0x%x\ns_mov_b32 s%d, 0x%x\nv_lshrrev_b64 v[6:7], v4, s[%d:%d]" % (sP, mask & 0xffffffff, sP + 1, mask >> 32, sP, sP + 1))
            a("v_bfe_i32 v6, v6, 0, 1\nv_mov_b32 v7, 0x%x\nv_bfi_b32 v25, v6, v26, v7" % OOB)
            for j in range(4):
                a("v_and_b32 v%d, s%d, v6" % (28 + j, sT0 + j))
            if o["hskip"]:
                a("v_cmp_ne_u32 s[%d:%d], 0, v6" % (sP, sP + 1))
        a("v_cmp_lt_u32 vcc, 13, v3\nv_add_u32 v4, %d, v3\nv_cndmask_b32 v4, v3, v4, vcc" % (128 - 14))
        a("v_and_b32 v3, 1, v3\nv_and_b32 v4, -2, v4\nv_lshl_add_u32 v27, v3, 6, v4\nv_lshl_add_u32 v27, v5, 4, v27")
        a("s_lshl_b32 s%d, s%d, 8\nv_add_u32 v27, s%d, v27" % (sA, sW, sA))
        self.flag_wait("L_th", 22, F_T)
        self.stamp(6)
        if o["hskip"]:
            a("s_cmp_lg_u64 s[%d:%d], 0\ns_cbranch_scc1 L_hg\nL_hs:" % (sP, sP + 1))
            self.guard()
            for m in (0, 2):
                self.load(G + 4 * m, 26, "ws", "s%d" % (sC + m), 0, o["hpol2"])
            a("s_waitcnt vmcnt(0)")
            for b in (G, U):
                for r in range(4):
                    a("v_xor_b32 v%d, s%d, v%d" % (b + r, sT0 + r, b + r))
            a("v_or3_b32 v3, v%d, v%d, v%d\nv_or3_b32 v4, v%d, v%d, v%d\nv_or3_b32 v3, v3, v%d, v%d\nv_bitop3_b32 v3, v3, v4, v2 bitop3:0xa8\nv_cmp_ne_u32 vcc, 0, v3" % (
                G, G + 1, G + 2, U, U + 1, U + 2, G + 3, U + 3))
            self.again("L_hs")
            a("s_branch L_hc")
        a("L_hg:")
        self.guard()
        self.count(1024)
        if "h" not in o["cut"]:
            for m in range(0, 4, 1 + o["hcut"]):
                self.load(G + 4 * m, 25 if o["h2"] and m & 1 else 26, "ws", "s%d" % (sC + m), 0, o["hpol2"])
        a("s_waitcnt vmcnt(0)")
        self.untag(G, 4, 3, vt=28 if o["h2"] else None)
        if not o["cut"]:
            self.again("L_hg")
        for b in (G, U):
            a("v_pk_add_f32 v[%d:%d], v[%d:%d], v[%d:%d]" % (b, b + 1, b, b + 1, b + 4, b + 5))
            a("v_pk_add_f32 v[%d:%d], v[%d:%d], v[%d:%d]" % (b + 2, b + 3, b + 2, b + 3, b + 6, b + 7))
        if o["hskip"]:
            a("s_nop 1\nL_hc:")
        for b in (G, U):
            a("v_permlane32_swap_b32 v%d, v%d\nv_permlane32_swap_b32 v%d, v%d" % (b, b + 2, b + 1, b + 3))
        for b in (G, U):
            a("v_pk_add_f32 v[%d:%d], v[%d:%d], v[%d:%d]" % (b, b + 1, b, b + 1, b + 2, b + 3))
        for r in (G, G + 1, U, U + 1):
            self.rnd(r, r)
        for op in ("v_mul_f32 v%d, " + "0x%x" % (LOG2E ^ 0x80000000) + ", v%d", "v_exp_f32 v%d, v%d", "v_add_f32 v%d, 1.0, v%d", "v_rcp_f32 v%d, v%d",
                   "v_cvt_pk_bf16_f32 v%d, 0, v%d"):
            for r in (G, G + 1):
                a(op % (r, r))
        a("v_mul_f32 v%d, v%d, v%d\nv_mul_f32 v%d, v%d, v%d" % (G, G, U, G + 1, G + 1, U + 1))
        a("v_cvt_pk_bf16_f32 v4, v%d, v%d" % (G, G + 1))
        a("ds_write_b16 v27, v4 offset:%d\nds_write_b16_d16_hi v27, v4 offset:%d\nds_write_b8 v22, v8 offset:%d" % (IM, IM + 32, F_IM))
        self.stamp(7)
        self.finish()

    def preread(self):
        a, o = self.a, self.o
        if o["pre"]:
            a("s_lshl_b32 s%d, s%d, 5\ns_add_u32 s%d, s%d, s%d\nv_lshlrev_b32 v40, 4, v1" % (sU, sX, sU, sU, sS))
        if "o" in o["pre"]:
            a("s_lshl2_add_u32 s%d, s%d, s%d\ns_lshl_b32 s%d, s%d, 10\ns_add_u32 s%d, s%d, 0x%x" % (sR, sU, sW, sR, sR, sR, sR, OX))
            self.load(192, 40, "ws", "s%d" % sR, 0, o["ppol"])
        if "h" in o["pre"]:
            a("s_cmp_lg_u32 s%d, 1\ns_cbranch_scc1 L_npre" % sW)
            a("s_lshr_b32 s%d, s%d, 2\ns_mul_i32 s%d, s%d, 28672\ns_mul_i32 s%d, s%d, 3584\ns_add_u32 s%d, s%d, s%d" % (sR, sS, sR, sR, sU, sX, sR, sR, sU))
            a("s_and_b32 s%d, s%d, 3\ns_mul_i32 s%d, s%d, 896\ns_add_u32 s%d, s%d, s%d\ns_add_u32 s%d, s%d, 0x%x" % (sU, sS, sU, sU, sR, sR, sU, sR, sR, HX))
            a("s_mov_b32 exec_hi, 0xffffff")
            self.load(48, 40, "ws", "s%d" % sR, 0, o["ppol"])
            a("s_mov_b32 exec_hi, -1\nL_npre:")

    def writeback(self, at):
        if at in self.o["wb"]:
            self.a("s_cmp_lg_u32 s%d, %d\ns_cbranch_scc1 L_nwb%s\nbuffer_wbl2 sc1\nL_nwb%s:" % (sS, self.o["wbs"], at, at))

    def finish(self):
        self.a("s_waitcnt lgkmcnt(0)")
        self.a("s_branch L_end" if self.o["stamps"] or self.o["hold"] else "s_endpgm")

    def f_waves(self):
        a, o = self.a, self.o
        W, pol = o["wf"], o["pol"]
        SEL, GU, WO, WD, Y, AO, DA, DB, VG = 56, 64, 128, 160, 188, 192, 224, 228, 232
        a("L_F:")
        for n in ("gw", "wg", "wu", "wo", "wd", "out"):
            self.ptr(n)
        self.desc("gw")
        if o["slim"]:
            a("s_getreg_b32 s%d, hwreg(HW_REG_XCC_ID, 0, 4)" % sL)
        if o["pf"] == 1:
            a("s_getpc_b64 s[%d:%d]\nL_pc:" % (sP, sP + 1))
            a("s_sub_u32 s%d, s%d, L_pc-%s_kernel\ns_subb_u32 s%d, s%d, 0" % (sP, sP, NAME, sP + 1, sP + 1))
            a("s_lshl_b32 s%d, s%d, 9\nv_lshl_add_u32 v250, v7, 2, s%d\nv_min_u32 v250, L_exit-%s_kernel, v250" % (sC, sS, sC, NAME))
            a("v_mov_b32 v251, s%d\nv_add_co_u32 v250, vcc, s%d, v250\ns_nop 1\nv_addc_co_u32 v251, vcc, 0, v251, vcc" % (sP + 1, sP))
            a("s_cmp_lg_u32 s%d, 0\ns_cbranch_scc1 L_nopf\nglobal_load_dword v252, v[250:251], off\nL_nopf:" % sW)
        a("v_and_b32 v3, 31, v1\nv_lshlrev_b32 v253, 4, v3\nv_lshrrev_b32 v4, 5, v1\nv_lshl_add_u32 v254, v4, 11, v253")
        a("v_mov_b32 v8, 1\nv_mov_b32 v9, 0\nv_mov_b32 v2, 0xff")
        a("s_waitcnt lgkmcnt(0)")
        a("s_load_dword s%d, s[%d:%d], 0" % (sT, SRD["ws"], SRD["ws"] + 1))
        self.stamp(1)
        self.desc("ws")
        if o["prepos"] == 0:
            self.preread()
        for n in ("wg", "wu", "wo", "wd", "out"):
            self.desc(n)
        a("v_lshlrev_b32 v3, 2, v1\nv_and_b32 v3, 31, v3\nds_write_b32 v3, v9")
        a("s_mov_b32 s%d, %d" % (sCNT, o["spin"]))
        a("s_lshl_b32 s%d, s%d, 2\nv_lshlrev_b32 v234, 4, v4\nv_add_u32 v235, s%d, v234" % (sA, sW, sA))
        self.gu_tile()
        if o["h2"]:
            a("s_cmp_eq_u32 s%d, 1\ns_cselect_b64 s[%d:%d], s[%d:%d], s[%d:%d]" % (sH, SRD["wg"], SRD["wg"] + 1, SRD["wu"], SRD["wu"] + 1, SRD["wg"], SRD["wg"] + 1))
            a("s_cmp_eq_u32 s%d, 8\ns_cselect_b32 s%d, 0x%x, 0\ns_mov_b32 s%d, 0" % (sE, sOK, OOB, sH))
            a("s_mov_b32 s%d, %d\ns_bitcmp1_b32 s%d, 0\ns_cselect_b32 s%d, %d, s%d" % (sR, 7168 * (256 - 14), sKS, sR, -7168 * (256 + 14), sR))
            a("s_xor_b32 s97, s%d, 4\ns_lshl_b32 s97, s97, 7" % sB)
        a("s_lshr_b32 s%d, s%d, 1\nv_mov_b32 v244, s%d\ns_add_u32 s%d, s%d, s%d\nv_mov_b32 v247, s%d" % (sC, sW, sC, sE, sE, sC, sE))
        if o["ex"]:
            a("s_add_u32 s%d, s%d, 8\ns_cmp_lt_u32 s%d, %d\ns_cselect_b32 s%d, s%d, s%d\nv_mov_b32 v238, s%d" % (sD, sC, sX, o["ex"], sD, sD, sE if o["exl"] else sC, sD))
        L = o["gil"]
        if L:
            a("v_lshrrev_b32 v3, %d, v6\nv_or_b32 v6, v3, v5" % L)
        a("v_mul_u32_u24 v11, 7168, v6\nv_add_u32 v11, v11, v7")
        a("v_add_u32 v246, s%d, v11\nv_add_u32 v11, s%d, v11" % (sOK, sH))
        a("s_mul_i32 s%d, s%d, %d\ns_lshl_b32 s%d, s%d, 7\ns_add_u32 s%d, s%d, s%d" % (sB, sB, (64 >> L) * 7168, sC, sG, sB, sB, sC))
        self.q_block(sA, sC)
        a("s_lshr_b32 s%d, s%d, 2\ns_lshl_b32 s%d, s%d, 12\ns_and_b32 s%d, s%d, 3\ns_lshl_b32 s%d, s%d, 8" % (sF, sA, sF, sF, sA, sA, sA, sA))
        a("s_add_u32 s%d, s%d, s%d\ns_lshl_b32 s%d, s%d, 10\ns_add_u32 s%d, s%d, s%d\n%s s%d, s%d, 0x%x" % (
            sF, sF, sA, sA, sKS, sF, sF, sA, "s_lshl1_add_u32" if self.sq else "s_add_u32", sF, sF, self.QX))
        a("s_lshr_b32 s%d, s%d, 12" % (sA, sF))
        self.spread(sF, sA, min(o["qch"], 16), sA)
        a("s_lshl_b32 s%d, s%d, 3\ns_lshr_b32 s%d, s%d, 2\ns_add_u32 s%d, s%d, s%d" % (sRB, sX, sA, sS, sRB, sRB, sA))
        if o["colmap"]:
            a("s_and_b32 s%d, s%d, 3\ns_and_b32 s%d, s%d, 1" % (sH, sS, sOK, sW))
            a("s_lshl_b32 s%d, s%d, 1\ns_add_u32 s%d, s%d, s%d\ns_lshl_b32 s%d, s%d, 8" % (sC, sH, sC, sC, sOK, sC, sC))
        else:
            a("s_and_b32 s%d, s%d, 3\ns_xor_b32 s%d, s%d, 2\ns_and_b32 s%d, s%d, 1" % (sH, sS, sH, sH, sOK, sW))
            a("s_lshl_b32 s%d, s%d, 3\ns_add_u32 s%d, s%d, s%d\ns_lshl_b32 s%d, s%d, 7" % (sC, sOK, sC, sC, sH, sC, sC))
        a("s_lshl_b32 s%d, s%d, 1\ns_lshr_b32 s%d, s%d, 1\ns_add_u32 s%d, s%d, s%d" % (sE, sRB, sA, sW, sE, sE, sA))
        if o["cown"]:
            a("s_lshl2_add_u32 s%d, s%d, s%d" % (sE, sS, sW))
            if o["colmap"]:
                a("s_lshl_b32 s%d, s%d, 8" % (sC, sX))
            else:
                a("s_and_b32 s%d, s%d, 1\ns_lshr_b32 s%d, s%d, 1\ns_lshl3_add_u32 s%d, s%d, s%d\ns_lshl_b32 s%d, s%d, 7" % (sC, sX, sA, sX, sC, sC, sA, sC, sC))
        a("s_lshr_b32 s%d, s%d, 2\ns_lshl_b32 s%d, s%d, 18\ns_and_b32 s%d, s%d, 3\ns_lshl_b32 s%d, s%d, 12" % (sD, sE, sD, sD, sA, sE, sA, sA))
        a("s_add_u32 s%d, s%d, s%d\ns_add_u32 s%d, s%d, s%d" % (sD, sD, sA, sD, sD, sC))
        a("s_mul_i32 s%d, s%d, %d\ns_add_u32 s%d, s%d, s%d" % (sE, sE, 28 * 2048, sE, sE, sC))
        a("v_lshrrev_b32 v3, 4, v1\nv_lshl_add_u32 v6, v5, %d, v7" % (7 if o["colmap"] else 9))
        a("v_lshl_add_u32 v12, v3, 14, v6\nv_lshl_add_u32 v13, v3, 11, v6")
        if o["oil"]:
            a("s_lshr_b32 s%d, s%d, 2\ns_lshr_b32 s%d, s%d, 1\ns_lshl1_add_u32 s%d, s%d, s%d\ns_lshl_b32 s%d, s%d, 13" % (sD, sS, sA, sW, sD, sD, sA, sD, sD))
            a("s_add_u32 s%d, s%d, s%d\ns_mul_i32 s%d, s%d, %d\ns_add_u32 s%d, s%d, s%d" % (sD, sD, sC, sE, sX, 448 * 2048, sE, sE, sD))
            a("s_lshl_b32 s%d, s%d, 20\ns_add_u32 s%d, s%d, s%d\nv_mov_b32 v12, v13" % (sA, sX, sD, sD, sA))
        a("s_lshl_b32 s%d, s%d, 10\nv_lshlrev_b32 v236, 4, v1\nv_add_u32 v236, s%d, v236" % (sA, sW, sA))
        a("v_mov_b32 v240, s%d" % sW)
        a("v_and_b32 v5, 15, v1\nv_lshlrev_b32 v6, 4, v5\nv_lshl_add_u32 v239, v3, 16, v6")
        self.wide(239, self.sq)
        if o["qch"] == 32:
            a("v_lshl_add_u32 v239, v3, %d, v239" % (o["sh"] + 4))
        a("v_and_b32 v6, 1, v1\nv_lshl_add_u32 v237, v3, 1, v6\nv_lshlrev_b32 v237, 8, v237")
        a("v_lshrrev_b32 v5, 1, v5\nv_lshl_add_u32 v237, v5, 4, v237")
        a("v_lshlrev_b32 v255, 8, v6\nv_lshl_add_u32 v255, v4, 9, v255\nv_bfe_u32 v5, v1, 1, 4\nv_lshl_add_u32 v255, v5, 4, v255")
        own, fq = o["cown"], o["fq"] if o["cown"] else 2
        if not own:
            a("s_lshl_b32 s%d, s%d, 10\nv_add_u32 v255, s%d, v255" % (sA, sOK, sA))
        a("v_lshrrev_b32 v4, %d, v1\nv_and_b32 v5, %d, v1\nv_lshlrev_b32 v241, 4, v5\nv_lshl_add_u32 v241, v4, %d, v241" % (fq, (1 << fq) - 1, 9 + fq if own else 12))
        a("v_lshrrev_b32 v4, 3, v1\nv_lshlrev_b32 v243, 7, v%d\nv_lshl_add_u32 v243, v4, 4, v243" % (240 if own else 244))
        a("v_lshlrev_b32 v242, 4, v1\nv_lshlrev_b32 v245, 3, v5\nv_lshl_add_u32 v245, v3, 1, v245")
        if own:
            nr = (1 << (fq - 1)) - 1
            a("s_lshl_b32 s%d, s%d, 15\ns_add_u32 s%d, s%d, 0x%x\ns_lshl_b32 s%d, s%d, %d\ns_add_u32 s%d, s%d, s%d" % (sA, sX, sA, sA, FX, sC, sS, 4 + fq, sP, sA, sC))
            a("s_andn2_b32 s%d, s%d, %d\ns_lshl_b32 s%d, s%d, 10\ns_add_u32 s%d, s%d, s%d" % (sC, sS, nr, sC, sC, sP + 1, sA, sC))
            a("s_and_b32 s%d, s%d, %d\ns_xor_b32 s%d, s%d, %d" % (sOK, sS, nr, sOK, sOK, o["fsel"] & nr))
        else:
            a("s_lshl_b32 s%d, s%d, 2\nv_mov_b32 v10, s%d" % (sA, sOK, sA))
            a("s_lshl_b32 s%d, s%d, 1\ns_add_u32 s%d, s%d, s%d\ns_lshl_b32 s%d, s%d, 16" % (sA, sH, sA, sA, sOK, sA, sA))
            a("s_lshl_b32 s%d, s%d, 6\ns_add_u32 s%d, s%d, s%d\ns_add_u32 s%d, s%d, 0x%x" % (sC, sRB, sA, sA, sC, sP, sA, FX))
            if o["floc"]:
                a("s_lshl1_add_u32 s%d, s%d, s%d\ns_lshl_b32 s%d, s%d, 6\ns_lshl_b32 s%d, s%d, 16\ns_add_u32 s%d, s%d, s%d\ns_add_u32 s%d, s%d, 0x%x" % (
                    sA, sS, sOK, sA, sA, sC, sX, sA, sA, sC, sP, sA, FX))
            a("s_and_b32 s%d, s%d, 1\ns_or_b32 s%d, s%d, s%d" % (sA, sS, sOK, sOK, sA))
            a("s_lshl_b32 s%d, s%d, 16\ns_lshl_b32 s%d, s%d, 11\ns_add_u32 s%d, s%d, s%d\ns_add_u32 s%d, s%d, 0x%x" % (sA, sX, sC, sS, sA, sA, sC, sP + 1, sA, FX))
        a("s_bfe_u32 s%d, s%d, 0x10003" % (sC, sS))
        if o["colmap"]:
            a("s_lshl_b32 s%d, s%d, 1\ns_add_u32 s%d, s%d, s%d" % (sA, sX, sA, sA, sC))
        else:
            a("s_lshl_b32 s%d, s%d, 2\ns_lshr_b32 s%d, s%d, 1\ns_add_u32 s%d, s%d, s%d" % (sC, sC, sA, sX, sA, sA, sC))
            a("s_and_b32 s%d, s%d, 1\ns_lshl_b32 s%d, s%d, 3\ns_add_u32 s%d, s%d, s%d" % (sC, sX, sC, sC, sA, sA, sC))
        a("s_and_b32 s%d, s%d, 16\ns_add_u32 s%d, s%d, s%d\ns_lshl_b32 s%d, s%d, 7" % (sC, sS, sA, sA, sC, sA, sA))
        a("s_and_b32 s%d, s%d, %d\ns_lshl_b32 s%d, s%d, 4\ns_add_u32 s%d, s%d, s%d" % (sC, sS, 8 - (1 << (fq - 1)), sC, sC, sKS, sA, sC))
        self.sel_x()
        a("v_lshlrev_b32 v4, 4, v1\nv_mov_b32 v3, 0x0c0c0100\nv_alignbit_b32 v5, v3, v3, v4")
        a("v_mov_b32 v3, 0x0c0c0302\nv_alignbit_b32 v6, v3, v3, v4\nv_bfe_u32 v7, v1, 1, 2\nv_mov_b32 v4, 0x0c0c0c0c")
        for j in range(4):
            a("v_cmp_eq_u32 vcc, %d, v7\nv_cndmask_b32 v%d, v4, v5, vcc\nv_cndmask_b32 v%d, v4, v6, vcc" % (j, SEL + j, SEL + 4 + j))
        a("s_lshl_b32 s%d, s%d, 9\ns_waitcnt lgkmcnt(0)" % (sC, sW))
        def g_loads():
            if "g" not in o["cut"]:
                self.load(GU, 254, "x", "s%d" % sC)
                self.load(GU + 4, 253, "gw", "s%d" % sC, 0, o["xpol"])
            if o["h2"]:
                self.load(AO + 16, 10, "x", "s97", 0)
                self.load(AO + 20, 10, "x", "s97", 16)
        def touch():
            if not o["tlb"]:
                return
            a("s_mov_b64 exec, 1\ns_add_u32 s%d, s%d, s%d" % (sA, sB, sR))
            for c, v, buf, so in (("g", 11, "wg", sB), ("g", 246, "wg", sA), ("o", 12, "wo", sD), ("d", 13, "wd", sE), ("r", 9, "out", sKS)):
                if c in o["tlb"]:
                    a("buffer_load_uBYTE v41, v%d, %s, s%d offen".replace("uBYTE", "ubyte") % (v, srd(buf), so))
            a("s_mov_b64 exec, -1")
        if o["tlbpos"] == 0:
            touch()
        if o["gpos"] == 0:
            g_loads()
        self.tags()
        a("s_cmp_lg_u32 s%d, 0\ns_cbranch_scc1 L_nodie" % sW)
        a("s_lshl_b32 s%d, s%d, 5\ns_add_u32 s%d, s%d, s%d\ns_lshl_b32 s%d, s%d, 2\ns_add_u32 s%d, s%d, 0x%x" % (sA, sX, sA, sA, sS, sA, sA, sA, sA, DX))
        a("s_xor_b32 s%d, s%d, s%d\nv_mov_b32 v3, s%d\ns_mov_b64 exec, 1" % (sU, sL, sT, sU))
        a("buffer_store_dword v3, v9, %s, s%d offen\ns_mov_b64 exec, -1" % (srd("ws"), sA))
        if "q" in o["xpre"]:
            a("s_mov_b32 exec_hi, 0")
            self.load(AO, 239, "ws", "s%d" % sF, 0, o["xppol"])
            a("s_mov_b32 exec_hi, -1")
        if o["qloc"] == 1:
            a("s_waitcnt vmcnt(0)")
            self.die_read(25)
        if o["gpos"] == 2:
            g_loads()
        a("L_nodie:\ns_barrier")
        if o["gpos"] == 0:
            a("s_waitcnt vmcnt(0)")
        a("s_cmp_lg_u32 s%d, 0\ns_cbranch_scc1 L_noq" % sW)
        QR = GU if o["gpos"] == 1 else GU + 16
        for k in range(4):
            a("ds_read_b128 %s, v237 offset:%d" % (vr(QR + 4 * k), RQ + 1024 * k))
        a("s_waitcnt lgkmcnt(0)")
        self.sum4(QR)
        self.tag4(248, [QR, QR + 1, QR + 2, QR + 3])
        if o["gpos"] == 2:
            a("s_waitcnt vmcnt(0)")
        if o["qloc"]:
            a("s_mov_b32 s%d, 0xffff\ns_not_b32 s%d, s%d\ns_bitcmp1_b32 s%d, 0\ns_cselect_b32 s%d, s%d, s%d\ns_mov_b32 exec_lo, s%d\ns_mov_b32 exec_hi, 0" % (
                  sA, sU, sA, sX, sU, sA, sU, sU))
            if "Q" not in o["cut"]:
                a("buffer_store_dwordx4 v[248:251], v239, %s, s%d offen %s" % (srd("ws"), sF, o["qst"]))
            if o["qloc"] == 1:
                a("s_mov_b32 exec_lo, -1\ns_waitcnt vmcnt(%d)" % ("Q" not in o["cut"]))
                self.die_test(25)
            a("s_not_b32 exec_lo, s%d" % sU)
            if o["qloc"] == 2:
                a("buffer_store_dwordx4 v[248:251], v239, %s, s%d offen" % (srd("ws"), sF))
            elif "Q" not in o["cut"]:
                self.publish("L_pq", 248, 239, sF)
            a("s_mov_b64 exec, -1")
        else:
            a("s_mov_b32 exec_hi, 0")
            if "Q" not in o["cut"]:
                a("buffer_store_dwordx4 v[248:251], v239, %s, s%d offen %s" % (srd("ws"), sF, o["qst"]))
            a("s_mov_b32 exec_hi, -1")
        a("L_noq:")
        self.stamp(2)
        if o["prepos"] == 1:
            self.preread()
        if o["fpre"] == "w":
            a("s_cmp_lt_u32 s%d, 2\ns_cbranch_scc1 L_nfp" % sW)
            self.load(40, 241, "ws", "s%d" % sP, 0, o["fppol"])
            a("L_nfp:")
        if o["fpre"] == "r":
            a("s_bitcmp1_b32 s%d, 0\ns_cbranch_scc1 L_nfp\ns_lshl_b32 s%d, s%d, 10\ns_add_u32 s%d, s%d, s%d" % (sS, sA, sW, sA, sA, sP + 1))
            self.load(40, 242, "ws", "s%d" % sA, 0, o["fppol"])
            a("L_nfp:")
        if o["gpos"] == 2:
            a("s_cmp_eq_u32 s%d, 0\ns_cbranch_scc1 L_g0" % sW)
        if o["tlbpos"] == 1:
            touch()
        if o["gpos"]:
            g_loads()
        if o["gpos"] == 2:
            a("s_waitcnt vmcnt(0)\nL_g0:")
        a("ds_read_b128 v[16:19], v236 offset:%d\nds_read_b128 v[20:23], v236 offset:%d\ns_waitcnt lgkmcnt(0)" % (XS, XS + 4096))
        self.x_operands()
        if o["gpos"] == 1:
            a("s_waitcnt vmcnt(0)")
        if o["h2"]:
            self.x_operands(AO, AO + 16)
        self.ack(1)
        self.stamp(1, True)
        t = GU + 8
        for j in range(4):
            a("v_lshlrev_b32 v%d, 16, v%d\nv_lshlrev_b32 v%d, 16, v%d" % (t + j, GU + j, t + 4 + j, GU + 4 + j))
            a("v_and_b32 v%d, 0xffff0000, v%d\nv_and_b32 v%d, 0xffff0000, v%d" % (GU + j, GU + j, GU + 4 + j, GU + 4 + j))
        for j in range(4):
            a("v_mul_f32 v%d, v%d, v%d\nv_mul_f32 v%d, v%d, v%d" % (t + j, t + j, t + 4 + j, GU + j, GU + j, GU + 4 + j))
        for j in range(4):
            self.rnd(t + j, t + j); self.rnd(GU + j, GU + j)
        for j in range(4):
            a("v_add_f32 v%d, v%d, v%d" % (t + j, t + j, GU + j))
        a("v_add_f32 v%d, v%d, v%d\nv_add_f32 v%d, v%d, v%d\nv_add_f32 v4, v%d, v%d" % (t, t, t + 1, t + 2, t + 2, t + 3, t, t + 2))
        for n in (8, 4, 2, 1):
            self.dpp("v_add_f32", 4, 4, 4, "row_ror:%d" % n)
        self.rows_allreduce("v_add_f32", 4, 3, (16,))
        a("ds_write_b32 v235, v4 offset:%d" % GP)
        a("s_waitcnt lgkmcnt(0)")
        a("s_barrier")
        self.stamp(3)

        def issue(i):
            if i < 16 and o["ilv"]:
                self.load(GU + 4 * i, 246 if i & 1 else 11, "wu" if i & 1 else "wg", "s%d" % sB, 0, pol)
                if i & 1 and i < 15:
                    a("s_add_u32 s%d, s%d, %d" % (sB, sB, 7168 * (krow(i // 2 + 1, L) - krow(i // 2, L))))
            elif i < 16:
                self.load(GU + 4 * i, 246 if i >= 8 else 11, "wu" if i >= 8 and not o["h2"] else "wg", "s%d" % sB, 0, pol)
                if i == 7 and o["h2"]:
                    a("s_add_u32 s%d, s%d, s%d" % (sB, sB, sR))
                elif i == 7:
                    a("s_sub_u32 s%d, s%d, %d" % (sB, sB, 7168 * krow(7, L)))
                elif i < 15:
                    a("s_add_u32 s%d, s%d, %d" % (sB, sB, 7168 * (krow((i & 7) + 1, L) - krow(i & 7, L))))
            elif i < 24:
                k = i - 16
                m = (k >> 1) + 4 * (k & 1)
                self.load(WO + 4 * m, 12, "wo", "s%d" % sD, 0 if o["oil"] else 2048 * (k & 1), pol)
                if o["oil"]:
                    a("s_add_u32 s%d, s%d, 0x20000" % (sD, sD))
                elif k & 1 and k < 7:
                    a("s_add_u32 s%d, s%d, 0x10000" % (sD, sD))
            else:
                m = i - 24
                self.load(WD + 4 * m, 13, "wd", "s%d" % sE, 0, pol)
                if m < 6:
                    a("s_add_u32 s%d, s%d, 0x%x" % (sE, sE, 0x20000 if o["oil"] else 0x2000))

        if o["prepos"] == 2:
            self.preread()
        if o["ld"]:
            a("s_and_b32 s%d, s%d, %d\ns_cmp_lg_u32 s%d, 1\ns_cbranch_scc1 L_go" % (sA, sS, o["ld"], sA))
            self.flag_wait("L_ld", 240, F_Q)
            a("L_go:")
        for i in range(W):
            issue(i)
        a("ds_read_b128 v[4:7], v234 offset:%d\ns_waitcnt lgkmcnt(0)" % GP)
        a("v_add_f32 v4, v4, v5\nv_add_f32 v6, v6, v7\nv_add_f32 v4, v4, v6")
        self.rnd(4, 4)
        self.sigmoid(VG, 4)
        a("v_sub_f32 v%d, 1.0, v%d" % (VG + 1, VG))
        self.rnd(VG + 1, VG + 1)
        if o["wef"]:
            a("s_cmp_ge_u32 s%d, 2\ns_cselect_b64 vcc, -1, 0" % sX)
        if o["lt"]:
            a("s_and_b32 s%d, s%d, 3\ns_cmp_lg_u32 s%d, 1\ns_cbranch_scc1 L_full" % (sA, sS, sA))
            seq = list(range(8)) + list(range(16, 31))
            n = W
            last = min(22, max(22 - o["lw2"], o["lh"] + o["thl"], o["l2"] + o["t2l"]))
            while n < o["lw"]:
                issue(seq[n])
                n += 1
            for i in range(last + 1):
                a("s_waitcnt vmcnt(%d)" % (n - 1 - i))
                while n < min(23, i + 1 + (o["lw"] if n < 8 else o["lw2"])):
                    issue(seq[n])
                    n += 1
                if i < 8:
                    self.mf16(40, 24 + 2 * i, GU + 4 * i, i == 0)
                    self.mf16(44, 24 + 2 * i, GU + 4 * i + 2, i == 0)
                for flag, step, dl in ((F_T, o["lo"], 0), (F_T + 2, o["lh"], o["thl"]), (F_T + 4, o["l2"], o["t2l"])):
                    if i == min(step + dl, last):
                        a("ds_write_b8 v244, v8 offset:%d" % flag)
                    elif i == step:
                        a("ds_write_b8 v238, v8 offset:%d" % flag)
                if i == 7:
                    for r in range(4):
                        a("v_permlane16_swap_b32 v%d, v%d" % (40 + r, 44 + r))
                    for r in range(4):
                        self.dpp("v_add_f32", 40 + r, 44 + r, 40 + r, "row_ror:8", 0x3)
                    a("ds_write_b128 v236, v[40:43] offset:%d\nds_write_b8 v240, v8 offset:%d" % (RH, C_H))
                    self.stamp(4)
            assert n == 23
            a("s_branch L_join\nL_full:")
        nis = W
        steps = max(31 - W, 16)
        if o["wt"] < 99:
            steps = min(steps, max(o["th"] + o["thl"], o["t2"] + o["t2l"]) + 1)
        for i in range(steps):
            if i >= o["wt"]:
                a("s_waitcnt vmcnt(%d)" % (nis - 1 - i))
                while nis < min(31, i + W + 1 + (i + 1 - o["wt"]) * o["wr"]) or i == steps - 1 and nis < 31:
                    issue(nis)
                    nis += 1
            elif i + W < 31:
                nis += 1
                a("s_waitcnt vmcnt(%d)" % (W - 1))
                if i < o["wef"]:
                    a("s_cbranch_vccnz L_we%d\ns_waitcnt vmcnt(%d)\nL_we%d:" % (i, W - 2, i))
                if i in (0, 4, 8, 12, 20):
                    self.stamp({0: 6, 4: 7, 8: 8, 12: 9, 20: 10}[i], True)
                issue(i + W)
            else:
                a("s_waitcnt vmcnt(%d)" % (30 - i))
            if i < 16 and o["h2"]:
                xo = 24 + 2 * i if i < 8 else AO + 2 * (i - 8)
                self.mf16(40, xo, GU + 4 * i, i == 0)
                self.mf16(44, xo, GU + 4 * i + 2, i == 0)
            elif i < 16:
                gu, m = (i & 1, i >> 1) if o["ilv"] else (i >> 3, i & 7)
                self.mf16(40 + 8 * gu, 24 + 2 * m, GU + 4 * i, m == 0)
                self.mf16(44 + 8 * gu, 24 + 2 * m, GU + 4 * i + 2, m == 0)
            last = steps - 1
            for flag, step, dl in ((F_T, o["to"], o["tol"]), (F_T + 2, o["th"], o["thl"])) + (((F_T + 4, o["t2"], o["t2l"]),) if o["t2"] else ()):
                if i == min(step + (0 if o["ilv"] else dl), last):
                    a("ds_write_b8 v244, v8 offset:%d" % flag)
                elif i == step:
                    a("ds_write_b8 v%d, v8 offset:%d" % (238 if o["ex"] and flag != F_T else 247, flag))
            if i == 15:
                for r in range(4):
                    a("v_permlane16_swap_b32 v%d, v%d" % (40 + r, 44 + r))
                for r in range(0 if o["h2"] else 4):
                    a("v_permlane16_swap_b32 v%d, v%d" % (48 + r, 52 + r))
                for r in range(4):
                    self.dpp("v_add_f32", 40 + r, 44 + r, 40 + r, "row_ror:8", 0x3)
                for r in range(0 if o["h2"] else 4):
                    self.dpp("v_add_f32", 40 + r, 48 + r, 52 + r, "row_ror:8", 0xc)
                a("ds_write_b128 v236, v[40:43] offset:%d" % RH)
                a("ds_write_b8 v240, v8 offset:%d" % C_H)
                self.stamp(4)
        a("L_join:")
        self.stamp(5)

        def image(lbl, flag, img, Y=Y):
            a("%s:" % lbl)
            self.guard()
            a("ds_read_u8 v3, v244 offset:%d\nds_read_b128 %s, v243 offset:%d" % (flag, vr(Y), img))
            a("s_waitcnt lgkmcnt(0)\nv_cmp_ne_u32 vcc, 1, v3\ns_cbranch_vccnz %s" % lbl)

        def operands(m, Y=Y):
            for j in range(4):
                a("v_perm_b32 v%d, v%d, v%d, v%d" % (AO + 4 * m + j, Y + (m >> 1), Y + (m >> 1), SEL + 4 * (m & 1) + j))

        if o["adap"]:
            YH = 16
            def chain(d, n, Yr, Wr, wait, fill=None):
                operands(0, Yr)
                for m in range(n):
                    if m < n - 1:
                        operands(m + 1, Yr)
                    elif fill:
                        for r in range(4):
                            a("v_mul_f32 v%d, v%d, v%d" % (fill[0] + r, fill[1], fill[0] + r))
                    if wait(m) is not None:
                        a("s_waitcnt vmcnt(%d)" % wait(m))
                    self.mf32(d, AO + 4 * m, Wr + 4 * m, m == 0)
            a("L_im:")
            self.guard()
            a("ds_read_u8 v3, v244 offset:%d\nds_read_u8 v4, v244 offset:%d" % (F_IM, F_IM + 2))
            a("ds_read_b128 %s, v243 offset:%d\nds_read_b128 %s, v243 offset:%d" % (vr(Y), IM, vr(YH), IM + 512))
            a("s_waitcnt lgkmcnt(0)\nv_cmp_eq_u32 vcc, 1, v3\ns_cbranch_vccnz L_of\nv_cmp_ne_u32 vcc, 1, v4\ns_cbranch_vccnz L_im")
            self.stamp(7)
            chain(DB, 7, YH, WD, lambda m: 6 - m)
            image("L_oi", F_IM, IM)
            self.stamp(6)
            chain(DA, 8, Y, WO, lambda m: None)
            self.scale4(DA, VG, DA, False)
            a("s_branch L_mix\nL_of:")
            self.stamp(6)
            a("v_cmp_eq_u32 vcc, 1, v4")
            chain(DA, 8, Y, WO, lambda m: None if m else 7)
            a("s_cbranch_vccnz L_hok")
            image("L_hi", F_IM + 2, IM + 512, YH)
            a("L_hok:")
            self.stamp(7)
            chain(DB, 7, YH, WD, lambda m: 6 - m, (DA, VG))
            a("s_nop 7\nL_mix:")
            self.scale4(DA, VG + 1, DB, True)
        else:
            image("L_oi", F_IM, IM)
            self.stamp(6)
            operands(0)
            a("s_waitcnt vmcnt(7)")
            for m in range(8):
                if m < 7:
                    operands(m + 1)
                self.mf32(DA, AO + 4 * m, WO + 4 * m, m == 0)
            image("L_hi", F_IM + 2, IM + (512 if own else 256))
            self.stamp(7)
            operands(0)
            for m in range(7):
                if m < 6:
                    operands(m + 1)
                else:
                    for r in range(4):
                        a("v_mul_f32 v%d, v%d, v%d" % (DA + r, VG, DA + r))
                a("s_waitcnt vmcnt(%d)" % (6 - m))
                self.mf32(DB, AO + 4 * m, WD + 4 * m, m == 0)
            for r in range(4):
                a("v_fmac_f32 v%d, v%d, v%d" % (DA + r, VG + 1, DB + r))
        a("ds_write_b128 v236, %s offset:%d" % (vr(DA), RF))
        self.stamp(8)
        if own:
            return self.final_local(DA, AO, fq)
        a("s_mov_b64 exec, 1\nds_add_rtn_u32 v3, v10, v8 offset:%d\ns_mov_b64 exec, -1" % C_F)
        a("ds_read_b128 %s, v255 offset:%d\nds_read_b128 %s, v255 offset:%d" % (vr(DA), RF, vr(DB), RF + 2048))
        a("s_waitcnt lgkmcnt(0)\nv_readfirstlane_b32 s%d, v3" % sA)
        for r in range(4):
            a("v_add_f32 v%d, v%d, v%d" % (DA + r, DA + r, DB + r))
        a("s_cmp_lg_u32 s%d, 1\ns_cbranch_scc1 L_end" % sA)
        self.tag4(DA, [DA + r for r in range(4)])
        if o["fcut"]:
            a("s_mov_b64 exec, 0x%x" % ((1 << (32 >> (o["fcut"] - 1))) - 1) if o["fcut"] > 1 else "s_mov_b32 exec_hi, 0")
        a("buffer_store_dwordx4 %s, v241, %s, s%d offen %s" % (vr(DA), srd("ws"), sP, o["fst"]))
        if o["fcut"]:
            a("s_mov_b64 exec, -1\ns_cmp_ge_u32 s%d, %d\ns_cselect_b32 s%d, 1, s%d" % (sS, 32 >> o["fcut"], sOK, sOK))
        self.stamp(9)
        self.writeback("F")
        a("s_cmp_lg_u32 s%d, 0\ns_cbranch_scc1 L_end" % sOK)
        if o["lag"] & 1:
            a("s_waitcnt vmcnt(0)")
        if o["lagx"]:
            a("s_cmp_ge_u32 s%d, %d\ns_cbranch_scc1 L_fin" % (sX, o["lagx"]))
            self.load(40, 241, "ws", "s%d" % sP, 0, "sc1")
            a("s_waitcnt vmcnt(0)")
        a("L_fin:")
        self.guard()
        for m in range(4):
            self.load(40 + 4 * m, 242, "ws", "s%d" % (sP + 1), 1024 * m, o["fld"])
        a("s_waitcnt vmcnt(0)")
        self.untag(40, 4, 3)
        self.again("L_fin")
        self.stamp(10)
        self.writeback("R")
        self.sum4(40)
        self.rows_scatter_sum([40])
        for n in (8, 4):
            self.dpp("v_add_f32", 40, 40, 40, "row_ror:%d" % n)
        self.rnd(40, 40)
        a("s_mov_b32 exec_lo, 0x000f000f\ns_mov_b32 exec_hi, 0x000f000f")
        a("buffer_store_short_d16_hi v40, v245, %s, s%d offen %s" % (srd("out"), sKS, o["outpol"]))
        self.last(0)

    def final_local(self, DA, R, fq):
        a, o = self.a, self.o
        n = 1 << (fq - 1)
        a("s_mov_b64 exec, 1\nds_add_rtn_u32 v3, v9, v8 offset:%d\nds_read_b32 v4, v9 offset:%d\ns_mov_b64 exec, -1" % (C_F, F_L))
        for k in range(4):
            a("ds_read_b128 %s, v255 offset:%d" % (vr(R + 4 * k), RF + 1024 * k))
        a("s_waitcnt lgkmcnt(4)\nv_readfirstlane_b32 s%d, v3\nv_readfirstlane_b32 s%d, v4" % (sA, sL))
        a("s_cmp_lg_u32 s%d, 3\ns_waitcnt lgkmcnt(0)\ns_cbranch_scc1 L_end" % sA)
        self.sumq(R, 4)
        self.tag4(R, [R + r for r in range(4)])
        self.publish("L_pf", R, 241, sP)
        self.stamp(9)
        if n > 1:
            a("s_cmp_lg_u32 s%d, 0\ns_cbranch_scc1 L_end" % sOK)
        if o["lag"] & 1:
            a("s_waitcnt vmcnt(0)")
        a("L_fin:")
        self.guard()
        for m in range(n):
            self.load(40 + 4 * m, 242, "ws", "s%d" % (sP + 1), 1024 * m, o["fld"])
        a("s_waitcnt vmcnt(0)")
        self.untag(40, n, 3)
        self.again("L_fin")
        self.stamp(10)
        self.sumq(40, n)
        self.rows_scatter_sum([40])
        for k in range(3, fq - 1, -1):
            self.dpp("v_add_f32", 40, 40, 40, "row_ror:%d" % (1 << k))
        self.rnd(40, 40)
        m = ((1 << (1 << fq)) - 1) * 0x10001
        a("s_mov_b32 exec_lo, 0x%x\ns_mov_b32 exec_hi, 0x%x" % (m, m))
        a("buffer_store_short_d16_hi v40, v245, %s, s%d offen %s" % (srd("out"), sKS, o["outpol"]))
        self.last(8 * (o["fsel"] & (n - 1)))

    def scale4(self, d, c, s, acc):
        if not self.o["pk"]:
            for r in range(4):
                self.a("%s v%d, v%d, v%d" % ("v_fmac_f32" if acc else "v_mul_f32", d + r, c, s + r))
            return
        for r in (0, 2):
            ops = "v[%d:%d], v[%d:%d], v[%d:%d]" % (d + r, d + r + 1, c & ~1, (c & ~1) + 1, s + r, s + r + 1)
            if acc:
                self.a("v_pk_fma_f32 %s, v[%d:%d] op_sel:[%d,0,0] op_sel_hi:[%d,1,1]" % (ops, d + r, d + r + 1, c & 1, c & 1))
            else:
                self.a("v_pk_mul_f32 %s op_sel:[%d,0] op_sel_hi:[%d,1]" % (ops, c & 1, c & 1))

    def sumq(self, b, n):
        st = 4
        while st < 4 * n:
            for q in range(b, b + 4 * n, 2 * st):
                for r in (0, 2):
                    self.a("v_pk_add_f32 v[%d:%d], v[%d:%d], v[%d:%d]" % (q + r, q + r + 1, q + r, q + r + 1, q + st + r, q + st + r + 1))
            st *= 2

    def last(self, wg):
        a, o = self.a, self.o
        a("s_cmp_lg_u32 s2, %d\ns_cbranch_scc1 %s" % (wg, "L_amp" if o["ampend"] else "L_end"))
        a("s_mov_b64 exec, 1\nv_mov_b32 v3, s%d\nbuffer_store_dword v3, v9, %s, 0 offen %s" % (sT, srd("ws"), o["tpol"]))
        if o["ampend"]:
            a("L_amp:\ns_waitcnt vmcnt(0)\ns_memrealtime s[%d:%d]\ns_waitcnt lgkmcnt(0)" % (sD, sD + 1))
            a("s_sub_u32 s%d, s%d, s%d\ns_lshl_b32 s%d, s%d, 2\ns_and_b32 s%d, s%d, 0x3fff" % (sA, sD, sST, sA, sA, sA, sA))
            a("L_amp2:\ns_memrealtime s[%d:%d]\ns_waitcnt lgkmcnt(0)\ns_sub_u32 s%d, s%d, s%d\ns_cmp_lt_u32 s%d, s%d\ns_cbranch_scc1 L_amp2" % (
                sD, sD + 1, sD, sD, sST, sD, sA))

    def epilogue(self):
        a = self.a
        a("L_end:")
        if self.o["stamps"]:
            a("s_mov_b64 exec, 1\ns_waitcnt vmcnt(0)")
            self.stamp(NST - 1)
            a("s_waitcnt lgkmcnt(0)")
            a("s_lshl_b32 s%d, s3, 8\ns_add_u32 s%d, s%d, s2\ns_mul_i32 s%d, s%d, %d\ns_add_u32 s%d, s%d, 0x%x" % (
                sA, sA, sA, sA, sA, NST * 8, sA, sA, STAMP_OFF))
            a("v_mov_b32 v1, s%d" % sA)
            for i in range(NST):
                a("v_mov_b32 v4, s%d\nv_mov_b32 v5, s%d" % (sST + 2 * i, sST + 2 * i + 1))
                a("buffer_store_dwordx2 v[4:5], v1, %s, 0 offen offset:%d\ns_nop 1" % (srd("ws"), 8 * i))
        if self.o["hold"]:
            a("s_cmp_lg_u32 s3, %d\ns_cbranch_scc1 L_exit" % self.o["ampwave"])
            if self.o["ampwg"] is not None:
                a("s_cmp_lg_u32 s2, %d\ns_cbranch_scc1 L_exit" % self.o["ampwg"])
            a("s_waitcnt lgkmcnt(0)\ns_mov_b32 s%d, %d" % (sA, self.o["hold"]))
            if self.o["amp"]:
                a("s_sub_u32 s%d, s%d, s%d\ns_lshl_b32 s%d, s%d, 2\ns_and_b32 s%d, s%d, 0x3fff\ns_add_u32 s%d, s%d, s%d" % (
                    sB, sST + 2 * self.o["amp"], sST, sB, sB, sB, sB, sA, sA, sB))
            a("L_hold:\ns_memrealtime s[%d:%d]\ns_waitcnt lgkmcnt(0)\ns_sub_u32 s%d, s%d, s%d\ns_cmp_lt_u32 s%d, s%d\ns_cbranch_scc1 L_hold" % (
                sD, sD + 1, sD, sD, sST, sD, sA))
        a("L_exit:\ns_endpgm")

    def build(self):
        if self.o["stamps"]:
            for i in range(1, NST):
                self.a("s_mov_b64 s[%d:%d], 0" % (sST + 2 * i, sST + 2 * i + 1))
        self.prologue()
        self.a_waves()
        self.f_waves()
        self.epilogue()
        lab = NAME + "_kernel"
        lines = [l[:-3] + self.o["spol"] if "buffer_store_dwordx4" in l and l.endswith("sc1") and "v241" not in l else l for l in self.a.lines]
        body = "\n".join(hazard.pad(lines)) + "\n"
        return (header(["; @launch grid=(256,1,1) block=(512,1,1) lds=%d" % LDS_BYTES]) + kernel_open(lab) + body
                + RODATA + descriptor(lab, 256))


def main():
    out = sys.argv[1]
    kw = {}
    for s in sys.argv[2:]:
        k, v = s.split("=")
        try:
            v = v if k == "stag" else int(v, 0)
        except ValueError:
            pass
        kw[k] = v.replace("+", " ") if isinstance(v, str) else v
    open(out, "w").write(Gen(**kw).build())


if __name__ == "__main__":
    main()
```
